```python
import torch

def _softmax(x, axis=-1):
    return torch.softmax(x, dim=axis)
def _gelu(x):
    return torch.nn.functional.gelu(x, approximate="tanh")
def _silu(x):
    return torch.nn.functional.silu(x)
def _sigmoid(x):
    return torch.sigmoid(x)
def _layernorm(x, axis=-1, eps=1e-5):
    m = x.mean(dim=axis, keepdim=True)
    v = x.var(dim=axis, keepdim=True, unbiased=False)
    return (x - m) / torch.sqrt(v + eps)
def _scatter_add(tgt, idx, src, axis=0):
    return tgt.clone().index_add_(axis, idx, src)
def _segment_sum(src, seg, n):
    out = torch.zeros((n,) + src.shape[1:], dtype=src.dtype)
    return out.index_add_(0, seg, src)
def _pad(x, pw):
    flat = tuple(v for pair in reversed(pw) for v in pair)
    return torch.nn.functional.pad(x, flat)

kernel_name = 'sequential_preLN__mha_block_cached__dense_activation_squared_relu__decode'

def setup_inputs():

    _w = (lambda a: (lambda t: t.to(torch.bfloat16) if t.is_floating_point() else t)(torch.as_tensor(a)))
    def _A_setup():
        B, Sq, D = 2, 1, 512
        H, Sk, Dh = 32, 4096, 128
        return {
            "x": _w((lambda *s: torch.randn(*s, dtype=torch.bfloat16) * 0.05)(B, Sq, D)),
            "k_cache": _w((lambda *s: torch.randn(*s, dtype=torch.bfloat16) * 3.2)(B, H, Sk, Dh)),
            "v_cache": _w((lambda *s: torch.randn(*s, dtype=torch.bfloat16) * 0.4)(B, H, Sk, Dh)),
            "wq": _w((lambda *s: torch.randn(*s, dtype=torch.bfloat16) * 3.2)(D, H * Dh) * (D ** -0.5)),
            "wo": _w((lambda *s: torch.randn(*s, dtype=torch.bfloat16) * 0.4)(H * Dh, D) * ((H * Dh) ** -0.5)),
        }
    _A_in = _A_setup()

    def _B_setup():
        B, S, D, F = 2, 1, 512, 1376
        return {
            "x": _w((lambda *s: torch.randn(*s, dtype=torch.bfloat16) * 0.05)(B, S, D)),
            "w1": _w((lambda *s: torch.randn(*s, dtype=torch.bfloat16) * 0.05)(D, F)),
            "b1": _w((lambda *s: torch.randn(*s, dtype=torch.bfloat16) * 0.8)(F)),
            "w2": _w((lambda *s: torch.randn(*s, dtype=torch.bfloat16) * 0.05)(F, D)),
            "b2": _w((lambda *s: torch.randn(*s, dtype=torch.bfloat16) * 3.2)(D)),
        }
    _B_in = _B_setup()

    return {
        "A_x": _A_in["x"],
        "A_k_cache": _A_in["k_cache"],
        "A_v_cache": _A_in["v_cache"],
        "A_wq": _A_in["wq"],
        "A_wo": _A_in["wo"],
        "B_x": _B_in["x"],
        "B_w1": _B_in["w1"],
        "B_b1": _B_in["b1"],
        "B_w2": _B_in["w2"],
        "B_b2": _B_in["b2"],
    }

def reference(A_x, A_k_cache, A_v_cache, A_wq, A_wo, B_x, B_w1, B_b1, B_w2, B_b2):
    def _A_ref(x, k_cache, v_cache, wq, wo):
        B, Sq, D = x.shape
        H, Dh = 32, 128
        q = (lambda x, *d: x.permute(*d))((x @ wq).reshape(B, Sq, H, Dh), 0, 2, 1, 3)
        scores = torch.einsum("bhqd,bhkd->bhqk", q, k_cache) * (Dh ** -0.5)
        p = _softmax(scores, axis=-1)
        o = torch.einsum("bhqk,bhkd->bhqd", p, v_cache)
        return (lambda x, *d: x.permute(*d))(o, 0, 2, 1, 3).reshape(B, Sq, H * Dh) @ wo

    def _B_ref(x, w1, b1, w2, b2):
        h = torch.einsum("bsd,df->bsf", x, w1) + b1
        zero = torch.zeros_like(h)
        r = torch.where(h > zero, h, zero)
        h = r * r
        out = torch.einsum("bsf,fd->bsd", h, w2) + b2
        return out

    x = A_x
    h = x + _A_ref(_layernorm(x, axis=-1), A_k_cache, A_v_cache, A_wq, A_wo)
    h2 = h + _B_ref(_layernorm(h, axis=-1), B_w1, B_b1, B_w2, B_b2)
    return h2
```

```python
import struct, sys
NAME = "sequential_preLN__mha_block_cached__dense_activation_squared_relu__decode"

def f2u(x): return struct.unpack("<I", struct.pack("<f", x))[0]
LOG2E = f2u(1.4426950408889634)
SCALE = f2u(128 ** -0.5)
EPS = f2u(1e-5)

WS_P = 0
WS_A = 0x20000
WS_Y = 0x30000
WS_END = WS_Y + 43 * 4096
STAMP_OFF = 128 << 20

L_W = 0
L_Q = 0x10000
L_O = L_Q + 2048
L_ST = L_O + 2048
L_CNT = L_ST + 32
L_RED = L_CNT + 32
L_HN = L_RED + 4096
L_RR = L_HN + 2048
L_FS = L_RR + 512
L_END = L_FS + 64
SPIN_MAX = 400000

HEADER = open("cdna_kernels/" + NAME + ".s.ref").read().split("; Override launch")[0]

class G:
    def __init__(s): s.L = []
    def __call__(s, x): s.L.append("  " + x)
    def lab(s, x): s.L.append(x + ":")
    def c(s, x): s.L.append("  ; " + x)

def gen(kvpol="nt", wqpol="nt", wpol="nt", b0=True, TB2=12, prof=False, hprio=0, RING=4):
    g = G()
    a = g
    def vr(r, n=1): return f"v{r}" if n == 1 else f"v[{r}:{r+n-1}]"
    def sr(r, n=1): return f"s{r}" if n == 1 else f"s[{r}:{r+n-1}]"
    DPPF = "row_mask:0xf bank_mask:0xf"
    sX, sK, sV, sWQ, sWO, sBX, sW1, sB1 = 4, 6, 8, 10, 12, 14, 16, 18
    sW2, sB2, sOUT, sDBG, sWS = 20, 22, 24, 26, 28
    sWAVE, sH, sB, sJ, sSUB, sW4 = 30, 31, 32, 33, 34, 35
    sT0, sT1, sT2, sT3 = 36, 37, 38, 39
    R0, R1, R2, R3 = 40, 44, 48, 52
    RWS = 56
    sSO, sSPIN, sSLOT, sE = 60, 61, 62, 63
    sM0, sM1 = 64, 66
    sC0, sC1 = 68, 69
    sST = 72
    nstamp = [0]
    def stamp(i):
        if prof: a(f"s_memrealtime {sr(sST+2*i,2)}")
    def srd(R, base, off_sgpr, nrec):
        if off_sgpr is None:
            a(f"s_mov_b32 {sr(R)}, {sr(base)}"); a(f"s_mov_b32 {sr(R+1)}, {sr(base+1)}")
        else:
            a(f"s_add_u32 {sr(R)}, {sr(base)}, {sr(off_sgpr)}"); a(f"s_addc_u32 {sr(R+1)}, {sr(base+1)}, 0")
        a(f"s_mov_b32 {sr(R+2)}, {nrec}"); a(f"s_mov_b32 {sr(R+3)}, 0x20000")
    def rnd(dst, src):
        a(f"v_cvt_pk_bf16_f32 {vr(dst)}, {vr(src)}, {vr(src)}")
        a(f"v_lshlrev_b32 {vr(dst)}, 16, {vr(dst)}")
    def allred(op, regs, tmps, quad=True):
        steps = (["quad_perm:[1,0,3,2]", "quad_perm:[2,3,0,1]"] if quad else []) + ["row_ror:4", "row_ror:8"]
        pad = max(0, 2 - (len(regs) - 1))
        for st in steps:
            if pad: a(f"s_nop {pad-1}")
            for r in regs: a(f"{op}_dpp {vr(r)}, {vr(r)}, {vr(r)} {st} {DPPF}")
        for sw in ("v_permlane16_swap_b32", "v_permlane32_swap_b32"):
            for r, t in zip(regs, tmps): a(f"v_mov_b32 {vr(t)}, {vr(r)}")
            a("s_nop 1")
            for r, t in zip(regs, tmps): a(f"{sw} {vr(r)}, {vr(t)}")
            a("s_nop 0")
            for r, t in zip(regs, tmps): a(f"{op} {vr(r)}, {vr(r)}, {vr(t)}")
    def poll(label, loads, regs, tmp):
        a(f"s_mov_b32 {sr(sSPIN)}, {SPIN_MAX}")
        g.lab(label)
        for l in loads: a(l)
        a(f"s_sub_u32 {sr(sSPIN)}, {sr(sSPIN)}, 1")
        a(f"s_cbranch_scc1 {label}_x")
        a("s_waitcnt vmcnt(0)")
        rs = list(regs)
        if len(rs) == 1:
            a(f"v_cmp_eq_u32 vcc, -1, {vr(rs[0])}")
        else:
            if len(rs) == 2:
                a(f"v_max_u32 {vr(tmp)}, {vr(rs[0])}, {vr(rs[1])}"); rs = []
            else:
                a(f"v_max3_u32 {vr(tmp)}, {vr(rs[0])}, {vr(rs[1])}, {vr(rs[2])}"); rs = rs[3:]
            while len(rs) >= 2:
                a(f"v_max3_u32 {vr(tmp)}, {vr(tmp)}, {vr(rs[0])}, {vr(rs[1])}"); rs = rs[2:]
            if rs: a(f"v_max_u32 {vr(tmp)}, {vr(tmp)}, {vr(rs[0])}")
            a(f"v_cmp_eq_u32 vcc, -1, {vr(tmp)}")
        a("s_and_b64 exec, vcc, vcc")
        a(f"s_cbranch_scc1 {label}")
        g.lab(label + "_x")
        a("s_mov_b64 exec, -1")
        a("s_waitcnt vmcnt(0)")
    def wait_counter(label, v):
        a(f"s_mov_b32 {sr(sSPIN)}, {SPIN_MAX}")
        a(f"v_mov_b32 {vr(v+1)}, 0")
        g.lab(label)
        a(f"global_load_dword {vr(v)}, {vr(v+1)}, {sr(sDBG,2)} sc1")
        a(f"s_sub_u32 {sr(sSPIN)}, {sr(sSPIN)}, 1")
        a(f"s_cbranch_scc1 {label}_x")
        a("s_waitcnt vmcnt(0)")
        a(f"v_cmp_ne_u32 vcc, 0x100, {vr(v)}")
        a(f"s_cbranch_vccnz {label}")
        g.lab(label + "_x")

    vLANE, vI, vG = 1, 2, 3
    vMASK = 4
    a("s_cmp_ge_u32 s2, 0x100")
    a("s_cbranch_scc1 L_end")
    a(f"s_load_dwordx16 {sr(4,16)}, s[0:1], 0")
    a(f"s_load_dwordx8 {sr(20,8)}, s[0:1], 64")
    a(f"s_load_dwordx2 {sr(28,2)}, s[0:1], 96")
    if prof:
        for i in range(12): a(f"s_mov_b64 {sr(sST+2*i,2)}, 0")
    stamp(0)
    a(f"v_lshrrev_b32 {vr(vI)}, 6, v0")
    a(f"v_and_b32 {vr(vLANE)}, 63, v0")
    a(f"s_and_b32 {sr(sH)}, s2, 31")
    a(f"v_readfirstlane_b32 {sr(sWAVE)}, {vr(vI)}")
    a(f"s_lshr_b32 {sr(sSUB)}, s2, 5")
    a(f"s_lshr_b32 {sr(sB)}, s2, 7")
    a(f"s_and_b32 {sr(sJ)}, {sr(sSUB)}, 3")
    a(f"v_and_b32 {vr(vI)}, 15, {vr(vLANE)}")
    a(f"v_lshrrev_b32 {vr(vG)}, 4, {vr(vLANE)}")
    a(f"s_and_b32 {sr(sW4)}, {sr(sWAVE)}, 3")
    a(f"s_lshl_b32 {sr(sSLOT)}, {sr(sH)}, 3")
    a(f"s_add_u32 {sr(sSLOT)}, {sr(sSLOT)}, {sr(sSUB)}")
    a(f"s_lshl_b32 {sr(sSLOT)}, {sr(sSLOT)}, 9")
    a(f"v_and_b32 v8, 1, {vr(vI)}")
    a("v_lshlrev_b32 v8, 4, v8")
    a("v_mov_b32 v9, 0xffff")
    a("v_lshlrev_b32 v8, v8, v9")
    a(f"v_lshrrev_b32 v9, 1, {vr(vI)}")
    for r in range(4):
        a(f"v_cmp_eq_u32 vcc, {r}, v9")
        a("s_nop 1")
        a(f"v_cndmask_b32 {vr(vMASK+r)}, 0, v8, vcc")
    a(f"s_mov_b32 {sr(sC0)}, {LOG2E:#x}")
    a(f"s_cmp_ge_u32 {sr(sWAVE)}, 4")
    a("s_cbranch_scc1 L_helper")

    vOFF = 8
    vQ = 12
    vP = 16
    vU = 20
    vMX, vNM, vL, vT = 22, 23, 24, 25
    vACC = 28
    vA = 32
    vF = 40
    vS = 48
    vRING = 64
    a(f"v_lshlrev_b32 {vr(vOFF)}, 4, {vr(vLANE)}")
    a(f"s_lshl_b32 {sr(sT0)}, {sr(sB)}, 5")
    a(f"s_add_u32 {sr(sT0)}, {sr(sT0)}, {sr(sH)}")
    a(f"s_lshl_b32 {sr(sT0)}, {sr(sT0)}, 20")
    a(f"s_lshl_b32 {sr(sT1)}, {sr(sJ)}, 14")
    a(f"s_add_u32 {sr(sT0)}, {sr(sT0)}, {sr(sT1)}")
    a(f"s_lshl_b32 {sr(sT1)}, {sr(sW4)}, 12")
    a(f"s_add_u32 {sr(sT0)}, {sr(sT0)}, {sr(sT1)}")
    a(f"s_mov_b32 {sr(sC1)}, {SCALE:#x}")
    a("s_waitcnt lgkmcnt(0)")
    srd(R0, sK, sT0, 15*65536 + 4096)
    srd(R1, sV, sT0, 15*65536 + 4096)
    srd(RWS, sWS, None, WS_END)
    stamp(1)
    if b0: a("s_barrier")
    def issue(n):
        R = R0 if n < 16 else R1
        a(f"s_mov_b32 {sr(sSO)}, {(n % 16) * 65536}")
        for r in range(4):
            reg = vRING + (n % RING) * 16 + 4 * r
            a(f"buffer_load_dwordx4 {vr(reg,4)}, {vr(vOFF)}, {sr(R,4)}, {sr(sSO)} offen offset:{r*1024} {kvpol}")
    for n in range(RING): issue(n)
    a(f"v_lshlrev_b32 v9, 5, {vr(vI)}")
    a(f"v_add_u32 v9, {L_Q}, v9")
    a("s_barrier")
    stamp(2)
    for w in range(4):
        a(f"ds_read_b128 {vr(32+8*w,4)}, v9 offset:{w*512}")
        a(f"ds_read_b128 {vr(36+8*w,4)}, v9 offset:{w*512+16}")
    a(f"v_mov_b32 {vr(vMX)}, 0xff800000")
    a("s_waitcnt lgkmcnt(4)")
    for k in range(4): a(f"v_pk_add_f32 {vr(32+2*k,2)}, {vr(32+2*k,2)}, {vr(40+2*k,2)}")
    a("s_waitcnt lgkmcnt(0)")
    for k in range(4): a(f"v_pk_add_f32 {vr(48+2*k,2)}, {vr(48+2*k,2)}, {vr(56+2*k,2)}")
    for k in range(4): a(f"v_pk_add_f32 {vr(32+2*k,2)}, {vr(32+2*k,2)}, {vr(48+2*k,2)}")
    for k in range(4): a(f"v_cvt_pk_bf16_f32 {vr(vQ+k)}, {vr(32+2*k)}, {vr(33+2*k)}")
    for t in range(16):
        a(f"s_waitcnt vmcnt({4*(RING-1)})")
        base = vRING + (t % RING) * 16
        for k in range(4):
            for r in range(4):
                src2 = "0" if k == 0 else vr(vP + r)
                a(f"v_dot2_f32_bf16 {vr(vP+r)}, {vr(base+4*r+k)}, {vr(vQ+k)}, {src2}")
        issue(t + RING)
        a(f"v_add_f32_dpp {vr(vU)}, {vr(vP)}, {vr(vP)} row_ror:8 row_mask:0xf bank_mask:0x3")
        a(f"v_add_f32_dpp {vr(vU+1)}, {vr(vP+1)}, {vr(vP+1)} row_ror:8 row_mask:0xf bank_mask:0x3")
        a(f"v_add_f32_dpp {vr(vU)}, {vr(vP+2)}, {vr(vP+2)} row_ror:8 row_mask:0xf bank_mask:0xc")
        a(f"v_add_f32_dpp {vr(vU+1)}, {vr(vP+3)}, {vr(vP+3)} row_ror:8 row_mask:0xf bank_mask:0xc")
        a("s_nop 0")
        s = vS + t
        a(f"v_add_f32_dpp {vr(s)}, {vr(vU)}, {vr(vU)} row_shl:4 row_mask:0xf bank_mask:0x5")
        a(f"v_add_f32_dpp {vr(s)}, {vr(vU+1)}, {vr(vU+1)} row_shr:4 row_mask:0xf bank_mask:0xa")
        a("s_nop 1")
        a(f"v_add_f32_dpp {vr(s)}, {vr(s)}, {vr(s)} quad_perm:[1,0,3,2] {DPPF}")
        a("s_nop 1")
        a(f"v_add_f32_dpp {vr(s)}, {vr(s)}, {vr(s)} quad_perm:[2,3,0,1] {DPPF}")
        rnd(s, s)
        a(f"v_mul_f32 {vr(s)}, {sr(sC1)}, {vr(s)}")
        rnd(s, s)
        a(f"v_max_f32 {vr(vMX)}, {vr(vMX)}, {vr(s)}")
    stamp(3)
    allred("v_max_f32", [vMX], [vT], quad=False)
    a(f"v_mul_f32 {vr(vMX)}, {sr(sC0)}, {vr(vMX)}")
    a(f"v_mov_b32 {vr(vL)}, 0")
    for t in range(16):
        if t < 8:
            for s in (vS + 2*t, vS + 2*t + 1):
                a(f"v_fma_f32 {vr(s)}, {vr(s)}, {sr(sC0)}, -{vr(vMX)}")
            for s in (vS + 2*t, vS + 2*t + 1):
                a(f"v_exp_f32 {vr(s)}, {vr(s)}")
            a("s_nop 0")
            for s in (vS + 2*t, vS + 2*t + 1):
                a(f"v_add_f32 {vr(vL)}, {vr(vL)}, {vr(s)}")
                a(f"v_cvt_pk_bf16_f32 {vr(s)}, {vr(s)}, {vr(s)}")
            a("s_nop 1")
        if t == 8:
            allred("v_add_f32", [vL], [vT], quad=False)
            a(f"v_mov_b32 {vr(vNM)}, {vr(vL)}")
            a(f"s_lshl_b32 {sr(sT0)}, {sr(sW4)}, 3")
            a(f"s_add_u32 {sr(sT0)}, {sr(sT0)}, {L_ST}")
            a(f"v_mov_b32 {vr(vT)}, {sr(sT0)}")
            a(f"ds_write_b64 {vr(vT)}, {vr(vMX,2)}")
        if t == TB2:
            a("s_waitcnt lgkmcnt(0)")
            a("s_barrier")
            stamp(4)
            a(f"v_mov_b32 {vr(vT)}, {L_ST}")
            a(f"ds_read_b128 {vr(12,4)}, {vr(vT)}")
            a(f"ds_read_b128 {vr(16,4)}, {vr(vT)} offset:16")
        if t == min(TB2 + 1, 15):
            a("s_waitcnt lgkmcnt(0)")
            a("v_max3_f32 v20, v12, v14, v16")
            a("v_max_f32 v20, v20, v18")
            for w in range(4): a(f"v_sub_f32 {vr(vF+w)}, {vr(12+2*w)}, v20")
            for w in range(4): a(f"v_exp_f32 {vr(vF+w)}, {vr(vF+w)}")
            a("s_nop 0")
            a(f"v_mul_f32 v21, {vr(vF)}, v13")
            for w in range(1, 4): a(f"v_fmac_f32 v21, {vr(vF+w)}, {vr(13+2*w)}")
            a("v_rcp_f32 v21, v21")
            a("s_nop 0")
            for w in range(4): a(f"v_mul_f32 {vr(vF+w)}, {vr(vF+w)}, v21")
            a(f"v_lshlrev_b32 v9, 5, {vr(vI)}")
            a(f"v_lshl_add_u32 v9, {vr(vG)}, 4, v9")
            a(f"v_lshrrev_b32 v11, 1, v9")
            a(f"v_add_u32 v9, {L_O}, v9")
            a(f"s_lshl_b32 {sr(sT0)}, {sr(sW4)}, 9")
            a(f"v_add_u32 v10, {sr(sT0)}, v9")
            a(f"v_mov_b32 v26, {L_CNT}")
            a("v_mov_b32 v27, 1")
        left = min(15 - t, RING - 1)
        base = vRING + ((16 + t) % RING) * 16
        for r in range(4):
            A = vA + 4 * (r & 1)
            for k in range(4):
                a(f"v_and_b32_dpp {vr(A+k)}, {vr(vS+t)}, {vr(vMASK+k)} row_newbcast:{4*r} {DPPF}")
            if t == 15 or r == 0:
                a(f"s_waitcnt vmcnt({4*left + (3 - r if t == 15 else 0)})")
            else:
                a("s_nop 0")
            a("s_nop 0")
            src2 = "0" if (t == 0 and r == 0) else vr(vACC, 4)
            a(f"v_mfma_f32_16x16x32_bf16 {vr(vACC,4)}, {vr(A,4)}, {vr(base+4*r,4)}, {src2}")
        if 16 + t + RING < 32: issue(16 + t + RING)
    a("s_mov_b32 exec_hi, 0")
    stamp(5)
    a("s_nop 6")
    a(f"ds_write_b128 v10, {vr(vACC,4)}")
    a("s_mov_b32 exec_lo, 1")
    a("ds_add_rtn_u32 v27, v26, v27")
    a("s_mov_b32 exec_lo, -1")
    for w in range(4): a(f"ds_read_b128 {vr(48+4*w,4)}, v9 offset:{w*512}")
    a("s_waitcnt lgkmcnt(4)")
    a(f"v_readfirstlane_b32 {sr(sT0)}, v27")
    a(f"s_cmp_eq_u32 {sr(sT0)}, 3")
    a("s_cbranch_scc0 L_fin")
    a("s_waitcnt lgkmcnt(3)")
    for k in range(4): a(f"v_mul_f32 {vr(48+k)}, {vr(vF)}, {vr(48+k)}")
    for w in range(1, 4):
        a(f"s_waitcnt lgkmcnt({3-w})")
        for k in range(4): a(f"v_fmac_f32 {vr(48+k)}, {vr(vF+w)}, {vr(48+4*w+k)}")
    a("v_cvt_pk_bf16_f32 v48, v48, v49")
    a("v_cvt_pk_bf16_f32 v49, v50, v51")
    a(f"buffer_store_dwordx2 v[48:49], v11, {sr(RWS,4)}, {sr(sSLOT)} offen sc1")
    stamp(6)
    a("s_branch L_fin")

    g.lab("L_helper")
    if hprio: a(f"s_setprio {hprio}")
    hW = 64
    a(f"v_lshlrev_b32 v8, 4, {vr(vLANE)}")
    a(f"v_lshlrev_b32 v9, 13, {vr(vG)}")
    a(f"v_lshl_add_u32 v9, {vr(vI)}, 4, v9")
    a(f"s_lshl_b32 {sr(sT0)}, {sr(sSUB)}, 2")
    a(f"v_add_u32 v10, {sr(sT0)}, {vr(vI)}")
    a("v_add_u32 v11, 16, v10")
    a("v_and_b32 v10, 31, v10")
    a("v_and_b32 v11, 31, v11")
    a(f"v_lshl_add_u32 v10, v10, 2, {vr(vG)}")
    a(f"v_lshl_add_u32 v11, v11, 2, {vr(vG)}")
    a("v_lshlrev_b32 v10, 1, v10")
    a("v_lshlrev_b32 v11, 1, v11")
    a(f"s_lshl_b32 {sr(sT1)}, {sr(sB)}, 10")
    a(f"s_lshl_b32 {sr(sT2)}, {sr(sW4)}, 8")
    a(f"s_add_u32 {sr(sT2)}, {sr(sT2)}, {sr(sT1)}")
    a(f"s_lshl_b32 {sr(sT0)}, {sr(sH)}, 8")
    a(f"s_lshl_b32 {sr(sT3)}, {sr(sW4)}, 20")
    a(f"s_add_u32 {sr(sT0)}, {sr(sT0)}, {sr(sT3)}")
    a(f"s_lshl_b32 {sr(sSO)}, {sr(sSUB)}, 17")
    a("s_waitcnt lgkmcnt(0)")
    srd(R0, sX, None, 2048)
    srd(R1, sWQ, sT0, 127*8192 + 256)
    stamp(1)
    a(f"buffer_load_dwordx4 v[12:15], v8, {sr(R0,4)}, {sr(sT1)} offen")
    a(f"buffer_load_ushort v16, v10, {sr(R0,4)}, {sr(sT2)} offen")
    a(f"buffer_load_ushort v17, v11, {sr(R0,4)}, {sr(sT2)} offen")
    for t in range(32):
        a(f"buffer_load_dwordx4 {vr(hW+4*t,4)}, v9, {sr(R1,4)}, {sr(sSO)} offen {wqpol}")
        if t < 31:
            a(f"s_add_u32 {sr(sSO)}, {sr(sSO)}, 0x8000")
            a(f"s_and_b32 {sr(sSO)}, {sr(sSO)}, 0xfffff")
    if b0: a("s_barrier")
    srd(RWS, sWS, None, WS_END)
    a(f"v_mov_b32 v18, {L_CNT}")
    a("v_mov_b32 v19, 0")
    a("ds_write_b32 v18, v19")
    a("s_waitcnt vmcnt(32)")
    for k in range(4):
        a(f"v_and_b32 {vr(21+2*k)}, 0xffff0000, {vr(12+k)}")
        a(f"v_lshlrev_b32 {vr(20+2*k)}, 16, {vr(12+k)}")
    a("v_pk_add_f32 v[28:29], v[20:21], v[22:23]")
    a("v_pk_add_f32 v[30:31], v[24:25], v[26:27]")
    a("v_pk_add_f32 v[28:29], v[28:29], v[30:31]")
    a("v_add_f32 v28, v28, v29")
    allred("v_add_f32", [28], [29])
    a("v_mul_f32 v28, 0x3b000000, v28")
    for k in range(8): a(f"v_sub_f32 {vr(20+k)}, {vr(20+k)}, v28")
    a("v_mul_f32 v30, v20, v20")
    for k in range(1, 8): a(f"v_fmac_f32 v30, {vr(20+k)}, {vr(20+k)}")
    allred("v_add_f32", [30], [29])
    a("v_mul_f32 v30, 0x3b000000, v30")
    def ln_scale(vmean, vvar):
        rnd(vmean, vmean)
        rnd(vvar, vvar)
        a(f"v_add_f32 {vr(vvar)}, {EPS:#x}, {vr(vvar)}")
        rnd(vvar, vvar)
        a(f"v_sqrt_f32 {vr(vvar)}, {vr(vvar)}")
        a("s_nop 0")
        rnd(vvar, vvar)
        a(f"v_rcp_f32 {vr(vvar)}, {vr(vvar)}")
    ln_scale(28, 30)
    for r in (16, 17):
        a(f"v_lshlrev_b32 {vr(r)}, 16, {vr(r)}")
        a(f"v_sub_f32 {vr(r)}, {vr(r)}, v28")
        rnd(r, r)
        a(f"v_mul_f32 {vr(r)}, {vr(r)}, v30")
        a(f"v_cvt_pk_bf16_f32 {vr(r)}, {vr(r)}, {vr(r)}")
    a(f"v_lshlrev_b32 v20, 5, {vr(vI)}")
    a(f"v_lshl_add_u32 v20, {vr(vG)}, 4, v20")
    a(f"s_lshl_b32 {sr(sT0)}, {sr(sW4)}, 9")
    a(f"s_add_u32 {sr(sT0)}, {sr(sT0)}, {L_Q}")
    a(f"v_add_u32 v20, {sr(sT0)}, v20")
    for t in range(32):
        A = 32 + 4 * (t & 1)
        for k in range(4):
            a(f"v_and_b32_dpp {vr(A+k)}, {vr(16 + t//16)}, {vr(vMASK+k)} row_newbcast:{t%16} {DPPF}")
        a(f"s_waitcnt vmcnt({31-t})")
        a("s_nop 0")
        src2 = "0" if t == 0 else "v[28:31]"
        a(f"v_mfma_f32_16x16x32_bf16 v[28:31], {vr(A,4)}, {vr(hW+4*t,4)}, {src2}")
    a("s_mov_b32 exec_hi, 0")
    a("s_nop 7")
    a("ds_write_b128 v20, v[28:31]")
    a("s_mov_b64 exec, -1")
    a("s_waitcnt lgkmcnt(0)")
    stamp(2)
    a("s_barrier")
    if hprio: a("s_setprio 0")
    sROLE, sRI = sT2, sT3
    sROLE, sRI = 70, 71
    a(f"s_lshr_b32 {sr(sE)}, s2, 1")
    a(f"s_mov_b32 {sr(sROLE)}, 0")
    a(f"s_mov_b32 {sr(sRI)}, {sr(sE)}")
    a("s_bitcmp1_b32 s2, 0")
    a("s_cbranch_scc1 L_odd")
    a(f"s_mov_b32 {sr(sROLE)}, 1")
    a(f"s_cmp_lt_u32 {sr(sE)}, 64")
    a("s_cbranch_scc1 L_roled")
    a(f"s_sub_u32 {sr(sT0)}, {sr(sE)}, 64")
    a(f"s_and_b32 {sr(sT1)}, {sr(sT0)}, 3")
    a(f"s_lshr_b32 {sr(sT0)}, {sr(sT0)}, 2")
    a(f"s_mul_i32 {sr(sT1)}, {sr(sT1)}, 11")
    a(f"s_add_u32 {sr(sRI)}, {sr(sT1)}, {sr(sT0)}")
    a(f"s_mov_b32 {sr(sROLE)}, 0")
    a(f"s_cmp_ge_u32 {sr(sT0)}, 11")
    a("s_cbranch_scc1 L_roled")
    a(f"s_cmp_ge_u32 {sr(sRI)}, 43")
    a("s_cbranch_scc1 L_roled")
    a(f"s_mov_b32 {sr(sROLE)}, 2")
    a("s_branch L_roled")
    g.lab("L_odd")
    a(f"s_cmp_lt_u32 {sr(sE)}, 32")
    a("s_cbranch_scc0 L_roled")
    a(f"s_mov_b32 {sr(sROLE)}, 3")
    g.lab("L_roled")
    a(f"s_cmp_eq_u32 {sr(sW4)}, 0")
    a("s_cbranch_scc0 L_noclear")
    for k in range(4): a(f"v_mov_b32 {vr(12+k)}, -1")
    a("s_mov_b32 exec_hi, 0")
    a(f"buffer_store_dwordx4 v[12:15], v8, {sr(RWS,4)}, {sr(sSLOT)} offen sc1")
    a("s_mov_b64 exec, -1")
    a(f"s_cmp_eq_u32 {sr(sROLE)}, 1")
    a("s_cbranch_scc0 L_clr1")
    a(f"s_lshr_b32 {sr(sT0)}, {sr(sRI)}, 3")
    a(f"s_lshl_b32 {sr(sT0)}, {sr(sT0)}, 11")
    a(f"s_and_b32 {sr(sT1)}, {sr(sRI)}, 7")
    a(f"s_lshl_b32 {sr(sT1)}, {sr(sT1)}, 7")
    a(f"s_add_u32 {sr(sT0)}, {sr(sT0)}, {sr(sT1)}")
    a(f"s_add_u32 {sr(sT0)}, {sr(sT0)}, {WS_A}")
    a("s_mov_b64 exec, 0xff")
    a(f"buffer_store_dwordx4 v[12:15], v8, {sr(RWS,4)}, {sr(sT0)} offen sc1")
    a(f"buffer_store_dwordx4 v[12:15], v8, {sr(RWS,4)}, {sr(sT0)} offen offset:1024 sc1")
    a("s_mov_b64 exec, -1")
    g.lab("L_clr1")
    a(f"s_cmp_eq_u32 {sr(sROLE)}, 2")
    a("s_cbranch_scc0 L_clr2")
    a(f"s_lshl_b32 {sr(sT0)}, {sr(sRI)}, 12")
    a(f"s_add_u32 {sr(sT0)}, {sr(sT0)}, {WS_Y}")
    for k in range(4):
        a(f"buffer_store_dwordx4 v[12:15], v8, {sr(RWS,4)}, {sr(sT0)} offen offset:{k*1024} sc1")
    g.lab("L_clr2")
    a("s_waitcnt vmcnt(0)")
    a("v_mov_b32 v12, 0")
    a("v_mov_b32 v13, 1")
    a("s_mov_b64 exec, 1")
    a(f"global_atomic_add v12, v13, {sr(sDBG,2)} sc1")
    a("s_mov_b64 exec, -1")
    a("s_branch L_stay")
    g.lab("L_noclear")
    a(f"s_cmp_eq_u32 {sr(sROLE)}, 1")
    a("s_cbranch_scc1 L_stay")
    a(f"s_cmp_eq_u32 {sr(sROLE)}, 2")
    a("s_cbranch_scc0 L_fin")
    g.lab("L_stay")
    a("s_barrier")
    stamp(4)
    a(f"s_cmp_eq_u32 {sr(sW4)}, 0")
    a("s_cbranch_scc0 L_nostat")
    a(f"v_mov_b32 v20, {L_ST}")
    a("ds_read_b128 v[12:15], v20")
    a("ds_read_b128 v[16:19], v20 offset:16")
    a("s_waitcnt lgkmcnt(0)")
    a("v_max3_f32 v20, v12, v14, v16")
    a("v_max_f32 v20, v20, v18")
    for w in range(4): a(f"v_sub_f32 {vr(24+w)}, {vr(12+2*w)}, v20")
    for w in range(4): a(f"v_exp_f32 {vr(24+w)}, {vr(24+w)}")
    a("s_nop 0")
    a("v_mul_f32 v21, v24, v13")
    for w in range(1, 4): a(f"v_fmac_f32 v21, {vr(24+w)}, {vr(13+2*w)}")
    a("s_mov_b64 exec, 1")
    a(f"buffer_store_dwordx2 v[20:21], v8, {sr(RWS,4)}, {sr(sSLOT)} offen offset:256 sc1")
    a("s_mov_b64 exec, -1")
    g.lab("L_nostat")
    a(f"s_cmp_eq_u32 {sr(sROLE)}, 1")
    a("s_cbranch_scc1 L_roleO")
    a(f"s_cmp_eq_u32 {sr(sROLE)}, 2")
    a("s_cbranch_scc1 L_roleF")
    a(f"s_cmp_eq_u32 {sr(sROLE)}, 3")
    a("s_cbranch_scc1 L_roleR")
    a("s_branch L_fin")

    g.lab("L_roleO")
    vB = 64
    a(f"s_lshr_b32 {sr(sT0)}, {sr(sRI)}, 3")
    a(f"s_lshl_b32 {sr(sT0)}, {sr(sT0)}, 2")
    a(f"s_add_u32 {sr(sT0)}, {sr(sT0)}, {sr(sW4)}")
    a(f"s_and_b32 {sr(sT1)}, {sr(sRI)}, 7")
    a(f"s_lshl_b32 {sr(sT1)}, {sr(sT1)}, 7")
    a(f"s_lshl_b32 {sr(sT2)}, {sr(sT0)}, 17")
    a(f"s_add_u32 {sr(sT2)}, {sr(sT2)}, {sr(sT1)}")
    srd(R2, sWO, sT2, 127*1024 + 128)
    a(f"v_lshrrev_b32 v9, 3, {vr(vLANE)}")
    a("v_lshlrev_b32 v9, 10, v9")
    a(f"v_and_b32 v10, 7, {vr(vLANE)}")
    a("v_lshl_add_u32 v9, v10, 4, v9")
    a(f"s_lshl_b32 {sr(sT3)}, {sr(sW4)}, 14")
    for n in range(16):
        a(f"s_add_u32 m0, {sr(sT3)}, {L_W + n*1024}")
        a(f"s_mov_b32 {sr(sSO)}, {n*8192}")
        a(f"buffer_load_dwordx4 v9, {sr(R2,4)}, {sr(sSO)} offen {wpol} lds")
    a(f"s_lshl_b32 {sr(sT0)}, {sr(sT0)}, 12")
    wait_counter("L_cntO", 12)
    a(f"v_and_b32 v10, 1, {vr(vG)}")
    a("v_lshlrev_b32 v10, 11, v10")
    poll("L_pollOs", [f"buffer_load_dwordx2 {vr(12+2*r,2)}, v10, {sr(RWS,4)}, {sr(sT0)} offen offset:{r*512+256} sc1" for r in range(4)], range(12, 20), 20)
    a("v_max3_f32 v20, v12, v14, v16")
    a("v_max_f32 v20, v20, v18")
    for r in range(4): a(f"v_sub_f32 {vr(24+r)}, {vr(12+2*r)}, v20")
    for r in range(4): a(f"v_exp_f32 {vr(24+r)}, {vr(24+r)}")
    a("s_nop 0")
    for r in range(4): a(f"v_mul_f32 {vr(24+r)}, {vr(24+r)}, {vr(13+2*r)}")
    a("v_add_f32 v20, v24, v25")
    a("v_add_f32 v21, v26, v27")
    a("v_add_f32 v20, v20, v21")
    a("v_rcp_f32 v20, v20")
    a(f"v_cmp_gt_u32 vcc, 32, {vr(vLANE)}")
    for r in range(4): a(f"v_mul_f32 {vr(24+r)}, {vr(24+r)}, v20")
    for r in range(4):
        a(f"v_cndmask_b32 {vr(28+r)}, {vr(24+r)}, 0, vcc")
        a(f"v_cndmask_b32 {vr(24+r)}, 0, {vr(24+r)}, vcc")
    a(f"v_bfe_u32 v10, {vr(vLANE)}, 2, 2")
    a(f"v_lshl_add_u32 v10, {vr(vG)}, 3, v10")
    a("v_lshlrev_b32 v10, 7, v10")
    a(f"v_and_b32 v11, 3, {vr(vLANE)}")
    a("v_lshl_add_u32 v10, v11, 3, v10")
    a(f"v_add_u32 v10, {sr(sT3)}, v10")
    for s in range(4):
        for nu in range(4):
            for hf in range(2):
                a(f"ds_read_b64_tr_b16 {vr(vB+16*s+4*nu+2*hf,2)}, v10 offset:{L_W + s*4096 + hf*512 + nu*32}")
        a("s_waitcnt lgkmcnt(0)")
    a(f"v_and_b32 v10, 7, {vr(vI)}")
    a("v_lshlrev_b32 v10, 9, v10")
    a(f"v_lshrrev_b32 v11, 3, {vr(vI)}")
    a("v_lshl_add_u32 v10, v11, 6, v10")
    a(f"v_lshl_add_u32 v10, {vr(vG)}, 4, v10")
    a(f"v_add_u32 v9, {L_RED}, v8")
    a(f"s_lshl_b32 {sr(sT2)}, {sr(sW4)}, 10")
    a(f"v_add_u32 v11, {sr(sT2)}, v9")
    a(f"v_and_b32 v21, 1, {vr(vG)}")
    a("v_lshlrev_b32 v21, 10, v21")
    a(f"v_lshrrev_b32 v22, 1, {vr(vG)}")
    a("v_lshl_add_u32 v21, v22, 6, v21")
    a(f"v_lshl_add_u32 v21, {vr(vI)}, 2, v21")
    a(f"s_lshr_b32 {sr(sT2)}, {sr(sRI)}, 3")
    a(f"s_lshl_b32 {sr(sT2)}, {sr(sT2)}, 11")
    a(f"s_add_u32 {sr(sT2)}, {sr(sT2)}, {sr(sT1)}")
    a(f"s_add_u32 {sr(sT2)}, {sr(sT2)}, {WS_A}")
    stamp(5)
    a("s_barrier")
    stamp(6)
    poll("L_pollO", [f"buffer_load_dwordx4 {vr(12+4*u,4)}, v10, {sr(RWS,4)}, {sr(sT0)} offen offset:{u*128} sc1" for u in range(2)], range(12, 20), 20)
    stamp(7)
    for nu in range(4):
        lo, hi = 32 + 8*nu, 36 + 8*nu
        a(f"v_mfma_f32_16x16x32_bf16 {vr(lo,4)}, v[12:15], {vr(vB+0+4*nu,4)}, 0")
        a(f"v_mfma_f32_16x16x32_bf16 {vr(hi,4)}, v[12:15], {vr(vB+16+4*nu,4)}, 0")
        a(f"v_mfma_f32_16x16x32_bf16 {vr(lo,4)}, v[16:19], {vr(vB+32+4*nu,4)}, {vr(lo,4)}")
        a(f"v_mfma_f32_16x16x32_bf16 {vr(hi,4)}, v[16:19], {vr(vB+48+4*nu,4)}, {vr(hi,4)}")
    for nu in range(4):
        lo, hi = 32 + 8*nu, 36 + 8*nu
        if nu == 3: a("s_nop 0")
        a(f"v_pk_mul_f32 {vr(lo,2)}, {vr(lo,2)}, v[24:25]")
        a(f"v_pk_fma_f32 {vr(lo,2)}, {vr(lo+2,2)}, v[26:27], {vr(lo,2)}")
        a(f"v_pk_fma_f32 {vr(lo,2)}, {vr(hi,2)}, v[28:29], {vr(lo,2)}")
        a(f"v_pk_fma_f32 {vr(lo,2)}, {vr(hi+2,2)}, v[30:31], {vr(lo,2)}")
        a(f"v_add_f32 {vr(12+nu)}, {vr(lo)}, {vr(lo+1)}")
    a("ds_write_b128 v11, v[12:15]")
    a("s_waitcnt lgkmcnt(0)")
    a("s_barrier")
    a(f"s_cmp_eq_u32 {sr(sW4)}, 0")
    a("s_cbranch_scc0 L_fin")
    for w in range(1, 4): a(f"ds_read_b128 {vr(32+4*w,4)}, v9 offset:{w*1024}")
    for w in range(1, 4):
        a(f"s_waitcnt lgkmcnt({3-w})")
        a(f"v_pk_add_f32 v[12:13], v[12:13], {vr(32+4*w,2)}")
        a(f"v_pk_add_f32 v[14:15], v[14:15], {vr(34+4*w,2)}")
    a("s_nop 1")
    a("v_permlane32_swap_b32 v12, v13")
    a("v_permlane32_swap_b32 v14, v15")
    a("v_add_f32 v12, v12, v13")
    a("v_add_f32 v14, v14, v15")
    a("v_cvt_pk_bf16_f32 v12, v12, v14")
    a(f"buffer_store_dword v12, v21, {sr(RWS,4)}, {sr(sT2)} offen sc1")
    stamp(8)
    a("s_branch L_fin")

    g.lab("L_roleF")
    vW1 = 64
    vW2 = 96
    vA1 = 128
    vA2 = 160
    a(f"s_mul_i32 {sr(sT0)}, {sr(sW4)}, {128*2752}")
    a(f"s_lshl_b32 {sr(sT1)}, {sr(sRI)}, 6")
    a(f"s_add_u32 {sr(sT0)}, {sr(sT0)}, {sr(sT1)}")
    srd(R2, sW1, sT0, 127*2752 + 64)
    a(f"s_lshl_b32 {sr(sT0)}, {sr(sRI)}, 15")
    a(f"s_lshl_b32 {sr(sT2)}, {sr(sW4)}, 8")
    a(f"s_add_u32 {sr(sT0)}, {sr(sT0)}, {sr(sT2)}")
    srd(R3, sW2, sT0, 31*1024 + 256)
    a(f"v_lshrrev_b32 v9, 2, {vr(vLANE)}")
    a("v_mul_u32_u24 v9, 2752, v9")
    a(f"v_and_b32 v10, 3, {vr(vLANE)}")
    a("v_lshl_add_u32 v9, v10, 4, v9")
    a(f"v_lshlrev_b32 v11, 10, {vr(vG)}")
    a(f"v_lshl_add_u32 v11, {vr(vI)}, 4, v11")
    a(f"s_lshl_b32 {sr(sT3)}, {sr(sW4)}, 14")
    for n in range(8):
        a(f"s_add_u32 m0, {sr(sT3)}, {L_W + n*1024}")
        a(f"s_mov_b32 {sr(sSO)}, {n*16*2752}")
        a(f"buffer_load_dwordx4 v9, {sr(R2,4)}, {sr(sSO)} offen {wpol} lds")
    for n in range(8):
        a(f"s_add_u32 m0, {sr(sT3)}, {L_W + 8192 + n*1024}")
        a(f"s_mov_b32 {sr(sSO)}, {n*4096}")
        a(f"buffer_load_dwordx4 v11, {sr(R3,4)}, {sr(sSO)} offen {wpol} lds")
    a(f"v_lshrrev_b32 v12, 1, {vr(vG)}")
    a("v_lshlrev_b32 v12, 7, v12")
    a(f"v_lshl_add_u32 v12, {vr(vI)}, 3, v12")
    a(f"v_and_b32 v13, 1, {vr(vG)}")
    a("v_lshl_add_u32 v12, v13, 2, v12")
    a("v_and_b32 v13, 0xc0, v12")
    a("v_and_b32 v14, 63, v12")
    a("v_lshl_add_u32 v13, v13, 1, v14")
    a(f"s_lshl_b32 {sr(sT2)}, {sr(sW4)}, 9")
    a(f"buffer_load_dword v40, v13, {sr(R0,4)}, {sr(sT2)} offen")
    a(f"buffer_load_dword v41, v13, {sr(R0,4)}, {sr(sT2)} offen offset:64")
    a("v_lshlrev_b32 v12, 1, v12")
    a(f"v_add_u32 v12, {sr(sT2)}, v12")
    a(f"v_add_u32 v46, {L_HN}, v12")
    srd(R1, sB1, sT1, 64)
    a(f"v_lshrrev_b32 v13, 1, {vr(vG)}")
    a(f"v_lshl_add_u32 v13, v13, 4, {vr(vI)}")
    a("v_lshlrev_b32 v13, 1, v13")
    a(f"buffer_load_ushort v44, v13, {sr(R1,4)}, 0 offen")
    a(f"v_and_b32 v14, 1, {vr(vG)}")
    a("v_lshl_add_u32 v13, v14, 6, v13")
    a(f"s_lshl_b32 {sr(sT0)}, {sr(sW4)}, 7")
    a(f"s_add_u32 {sr(sT0)}, {sr(sT0)}, {L_RR}")
    a(f"v_add_u32 v47, {sr(sT0)}, v13")
    a(f"v_and_b32 v14, 1, {vr(vI)}")
    a("v_lshlrev_b32 v14, 6, v14")
    a(f"v_lshl_add_u32 v14, {vr(vG)}, 4, v14")
    a(f"v_add_u32 v48, {sr(sT0)}, v14")
    a(f"v_bfe_u32 v14, {vr(vI)}, 2, 1")
    a("v_lshlrev_b32 v14, 10, v14")
    a(f"v_lshl_add_u32 v14, {vr(vG)}, 4, v14")
    a(f"s_lshl_b32 {sr(sT0)}, {sr(sW4)}, 8")
    a(f"s_add_u32 {sr(sT0)}, {sr(sT0)}, {L_HN}")
    a(f"v_add_u32 v49, {sr(sT0)}, v14")
    a(f"v_add_u32 v50, {L_RED}, v8")
    a(f"s_lshl_b32 {sr(sT0)}, {sr(sW4)}, 2")
    a(f"v_add_u32 v51, {sr(sT0)}, v50")
    a(f"s_lshl_b32 {sr(sT0)}, {sr(sW4)}, 3")
    a(f"s_add_u32 {sr(sT0)}, {sr(sT0)}, {L_FS}")
    a(f"v_mov_b32 v52, {sr(sT0)}")
    a("v_xor_b32 v53, 8, v52")
    a(f"v_lshlrev_b32 v54, 11, {vr(vG)}")
    a(f"v_lshl_add_u32 v54, {vr(vI)}, 4, v54")
    a("v_add_u32 v55, 0x2000, v54")
    a(f"s_add_u32 {sr(sT2)}, {sr(sT2)}, {WS_A}")
    for k in range(4):
        a(f"v_and_b32 {vr(56+k)}, 0x3f803f80, {vr(vMASK+k)}")
    a("s_nop 1")
    for k in range(4):
        a(f"v_mov_b32_dpp {vr(60+k)}, {vr(56+k)} row_ror:8 {DPPF}")
    for k in range(64): a(f"v_mov_b32 {vr(vA1+k)}, 0")
    wait_counter("L_cntF", 12)
    a("s_waitcnt vmcnt(0)")
    a("v_and_b32 v42, 0xffff0000, v40")
    a("v_and_b32 v43, 0xffff0000, v41")
    a("v_lshlrev_b32 v40, 16, v40")
    a("v_lshlrev_b32 v41, 16, v41")
    a("v_lshlrev_b32 v44, 16, v44")
    a(f"v_bfe_u32 v10, {vr(vLANE)}, 2, 1")
    a("v_lshlrev_b32 v10, 5, v10")
    a(f"v_bfe_u32 v11, {vr(vLANE)}, 3, 1")
    a("v_add_u32 v10, v10, v11")
    a(f"v_lshl_add_u32 v10, {vr(vG)}, 2, v10")
    a("v_lshlrev_b32 v10, 6, v10")
    a(f"v_and_b32 v11, 3, {vr(vLANE)}")
    a("v_lshl_add_u32 v10, v11, 3, v10")
    a(f"v_add_u32 v10, {sr(sT3)}, v10")
    for s in range(4):
        for nu in range(2):
            for hf in range(2):
                row = (s >> 1) * 64 + (s & 1) * 16 + hf * 2
                a(f"ds_read_b64_tr_b16 {vr(vW1+8*s+4*nu+2*hf,2)}, v10 offset:{L_W + row*64 + nu*32}")
    a("s_waitcnt lgkmcnt(0)")
    a(f"v_bfe_u32 v10, {vr(vLANE)}, 2, 2")
    a(f"v_lshl_add_u32 v10, {vr(vG)}, 3, v10")
    a("v_lshlrev_b32 v10, 8, v10")
    a("v_lshl_add_u32 v10, v11, 3, v10")
    a(f"v_add_u32 v10, {sr(sT3)}, v10")
    for nu in range(8):
        for hf in range(2):
            a(f"ds_read_b64_tr_b16 {vr(vW2+4*nu+2*hf,2)}, v10 offset:{L_W + 8192 + hf*1024 + nu*32}")
        if nu == 3: a("s_waitcnt lgkmcnt(0)")
    a("s_waitcnt lgkmcnt(0)")
    a(f"s_lshl_b32 {sr(sT0)}, {sr(sRI)}, 12")
    a(f"s_lshl_b32 {sr(sT1)}, {sr(sW4)}, 10")
    a(f"s_add_u32 {sr(sT0)}, {sr(sT0)}, {sr(sT1)}")
    a(f"s_add_u32 {sr(sT0)}, {sr(sT0)}, {WS_Y}")
    a(f"s_mov_b32 {sr(sM0)}, 0x00ff00ff"); a(f"s_mov_b32 {sr(sM0+1)}, 0x00ff00ff")
    a(f"s_mov_b32 {sr(sM1)}, 0x00030003"); a(f"s_mov_b32 {sr(sM1+1)}, 0x00030003")
    stamp(5)
    a("s_barrier")
    stamp(6)
    poll("L_pollF", [f"buffer_load_dwordx4 {vr(12+8*ch+4*u,4)}, {vr(54+u)}, {sr(RWS,4)}, {sr(sT2)} offen offset:{ch*256} sc1" for ch in range(2) for u in range(2)], range(12, 28), 28)
    stamp(7)
    a("v_mfma_f32_16x16x32_bf16 v[28:31], v[56:59], v[12:15], 0")
    a("v_mfma_f32_16x16x32_bf16 v[28:31], v[56:59], v[16:19], v[28:31]")
    a("v_mfma_f32_16x16x32_bf16 v[28:31], v[60:63], v[20:23], v[28:31]")
    a("v_mfma_f32_16x16x32_bf16 v[28:31], v[60:63], v[24:27], v[28:31]")
    a("s_nop 7")
    def rnd4(base):
        a(f"v_cvt_pk_bf16_f32 {vr(base)}, {vr(base)}, {vr(base+1)}")
        a(f"v_cvt_pk_bf16_f32 {vr(base+2)}, {vr(base+2)}, {vr(base+3)}")
        a(f"v_and_b32 {vr(base+1)}, 0xffff0000, {vr(base)}")
        a(f"v_and_b32 {vr(base+3)}, 0xffff0000, {vr(base+2)}")
        a(f"v_lshlrev_b32 {vr(base)}, 16, {vr(base)}")
        a(f"v_lshlrev_b32 {vr(base+2)}, 16, {vr(base+2)}")
    rnd4(28)
    a("v_pk_add_f32 v[28:29], v[28:29], v[40:41]")
    a("v_pk_add_f32 v[30:31], v[30:31], v[42:43]")
    rnd4(28)
    a("v_pk_add_f32 v[32:33], v[28:29], v[30:31]")
    a("v_pk_mul_f32 v[34:35], v[28:29], v[28:29]")
    a("v_pk_fma_f32 v[34:35], v[30:31], v[30:31], v[34:35]")
    a("v_add_f32 v32, v32, v33")
    a("v_add_f32 v33, v34, v35")
    allred("v_add_f32", [32, 33], [34, 35])
    a("ds_write_b64 v52, v[32:33]")
    a("s_waitcnt lgkmcnt(0)")
    a("s_barrier")
    a("ds_read_b64 v[34:35], v53")
    a("s_waitcnt lgkmcnt(0)")
    a("v_pk_add_f32 v[32:33], v[32:33], v[34:35]")
    a("v_mul_f32 v32, 0x3b000000, v32")
    a("v_mul_f32 v33, 0x3b000000, v33")
    a("v_fma_f32 v33, -v32, v32, v33")
    a("v_max_f32 v33, 0, v33")
    ln_scale(32, 33)
    for k in range(4): a(f"v_sub_f32 {vr(28+k)}, {vr(28+k)}, v32")
    rnd4(28)
    for k in range(4): a(f"v_mul_f32 {vr(28+k)}, {vr(28+k)}, v33")
    a("v_cvt_pk_bf16_f32 v28, v28, v29")
    a("v_cvt_pk_bf16_f32 v29, v30, v31")
    a("ds_write_b64 v46, v[28:29]")
    a("s_waitcnt lgkmcnt(0)")
    a("s_barrier")
    stamp(8)
    a(f"s_mov_b64 exec, {sr(sM0,2)}")
    for s in range(4): a(f"ds_read_b128 {vr(vA1+4*s,4)}, v49 offset:{s*64}")
    a(f"s_not_b64 exec, {sr(sM0,2)}")
    for s in range(4): a(f"ds_read_b128 {vr(vA1+16+4*s,4)}, v49 offset:{s*64}")
    a("s_mov_b64 exec, -1")
    for nu in range(2):
        for s in range(4):
            n = nu*4 + s
            a(f"s_waitcnt lgkmcnt({7-n})")
            src2 = "0" if n == 0 else "v[28:31]"
            a(f"v_mfma_f32_16x16x32_bf16 v[28:31], {vr(vA1+16*nu+4*s,4)}, {vr(vW1+8*s+4*nu,4)}, {src2}")
    a("s_nop 7")
    a("ds_write_b32 v51, v28")
    a("s_waitcnt lgkmcnt(0)")
    a("s_barrier")
    a("ds_read_b128 v[28:31], v50")
    a("s_waitcnt lgkmcnt(0)")
    a("v_pk_add_f32 v[28:29], v[28:29], v[30:31]")
    a("v_add_f32 v28, v28, v29")
    rnd(28, 28)
    a("v_add_f32 v28, v28, v44")
    rnd(28, 28)
    a("v_max_f32 v28, 0, v28")
    a("v_mul_f32 v28, v28, v28")
    a("v_cvt_pk_bf16_f32 v28, v28, v28")
    a("ds_write_b16 v47, v28")
    for nu in range(8):
        a(f"s_lshl_b64 exec, {sr(sM1,2)}, {2*nu}")
        a(f"ds_read_b128 {vr(vA2+4*nu,4)}, v48")
    a("s_mov_b64 exec, -1")
    for nu in range(8):
        a(f"s_waitcnt lgkmcnt({7-nu})")
        src2 = "0" if nu == 0 else "v[28:31]"
        a(f"v_mfma_f32_16x16x32_bf16 v[28:31], {vr(vW2+4*nu,4)}, {vr(vA2+4*nu,4)}, {src2}")
    a("s_nop 7")
    a(f"buffer_store_dwordx4 v[28:31], v8, {sr(RWS,4)}, {sr(sT0)} offen sc1")
    stamp(9)
    a("s_branch L_fin")

    g.lab("L_roleR")
    a(f"s_lshr_b32 {sr(sT0)}, {sr(sRI)}, 3")
    a(f"s_lshl_b32 {sr(sT0)}, {sr(sT0)}, 7")
    a(f"s_and_b32 {sr(sT1)}, {sr(sRI)}, 1")
    a(f"s_lshl_b32 {sr(sT1)}, {sr(sT1)}, 6")
    a(f"s_add_u32 {sr(sT0)}, {sr(sT0)}, {sr(sT1)}")
    a(f"s_bfe_u32 {sr(sT1)}, {sr(sRI)}, 0x20001")
    a(f"s_lshl_b32 {sr(sT1)}, {sr(sT1)}, 2")
    a(f"v_bfe_u32 v9, {vr(vLANE)}, 1, 2")
    a("v_lshlrev_b32 v9, 4, v9")
    a(f"v_add_u32 v9, {sr(sT1)}, v9")
    a(f"v_and_b32 v10, 1, {vr(vLANE)}")
    a(f"v_bfe_u32 v11, {vr(vLANE)}, 5, 1")
    a(f"v_bfe_u32 v12, {vr(vLANE)}, 4, 1")
    a("v_lshl_add_u32 v11, v12, 1, v11")
    a("v_add_u32 v11, v11, v9")
    a(f"v_add_u32 v11, {sr(sT0)}, v11")
    a("v_lshlrev_b32 v11, 1, v11")
    a("v_lshl_add_u32 v44, v10, 10, v11")
    srd(R1, sB2, None, 1024)
    srd(R2, sOUT, None, 2048)
    a(f"buffer_load_ushort v40, v44, {sr(R0,4)}, 0 offen")
    a(f"buffer_load_ushort v41, v11, {sr(R1,4)}, 0 offen")
    a(f"v_lshrrev_b32 v12, 3, {vr(vLANE)}")
    a("v_lshl_add_u32 v13, v12, 1, v10")
    a("v_lshlrev_b32 v13, 10, v13")
    a("v_and_b32 v14, 31, v9")
    a("v_lshl_add_u32 v45, v14, 2, v13")
    a("v_lshrrev_b32 v14, 5, v9")
    a("v_lshlrev_b32 v14, 4, v14")
    a("v_sub_u32 v46, 16, v14")
    a(f"s_lshl_b32 {sr(sT0)}, {sr(sT0)}, 1")
    a(f"s_add_u32 {sr(sT0)}, {sr(sT0)}, {WS_A}")
    a("v_lshlrev_b32 v12, 12, v12")
    a(f"v_and_b32 v14, 7, {vr(vLANE)}")
    a("v_lshl_add_u32 v48, v14, 4, v12")
    for u in range(1, 6): a(f"v_add_u32 {vr(48+u)}, {u*0x8000}, v48")
    a(f"s_lshl_b32 {sr(sT1)}, {sr(sRI)}, 7")
    a(f"s_add_u32 {sr(sT1)}, {sr(sT1)}, {WS_Y}")
    srd(R3, sWS, sT1, 42*4096 + 128)
    wait_counter("L_cntR", 12)
    a("s_waitcnt vmcnt(0)")
    a("v_lshlrev_b32 v40, 16, v40")
    a("v_lshlrev_b32 v41, 16, v41")
    stamp(5)
    a("s_barrier")
    stamp(6)
    def red8(b):
        a("s_nop 1")
        a(f"v_permlane32_swap_b32 {vr(b)}, {vr(b+1)}")
        a(f"v_permlane32_swap_b32 {vr(b+2)}, {vr(b+3)}")
        a(f"v_add_f32 {vr(b)}, {vr(b)}, {vr(b+1)}")
        a(f"v_add_f32 {vr(b+2)}, {vr(b+2)}, {vr(b+3)}")
        a("s_nop 1")
        a(f"v_permlane16_swap_b32 {vr(b)}, {vr(b+2)}")
        a("s_nop 0")
        a(f"v_add_f32 {vr(b)}, {vr(b)}, {vr(b+2)}")
        a("s_nop 1")
        a(f"v_add_f32_dpp {vr(b)}, {vr(b)}, {vr(b)} row_ror:8 {DPPF}")
    poll("L_pollRa", [f"buffer_load_dwordx4 v[12:15], v45, {sr(RWS,4)}, {sr(sT0)} offen sc1"], range(12, 16), 16)
    stamp(7)
    for k in range(4):
        a(f"v_lshlrev_b32 {vr(12+k)}, v46, {vr(12+k)}")
        a(f"v_and_b32 {vr(12+k)}, 0xffff0000, {vr(12+k)}")
    red8(12)
    rnd(12, 12)
    a("v_add_f32 v40, v40, v12")
    rnd(40, 40)
    poll("L_pollRy", [f"buffer_load_dwordx4 {vr(12+4*u,4)}, {vr(48+u)}, {sr(R3,4)}, 0 offen sc1" for u in range(6)], range(12, 36), 36)
    stamp(8)
    for (d, s_) in ((12, 16), (20, 24), (28, 32), (12, 20), (12, 28)):
        a(f"v_pk_add_f32 {vr(d,2)}, {vr(d,2)}, {vr(s_,2)}")
        a(f"v_pk_add_f32 {vr(d+2,2)}, {vr(d+2,2)}, {vr(s_+2,2)}")
    red8(12)
    rnd(12, 12)
    a("v_add_f32 v12, v12, v41")
    rnd(12, 12)
    a("v_add_f32 v12, v12, v40")
    a("v_cvt_pk_bf16_f32 v12, v12, v12")
    a("s_mov_b32 exec_lo, 0x00ff00ff")
    a("s_mov_b32 exec_hi, 0x00ff00ff")
    a(f"buffer_store_short v12, v44, {sr(R2,4)}, 0 offen")
    stamp(9)

    g.lab("L_fin")
    if prof:
        a("s_mov_b64 exec, -1")
        a("s_waitcnt vmcnt(0)")
        a(f"s_memrealtime {sr(sST+20,2)}")
        a(f"s_getreg_b32 {sr(sST+22)}, hwreg(HW_REG_XCC_ID, 0, 4)")
        a("s_waitcnt lgkmcnt(0)")
        a(f"s_lshl_b32 {sr(sT0)}, s2, 3")
        a(f"s_add_u32 {sr(sT0)}, {sr(sT0)}, {sr(sWAVE)}")
        a(f"s_mul_i32 {sr(sT0)}, {sr(sT0)}, 96")
        a(f"s_add_u32 {sr(sT0)}, {sr(sT0)}, {STAMP_OFF}")
        a(f"s_add_u32 {sr(sWS)}, {sr(sWS)}, {sr(sT0)}"); a(f"s_addc_u32 {sr(sWS+1)}, {sr(sWS+1)}, 0")
        a("s_mov_b64 exec, 1")
        a("v_mov_b32 v8, 0")
        for i in range(6):
            for k in range(4): a(f"v_mov_b32 {vr(12+k)}, {sr(sST+4*i+k)}")
            a(f"global_store_dwordx4 v8, v[12:15], {sr(sWS,2)} offset:{16*i}")
            a("s_waitcnt vmcnt(0)")
    g.lab("L_end")
    a("s_endpgm")

    nv = 192
    out = [HEADER.rstrip("\n"),
           f"; @launch grid=(256,1,1) block=(512,1,1) lds={L_END}",
           '.amdgcn_target "amdgcn-amd-amdhsa--gfx950"', ".text", f".globl {NAME}_kernel", ".p2align 8",
           f".type {NAME}_kernel,@function", f"{NAME}_kernel:"]
    out += g.L
    out += ['.section .rodata,"a"', ".p2align 6", f".amdhsa_kernel {NAME}_kernel",
            f"  .amdhsa_next_free_vgpr {nv}", "  .amdhsa_next_free_sgpr 100", f"  .amdhsa_accum_offset {nv}",
            "  .amdhsa_group_segment_fixed_size 0", "  .amdhsa_kernarg_size 104",
            "  .amdhsa_user_sgpr_count 2", "  .amdhsa_user_sgpr_kernarg_segment_ptr 1",
            "  .amdhsa_system_sgpr_workgroup_id_x 1", "  .amdhsa_float_denorm_mode_32 3",
            ".end_amdhsa_kernel"]
    return "\n".join(out) + "\n"

if __name__ == "__main__":
    kw = eval("dict(" + (sys.argv[2] if len(sys.argv) > 2 else "") + ")")
    open(sys.argv[1], "w").write(gen(**kw))
```

```python
import struct, sys
NAME = "sequential_preLN__mha_block_cached__dense_activation_squared_relu__decode"

def f2u(x): return struct.unpack("<I", struct.pack("<f", x))[0]
LOG2E = f2u(1.4426950408889634)
SCALE = f2u(128 ** -0.5)
EPS = f2u(1e-5)
NF = 22

WS_P = 0
WS_A = 0x20000
WS_Y = 0x30000
WS_IN = 0x100000
WS_END = 0x200000
STAMP_OFF = 128 << 20

W2P = 1056
L_W = 0
L_W2 = 0x10000
L_Q = L_W2 + 64 * W2P
L_O = L_Q + 256
L_ST = L_O + 2048
L_CNT = L_ST + 32
L_RED = L_CNT + 32
L_HN = L_RED + 4096
L_RR = L_HN + 2048
L_FS = L_RR + 256
L_END = L_FS + 64
SPIN_MAX = 400000

HEADER = open("cdna_kernels/" + NAME + ".s.ref").read().split("; Override launch")[0]

class G:
    def __init__(s): s.L = []
    def __call__(s, x): s.L.append("  " + x)
    def lab(s, x): s.L.append(x + ":")

def gen(kvpol="nt", wqpol="nt", wopol="nt", w1pol="", w2pol="nt", prof=False, D=5, DH=7, ramp=(3, 3, 3, 3), N0=32, budget=40, XF=0,
        WO=3, WF=7, QTRY=24, dry=True, local=True, NSTAT=92, null=False, forcefb=False,
        patN=0, patO=0, patX=0, patF=0, patXO=0, hprio=0, ldelay=0, dbg='', rotO=0, rot1=0, rot2=0, pf=1, pfpol='', B0N=0, qb0=1, pfwait=0):
    g = G()
    a = g
    def vr(r, n=1): return f"v{r}" if n == 1 else f"v[{r}:{r+n-1}]"
    def sr(r, n=1): return f"s{r}" if n == 1 else f"s[{r}:{r+n-1}]"
    DPPF = "row_mask:0xf bank_mask:0xf"
    sX, sK, sV, sWQ, sWO, sBX, sW1, sB1 = 4, 6, 8, 10, 12, 14, 16, 18
    sW2, sB2, sOUT, sDBG, sWS = 20, 22, 24, 26, 28
    sWAVE, sH, sB, sJ, sSUB, sW4 = 30, 31, 32, 33, 34, 35
    sT0, sT1, sT2, sT3 = 36, 37, 38, 39
    R0, R1, R2, R3, RWS = 40, 44, 48, 52, 56
    sSO, sSPIN, sSLOT, sXCC = 60, 61, 62, 63
    sM0 = 64
    sC0, sC1 = 66, 67
    sCLS, sY, sLOC, sDRY = 68, 69, 70, 71
    sST = 72
    sU0, sU1, sU2, sROLE = 96, 97, 98, 99
    usepat = any((patN, patO, patX, patF, patXO))
    def stamp(i):
        if prof: a(f"s_memrealtime {sr(sST+2*i,2)}")
    def srd(R, base, off_sgpr, nrec):
        if off_sgpr is None:
            a(f"s_mov_b32 {sr(R)}, {sr(base)}"); a(f"s_mov_b32 {sr(R+1)}, {sr(base+1)}")
        else:
            a(f"s_add_u32 {sr(R)}, {sr(base)}, {sr(off_sgpr)}"); a(f"s_addc_u32 {sr(R+1)}, {sr(base+1)}, 0")
        a(f"s_mov_b32 {sr(R+2)}, {nrec}"); a(f"s_mov_b32 {sr(R+3)}, 0x20000")
    def rnd(dst, src):
        a(f"v_cvt_pk_bf16_f32 {vr(dst)}, {vr(src)}, {vr(src)}")
        a(f"v_lshlrev_b32 {vr(dst)}, 16, {vr(dst)}")
    def allred(op, regs, tmps, quad=True, s32=True):
        steps = (["quad_perm:[1,0,3,2]", "quad_perm:[2,3,0,1]"] if quad else []) + ["row_ror:4", "row_ror:8"]
        pad = max(0, 2 - (len(regs) - 1))
        for st in steps:
            if pad: a(f"s_nop {pad-1}")
            for r in regs: a(f"{op}_dpp {vr(r)}, {vr(r)}, {vr(r)} {st} {DPPF}")
        for sw in ("v_permlane16_swap_b32", "v_permlane32_swap_b32")[:2 if s32 else 1]:
            for r, t in zip(regs, tmps): a(f"v_mov_b32 {vr(t)}, {vr(r)}")
            a(f"s_nop {1 if len(regs) == 1 else 0}")
            for r, t in zip(regs, tmps): a(f"{sw} {vr(r)}, {vr(t)}")
            for r, t in zip(regs, tmps): a(f"{op} {vr(r)}, {vr(r)}, {vr(t)}")
    def sent_ops(regs, tmp):
        rs = list(regs); o = []
        o.append(f"v_max3_u32 {vr(tmp)}, {vr(rs[0])}, {vr(rs[1])}, {vr(rs[2])}"); rs = rs[3:]
        while len(rs) >= 2:
            o.append(f"v_max3_u32 {vr(tmp)}, {vr(tmp)}, {vr(rs[0])}, {vr(rs[1])}"); rs = rs[2:]
        if rs: o.append(f"v_max_u32 {vr(tmp)}, {vr(tmp)}, {vr(rs[0])}")
        o.append(f"v_cmp_eq_u32 vcc, -1, {vr(tmp)}")
        return o
    def poll(label, loads, regs, tmp, spin=None, fail=None, pre=(), spec=(), post=(), sleep=0):
        a(f"s_mov_b32 {sr(sSPIN)}, {SPIN_MAX if spin is None else spin}")
        a(f"s_branch {label}")
        g.lab(label + "_r")
        a(f"s_sub_u32 {sr(sSPIN)}, {sr(sSPIN)}, 1")
        a(f"s_cbranch_scc1 {fail or label + '_x'}")
        if sleep: a(f"s_sleep {sleep}")
        a("s_mov_b64 exec, vcc")
        g.lab(label)
        for l in loads: a(l)
        a("s_mov_b64 exec, -1")
        for l in pre: a(l)
        a("s_waitcnt vmcnt(0)")
        chk = sent_ops(regs, tmp); spec = list(spec)
        per = -(-len(chk) // max(1, len(spec)))
        while chk or spec:
            if spec: a(spec.pop(0))
            for _ in range(per if True else 0):
                if chk: a(chk.pop(0))
        for l in post: a(l)
        a(f"s_cbranch_vccnz {label}_r")
        g.lab(label + "_x")
    def wait_flags(label, v):
        a(f"s_mov_b32 {sr(sSPIN)}, {SPIN_MAX}")
        a(f"v_lshrrev_b32 {vr(v+1)}, 1, {vr(vI)}")
        a(f"v_lshlrev_b32 {vr(v+1)}, 5, {vr(v+1)}")
        a(f"v_and_b32 {vr(v+2)}, 1, {vr(vI)}")
        a(f"v_lshl_add_u32 {vr(v+1)}, {vr(v+2)}, 2, {vr(v+1)}")
        a(f"s_mov_b32 {sr(sT0)}, 0x80808080")
        g.lab(label)
        a(f"global_load_dword {vr(v)}, {vr(v+1)}, {sr(sDBG,2)} sc1")
        a("s_waitcnt vmcnt(0)")
        a(f"v_and_b32 {vr(v+2)}, {sr(sT0)}, {vr(v)}")
        a(f"v_cmp_ne_u32 vcc, {sr(sT0)}, {vr(v+2)}")
        a(f"s_cbranch_vccz {label}_x")
        a("s_sleep 16")
        a(f"s_sub_u32 {sr(sSPIN)}, {sr(sSPIN)}, 4")
        a(f"s_cbranch_scc0 {label}")
        g.lab(label + "_x")
        a(f"s_mul_i32 {sr(sT1)}, {sr(sXCC)}, 0x01010101")
        a(f"s_or_b32 {sr(sT1)}, {sr(sT1)}, {sr(sT0)}")
        a(f"v_cmp_eq_u32 vcc, {sr(sT1)}, {vr(v)}")
        a(f"s_lshl_b32 {sr(sT0)}, {sr(sCLS)}, 1")
        a(f"s_lshr_b32 {sr(sLOC)}, vcc_lo, {sr(sT0)}")
        a(f"s_and_b32 {sr(sLOC)}, {sr(sLOC)}, 3")
    def lds_spin(label, vaddr, off, vt, want, sleep=0):
        g.lab(label)
        a(f"ds_read_b32 {vr(vt)}, {vr(vaddr)} offset:{off}")
        if sleep: a(f"s_sleep {sleep}")
        a("s_waitcnt lgkmcnt(0)")
        a(f"v_cmp_ne_u32 vcc, {want}, {vr(vt)}")
        a(f"s_cbranch_vccnz {label}")
    LOCV = 3 if local else 99

    vLANE, vI, vG = 1, 2, 3
    vMASK = 4
    vCNT = 26
    a(f"s_cmp_ge_u32 s2, {0 if null else 0x100}")
    a("s_cbranch_scc1 L_end")
    a(f"s_load_dwordx16 {sr(4,16)}, s[0:1], 0")
    a(f"s_load_dwordx8 {sr(20,8)}, s[0:1], 64")
    a(f"s_load_dwordx2 {sr(28,2)}, s[0:1], 96")
    if prof:
        for i in range(12): a(f"s_mov_b64 {sr(sST+2*i,2)}, 0")
    stamp(0)
    a(f"v_lshrrev_b32 {vr(vI)}, 6, v0")
    a(f"v_and_b32 {vr(vLANE)}, 63, v0")
    a(f"s_and_b32 {sr(sH)}, s2, 31")
    a(f"v_readfirstlane_b32 {sr(sWAVE)}, {vr(vI)}")
    a(f"s_lshr_b32 {sr(sSUB)}, s2, 5")
    a(f"s_lshr_b32 {sr(sB)}, s2, 7")
    a(f"s_and_b32 {sr(sJ)}, {sr(sSUB)}, 3")
    a(f"s_and_b32 {sr(sCLS)}, s2, 7")
    a(f"s_lshr_b32 {sr(sY)}, s2, 3")
    a(f"s_getreg_b32 {sr(sXCC)}, hwreg(HW_REG_XCC_ID, 0, 3)")
    a(f"v_and_b32 {vr(vI)}, 15, {vr(vLANE)}")
    a(f"v_lshrrev_b32 {vr(vG)}, 4, {vr(vLANE)}")
    a(f"v_lshlrev_b32 v8, 4, {vr(vLANE)}")
    a(f"v_mov_b32 {vr(vCNT)}, {L_CNT}")
    a(f"s_and_b32 {sr(sW4)}, {sr(sWAVE)}, 3")
    a(f"s_lshl_b32 {sr(sSLOT)}, {sr(sH)}, 3")
    a(f"s_add_u32 {sr(sSLOT)}, {sr(sSLOT)}, {sr(sSUB)}")
    a(f"s_lshl_b32 {sr(sSLOT)}, {sr(sSLOT)}, 9")
    a(f"s_cmp_lt_u32 {sr(sY)}, {8+NF}")
    a(f"s_cselect_b32 {sr(sROLE)}, 2, 0")
    a(f"s_cmp_eq_u32 {sr(sCLS)}, {XF}")
    a(f"s_cselect_b32 {sr(sROLE)}, {sr(sROLE)}, 0")
    a(f"s_cmp_lt_u32 {sr(sY)}, 8")
    a(f"s_cselect_b32 {sr(sROLE)}, 1, {sr(sROLE)}")
    a(f"s_cmp_ge_u32 {sr(sWAVE)}, 4")
    a("s_cbranch_scc1 L_helper")

    def make_masks(both):
        a(f"v_and_b32 v10, 1, {vr(vI)}")
        a("v_lshlrev_b32 v10, 4, v10")
        a("v_mov_b32 v9, 0xffff")
        a("v_lshlrev_b32 v10, v10, v9")
        if both: a(f"v_bfe_u32 v9, {vr(vI)}, 1, 2")
        else: a(f"v_lshrrev_b32 v9, 1, {vr(vI)}")
        for r in range(4):
            a(f"v_cmp_eq_u32 vcc, {r}, v9")
            a("s_nop 1")
            a(f"v_cndmask_b32 {vr(vMASK+r)}, 0, v10, vcc")

    vOFF = 8
    vQ, vP, vU = 12, 16, 20
    vMX, vL, vT = 22, 23, 24
    vACC, vA, vF, vS, vRING = 28, 32, 40, 48, 64
    NR = 32
    sPAT = sU0
    a(f"s_lshl_b32 {sr(sT0)}, {sr(sB)}, 5")
    a(f"s_add_u32 {sr(sT0)}, {sr(sT0)}, {sr(sH)}")
    a(f"s_lshl_b32 {sr(sT0)}, {sr(sT0)}, 20")
    a(f"s_lshl_b32 {sr(sT1)}, {sr(sJ)}, 14")
    a(f"s_add_u32 {sr(sT0)}, {sr(sT0)}, {sr(sT1)}")
    a(f"s_lshl_b32 {sr(sT1)}, {sr(sW4)}, 12")
    a(f"s_add_u32 {sr(sT0)}, {sr(sT0)}, {sr(sT1)}")
    a(f"s_mov_b32 {sr(R0+2)}, {15*65536 + 4096}"); a(f"s_mov_b32 {sr(R0+3)}, 0x20000")
    a(f"s_mov_b32 {sr(sSO)}, 0")
    a("s_waitcnt lgkmcnt(0)")
    a(f"s_add_u32 {sr(R0)}, {sr(sK)}, {sr(sT0)}"); a(f"s_addc_u32 {sr(R0+1)}, {sr(sK+1)}, 0")
    stamp(1)
    ops = []
    landed = [-1]
    def wait_vm(n):
        a(f"s_waitcnt vmcnt({n})")
        landed[0] = max(landed[0], len(ops) - 1 - n)
    def slot(n): return vRING + (n % NR) * 4
    done = set()
    def issue(n):
        assert n < NR or (n - NR) in done, n
        R = R0 if n < 64 else R1
        t, r = (n % 64) >> 2, n & 3
        if r == 0 and n > 0: a(f"s_mov_b32 {sr(sSO)}, {t * 65536}")
        if n < len(ramp) or not usepat:
            d = ramp[n] if n < len(ramp) else D
            if len(ops) >= d: wait_vm(d - 1)
        else:
            a(f"s_bitcmp1_b32 {sr(sPAT)}, {n & 31}")
            wait_vm(DH - 1)
            a(f"s_cbranch_scc1 L_w{n}")
            a(f"s_waitcnt vmcnt({D-1})")
            g.lab(f"L_w{n}")
        a(f"buffer_load_dwordx4 {vr(slot(n),4)}, {vr(vOFF)}, {sr(R,4)}, {sr(sSO)} offen offset:{r*1024} {kvpol}")
        ops.append(('ld', n))
    def has(key): return key in ops and ops.index(key) <= landed[0]
    chunks = []
    def k_item(n):
        def f():
            r = n & 3
            for k in range(4):
                a(f"v_dot2_f32_bf16 {vr(vP+r)}, {vr(slot(n)+k)}, {vr(vQ+k)}, {'0' if k == 0 else vr(vP+r)}")
        chunks.append((('ld', n), 5, f, n))
    def k_block(t):
        def f():
            s = vS + t
            a(f"v_add_f32_dpp {vr(vU)}, {vr(vP)}, {vr(vP)} row_ror:8 row_mask:0xf bank_mask:0x3")
            a(f"v_add_f32_dpp {vr(vU+1)}, {vr(vP+1)}, {vr(vP+1)} row_ror:8 row_mask:0xf bank_mask:0x3")
            a(f"v_add_f32_dpp {vr(vU)}, {vr(vP+2)}, {vr(vP+2)} row_ror:8 row_mask:0xf bank_mask:0xc")
            a(f"v_add_f32_dpp {vr(vU+1)}, {vr(vP+3)}, {vr(vP+3)} row_ror:8 row_mask:0xf bank_mask:0xc")
            a("s_nop 0")
            a(f"v_add_f32_dpp {vr(s)}, {vr(vU)}, {vr(vU)} row_shl:4 row_mask:0xf bank_mask:0x5")
            a(f"v_add_f32_dpp {vr(s)}, {vr(vU+1)}, {vr(vU+1)} row_shr:4 row_mask:0xf bank_mask:0xa")
            a("s_nop 1")
            a(f"v_add_f32_dpp {vr(s)}, {vr(s)}, {vr(s)} quad_perm:[1,0,3,2] {DPPF}")
            a("s_nop 1")
            a(f"v_add_f32_dpp {vr(s)}, {vr(s)}, {vr(s)} quad_perm:[2,3,0,1] {DPPF}")
            rnd(s, s)
            a(f"v_mul_f32 {vr(s)}, {sr(sC1)}, {vr(s)}")
            rnd(s, s)
            a(f"v_max_f32 {vr(vMX)}, {vr(vMX)}, {vr(s)}")
        chunks.append((None, 19, f, None))
    def v_item(n):
        def f():
            m = n - 64
            t, r = m >> 2, m & 3
            A = vA + 4 * (m & 1)
            for k in range(4):
                a(f"v_and_b32_dpp {vr(A+k)}, {vr(vS+t)}, {vr(vMASK+k)} row_newbcast:{4*r} {DPPF}")
            if has(('ld', n)):
                a("s_nop 1")
            else:
                a("s_nop 0")
                wait_vm(len(ops) - 1 - ops.index(('ld', n)))
            a(f"v_mfma_f32_16x16x32_bf16 {vr(vACC,4)}, {vr(A,4)}, {vr(slot(n),4)}, {'0' if m == 0 else vr(vACC,4)}")
        chunks.append((('ld', n), 8, f, n))
    for t in range(16):
        for r in range(4): k_item(4*t + r)
        k_block(t)
    def c_max():
        stamp(3)
        allred("v_max_f32", [vMX], [vT], quad=False)
        a(f"v_mul_f32 {vr(vMX)}, {sr(sC0)}, {vr(vMX)}")
        a(f"v_mov_b32 {vr(vL)}, 0")
    chunks.append((None, 24, c_max, None))
    for t0 in range(0, 16, 4):
        def f(t0=t0):
            rs = [vS + t for t in range(t0, t0 + 4)]
            for s in rs: a(f"v_fma_f32 {vr(s)}, {vr(s)}, {sr(sC0)}, -{vr(vMX)}")
            for s in rs: a(f"v_exp_f32 {vr(s)}, {vr(s)}")
            for s in rs:
                a(f"v_add_f32 {vr(vL)}, {vr(vL)}, {vr(s)}")
                a(f"v_cvt_pk_bf16_f32 {vr(s)}, {vr(s)}, {vr(s)}")
        chunks.append((None, 20, f, None))
    def c_sum():
        allred("v_add_f32", [vL], [vT], quad=False)
        a(f"s_lshl_b32 {sr(sT0)}, {sr(sW4)}, 3")
        a(f"s_add_u32 {sr(sT0)}, {sr(sT0)}, {L_ST}")
        a(f"v_mov_b32 {vr(vT)}, {sr(sT0)}")
        a("v_mov_b32 v27, 1")
        a("s_mov_b64 exec, 1")
        a(f"ds_write_b64 {vr(vT)}, {vr(vMX,2)}")
        a(f"ds_add_u32 {vr(vCNT)}, v27 offset:4")
        a("s_mov_b64 exec, -1")
    chunks.append((None, 30, c_sum, None))
    for n in range(64, 128): v_item(n)
    def x_cls_load():
        a(f"s_lshl_b32 {sr(sT0)}, {sr(sCLS)}, 5")
        a(f"v_mov_b32 v46, {sr(sT0)}")
        a("s_mov_b64 exec, 1")
        a(f"global_load_dwordx2 v[44:45], v46, {sr(sDBG,2)} sc1")
        a("s_mov_b64 exec, -1")
        ops.append(('x', 'cls'))
    def x_stats():
        assert has(('x', 'cls')) and ci[0] > 16*5 + 6
        a(f"s_mov_b32 {sr(sSPIN)}, {SPIN_MAX}")
        g.lab("L_cchk")
        a(f"v_readfirstlane_b32 {sr(sT2)}, v44")
        a(f"v_readfirstlane_b32 {sr(sT3)}, v45")
        a(f"s_and_b32 {sr(sT0)}, {sr(sT2)}, {sr(sT3)}")
        a(f"s_and_b32 {sr(sT0)}, {sr(sT0)}, 0x80808080")
        a(f"s_cmp_eq_u32 {sr(sT0)}, 0x80808080")
        if 'noflag' not in dbg: a("s_cbranch_scc0 L_cwait")
        g.lab("L_sspin")
        a(f"ds_read_b32 v20, {vr(vCNT)} offset:4")
        a(f"v_mov_b32 {vr(vT)}, {L_ST}")
        a(f"ds_read_b128 v[12:15], {vr(vT)}")
        a(f"ds_read_b128 v[16:19], {vr(vT)} offset:16")
        a(f"s_mul_i32 {sr(sT0)}, {sr(sXCC)}, 0x01010101")
        a(f"s_or_b32 {sr(sT0)}, {sr(sT0)}, 0x80808080")
        a(f"s_mov_b32 {sr(sT1)}, {sr(sT0)}")
        a(f"s_cmp_eq_u64 {sr(sT0,2)}, {sr(sT2,2)}")
        a(f"s_cselect_b32 {sr(sLOC)}, 3, 0")
        a("s_waitcnt lgkmcnt(0)")
        a("v_cmp_ne_u32 vcc, 4, v20")
        a("s_cbranch_vccnz L_sspin")
        a("v_max3_f32 v20, v12, v14, v16")
        a("v_max_f32 v20, v20, v18")
        for w in range(4): a(f"v_sub_f32 {vr(vF+w)}, {vr(12+2*w)}, v20")
        for w in range(4): a(f"v_exp_f32 {vr(vF+w)}, {vr(vF+w)}")
        a(f"s_lshl_b32 {sr(sT0)}, {sr(sW4)}, 24")
        a(f"v_mul_f32 v21, {vr(vF)}, v13")
        for w in range(1, 4): a(f"v_fmac_f32 v21, {vr(vF+w)}, {vr(13+2*w)}")
        a(f"v_mov_b32 v12, {sr(sT0)}")
        a("v_rcp_f32 v13, v21")
        a("s_mov_b64 exec, 1")
        a(f"s_cmp_eq_u32 {sr(sLOC)}, {LOCV}")
        a("s_cbranch_scc1 L_st_loc")
        a(f"buffer_store_dwordx2 v[20:21], v12, {sr(RWS,4)}, {sr(sSLOT)} offen offset:256 sc1")
        a("s_branch L_st_done")
        g.lab("L_st_loc")
        a(f"buffer_store_dwordx2 v[20:21], v12, {sr(RWS,4)}, {sr(sSLOT)} offen offset:256")
        g.lab("L_st_done")
        ops.append(('x', 'st'))
        a("s_mov_b64 exec, -1")
        for w in range(4): a(f"v_mul_f32 {vr(vF+w)}, {vr(vF+w)}, v13")
        stamp(4)
    def x_addr():
        a(f"v_lshlrev_b32 v9, 5, {vr(vI)}")
        a(f"v_lshl_add_u32 v9, {vr(vG)}, 4, v9")
        a("v_lshrrev_b32 v11, 1, v9")
        a(f"v_add_u32 v9, {L_O}, v9")
        a(f"s_lshl_b32 {sr(sT0)}, {sr(sW4)}, 9")
        a(f"v_add_u32 v10, {sr(sT0)}, v9")
    extra = {NSTAT - max(D, DH) - 2: x_cls_load, NSTAT: x_stats, NSTAT + 1: x_addr}
    ci = [0]
    def run_chunks(bud, force=False):
        while ci[0] < len(chunks):
            needs, cost, fn, frees = chunks[ci[0]]
            if not force:
                if needs is not None and not has(needs): break
                if cost > bud: break
            fn(); bud -= cost; ci[0] += 1
            if frees is not None: done.add(frees)
    for n in range(N0):
        if n == B0N: a("s_barrier")
        issue(n)
        if n == 2:
            a(f"s_add_u32 {sr(R1)}, {sr(sV)}, {sr(sT0)}"); a(f"s_addc_u32 {sr(R1+1)}, {sr(sV+1)}, 0")
            a(f"s_mov_b32 {sr(R1+2)}, {15*65536 + 4096}"); a(f"s_mov_b32 {sr(R1+3)}, 0x20000")
            srd(RWS, sWS, None, WS_END)
            a(f"s_mov_b32 {sr(sC0)}, {LOG2E:#x}")
            a(f"s_mov_b32 {sr(sC1)}, {SCALE:#x}")
            if usepat:
                a(f"s_mov_b32 {sr(sT1)}, {patXO:#x}"); a(f"s_mov_b32 {sr(sT2)}, {patX:#x}")
                a(f"s_cmp_eq_u32 {sr(sCLS)}, {XF}")
                a(f"s_cselect_b32 {sr(sT1)}, {sr(sT1)}, {patO:#x}")
                a(f"s_cselect_b32 {sr(sT2)}, {sr(sT2)}, {patN:#x}")
                a(f"s_cmp_eq_u32 {sr(sROLE)}, 1")
                a(f"s_cselect_b32 {sr(sPAT)}, {sr(sT1)}, {sr(sT2)}")
                a(f"s_cmp_eq_u32 {sr(sROLE)}, 2")
                a(f"s_cselect_b32 {sr(sPAT)}, {patF:#x}, {sr(sPAT)}")
            make_masks(False)
            a(f"v_lshlrev_b32 v9, 4, {vr(vI)}")
            a(f"v_add_u32 v9, {L_Q}, v9")
            a(f"v_mov_b32 {vr(vMX)}, 0xff800000")
    g.lab("L_qspin")
    a(f"ds_read_b32 {vr(vT)}, {vr(vCNT)} offset:16")
    a(f"ds_read_b128 {vr(vQ,4)}, v9")
    a("s_waitcnt lgkmcnt(0)")
    a(f"v_cmp_ne_u32 vcc, 1, {vr(vT)}")
    a("s_cbranch_vccnz L_qspin")
    stamp(2)
    if N0 == NR: run_chunks(5)
    for n in range(N0, 128):
        issue(n)
        if n in extra: extra[n]()
        else: run_chunks(budget)
    run_chunks(0, force=True)
    a("s_mov_b32 exec_hi, 0")
    stamp(5)
    a("s_nop 6")
    a(f"ds_write_b128 v10, {vr(vACC,4)}")
    a("s_mov_b32 exec_lo, 1")
    a(f"ds_add_rtn_u32 v27, {vr(vCNT)}, v27")
    a("s_mov_b32 exec_lo, -1")
    for w in range(4): a(f"ds_read_b128 {vr(48+4*w,4)}, v9 offset:{w*512}")
    a(f"s_cmp_eq_u32 {sr(sLOC)}, {LOCV}")
    a(f"s_cselect_b32 {sr(sT1)}, 3, 7")
    a("s_waitcnt lgkmcnt(3)")
    a(f"v_readfirstlane_b32 {sr(sT0)}, v27")
    def sel(w): return "op_sel_hi:[1,0,1]" if w % 2 == 0 else "op_sel:[0,1,0]"
    for k in (0, 2): a(f"v_pk_mul_f32 {vr(48+k,2)}, {vr(48+k,2)}, {vr(vF,2)} op_sel_hi:[1,0]")
    for w in range(1, 4):
        a(f"s_waitcnt lgkmcnt({3-w})")
        for k in (0, 2): a(f"v_pk_fma_f32 {vr(48+k,2)}, {vr(48+4*w+k,2)}, {vr(vF+(w&2),2)}, {vr(48+k,2)} {sel(w)}")
    a(f"s_cmp_eq_u32 {sr(sT0)}, {sr(sT1)}")
    a("v_cvt_pk_bf16_f32 v48, v48, v49")
    a("v_cvt_pk_bf16_f32 v49, v50, v51")
    a("s_cbranch_scc0 L_pub_far")
    a(f"buffer_store_dwordx2 v[48:49], v11, {sr(RWS,4)}, {sr(sSLOT)} offen")
    stamp(6)
    g.lab("L_sdone")
    a("s_barrier")
    a("s_branch L_fin")
    g.lab("L_pub_far")
    a(f"s_cmp_eq_u32 {sr(sT0)}, 3")
    a("s_cbranch_scc0 L_sdone")
    a(f"buffer_store_dwordx2 v[48:49], v11, {sr(RWS,4)}, {sr(sSLOT)} offen sc1")
    stamp(6)
    a("s_branch L_sdone")
    g.lab("L_cwait")
    a(f"s_sub_u32 {sr(sSPIN)}, {sr(sSPIN)}, 4")
    a("s_cbranch_scc1 L_sspin")
    a("s_sleep 16")
    a("s_mov_b64 exec, 1")
    a(f"global_load_dwordx2 v[44:45], v46, {sr(sDBG,2)} sc1")
    a("s_mov_b64 exec, -1")
    a("s_waitcnt vmcnt(0)")
    a("s_branch L_cchk")

    g.lab("L_helper")
    a(f"s_cmp_eq_u32 {sr(sW4)}, 0")
    a("s_cbranch_scc0 L_other")
    if hprio: a(f"s_setprio {hprio}")
    hW = 64
    a(f"v_lshlrev_b32 v11, 13, {vr(vG)}")
    a(f"v_lshl_add_u32 v11, {vr(vI)}, 4, v11")
    a(f"v_lshlrev_b32 v12, 5, {vr(vLANE)}")
    a(f"v_lshl_add_u32 v63, {vr(vI)}, 2, {vr(vG)}")
    a("v_lshlrev_b32 v63, 1, v63")
    a(f"s_lshl_b32 {sr(sT2)}, {sr(sSUB)}, 7")
    a(f"s_lshl_b32 {sr(sT0)}, {sr(sH)}, 8")
    a(f"s_lshl_b32 {sr(sSO)}, {sr(sSUB)}, 19")
    a(f"s_lshl_b32 {sr(sU0)}, {sr(sSLOT)}, 3")
    a(f"s_add_u32 {sr(sU0)}, {sr(sU0)}, {WS_IN}")
    for k in range(4): a(f"v_mov_b32 {vr(16+k)}, -1")
    a("s_waitcnt lgkmcnt(0)")
    srd(RWS, sWS, None, WS_END)
    stamp(1)
    for u in range(4):
        a(f"buffer_store_dwordx4 v[16:19], v8, {sr(RWS,4)}, {sr(sU0)} offen offset:{u*1024}")
    srd(R0, sX, None, 2048)
    srd(R1, sWQ, sT0, 511*8192 + 256)
    a(f"buffer_load_dwordx4 v[20:23], v12, {sr(R0,4)}, 0 offen")
    a(f"buffer_load_dwordx4 v[128:131], v12, {sr(R0,4)}, 0 offen offset:16")
    def tile_loads():
        a(f"buffer_load_ushort v14, v63, {sr(R0,4)}, {sr(sT2)} offen")
        a(f"buffer_load_ushort v15, v63, {sr(R0,4)}, {sr(sT2)} offen offset:1024")
        for t in range(16):
            a(f"buffer_load_dwordx4 {vr(hW+4*t,4)}, v11, {sr(R1,4)}, {sr(sSO)} offen {wqpol}")
            a(f"s_add_u32 {sr(sSO)}, {sr(sSO)}, 0x8000")
    if not qb0: a("s_barrier")
    tile_loads()
    if qb0: a("s_barrier")
    make_masks(True)
    a(f"v_and_b32 v12, 31, {vr(vLANE)}")
    a("v_lshlrev_b32 v12, 4, v12")
    a(f"v_lshrrev_b32 v13, 5, {vr(vLANE)}")
    a("v_lshl_add_u32 v60, v13, 14, v12")
    a(f"s_lshl_b32 {sr(sU1)}, {sr(sH)}, 15")
    a(f"s_lshl_b32 {sr(sT0)}, {sr(sSUB)}, 9")
    a(f"s_add_u32 {sr(sU1)}, {sr(sU1)}, {sr(sT0)}")
    a(f"s_add_u32 {sr(sU1)}, {sr(sU1)}, {WS_IN}")
    a(f"v_and_b32 v13, 1, {vr(vG)}")
    a("v_lshlrev_b32 v13, 3, v13")
    a(f"v_lshl_add_u32 v62, {vr(vI)}, 4, v13")
    a(f"v_add_u32 v62, {L_Q}, v62")
    for k in range(4): a(f"v_mov_b32 {vr(56+k)}, 0")
    a(f"s_mov_b32 {sr(sDRY)}, 0")
    a("s_waitcnt vmcnt(18)")
    for k in range(8):
        src = 20 + k if k < 4 else 124 + k
        a(f"v_and_b32 {vr(33+2*k)}, 0xffff0000, {vr(src)}")
        a(f"v_lshlrev_b32 {vr(32+2*k)}, 16, {vr(src)}")
    for k in range(4): a(f"v_pk_add_f32 {vr(48+2*k,2)}, {vr(32+4*k,2)}, {vr(34+4*k,2)}")
    a("v_pk_add_f32 v[48:49], v[48:49], v[50:51]")
    a("v_pk_add_f32 v[52:53], v[52:53], v[54:55]")
    a("v_pk_add_f32 v[48:49], v[48:49], v[52:53]")
    a("v_add_f32 v28, v48, v49")
    allred("v_add_f32", [28], [29], s32=False)
    a("v_mul_f32 v28, 0x3b000000, v28")
    for k in range(8): a(f"v_pk_add_f32 {vr(32+2*k,2)}, {vr(32+2*k,2)}, v[28:29] op_sel_hi:[1,0] neg_lo:[0,1] neg_hi:[0,1]")
    a("v_pk_mul_f32 v[30:31], v[32:33], v[32:33]")
    for k in range(1, 8): a(f"v_pk_fma_f32 v[30:31], {vr(32+2*k,2)}, {vr(32+2*k,2)}, v[30:31]")
    a("v_add_f32 v30, v30, v31")
    allred("v_add_f32", [30], [29], s32=False)
    a("v_mul_f32 v30, 0x3b000000, v30")
    def ln_scale(vmean, vvar):
        rnd(vvar, vvar)
        a(f"v_add_f32 {vr(vvar)}, {EPS:#x}, {vr(vvar)}")
        rnd(vvar, vvar)
        a(f"v_sqrt_f32 {vr(vvar)}, {vr(vvar)}")
        rnd(vmean, vmean)
        rnd(vvar, vvar)
        a(f"v_rcp_f32 {vr(vvar)}, {vr(vvar)}")
    ln_scale(28, 30)
    a("v_mov_b32 v29, v28")
    a("v_mov_b32 v31, v30")
    a("s_nop 1")
    a("v_permlane32_swap_b32 v28, v29")
    a("v_permlane32_swap_b32 v30, v31")
    g.lab("L_tile")
    a("s_waitcnt vmcnt(16)")
    a("v_lshlrev_b32 v14, 16, v14")
    a("v_lshlrev_b32 v15, 16, v15")
    a("v_sub_f32 v14, v14, v28")
    a("v_sub_f32 v15, v15, v29")
    rnd(14, 14); rnd(15, 15)
    a("v_mul_f32 v14, v14, v30")
    a("v_mul_f32 v15, v15, v31")
    a("v_cvt_pk_bf16_f32 v14, v14, v14")
    a("v_cvt_pk_bf16_f32 v15, v15, v15")
    a("s_nop 0")
    for t in range(16):
        a(f"v_mov_b32_dpp {vr(40+t)}, v14 row_newbcast:{t} row_mask:0xf bank_mask:0x3")
        a(f"v_mov_b32_dpp {vr(40+t)}, v15 row_newbcast:{t} row_mask:0xf bank_mask:0xc")
    for t in range(16):
        A = 32 + 4 * (t & 1)
        for k in range(4): a(f"v_and_b32 {vr(A+k)}, {vr(40+t)}, {vr(vMASK+k)}")
        a(f"s_waitcnt vmcnt({15-t})")
        a("s_nop 0")
        a(f"v_mfma_f32_16x16x32_bf16 v[56:59], {vr(A,4)}, {vr(hW+4*t,4)}, v[56:59]")
    a(f"s_cmp_eq_u32 {sr(sDRY)}, 0")
    a("s_nop 5")
    a("s_cbranch_scc0 L_qmore")
    stamp(3)
    if not forcefb:
        for jj in range(4):
            a(f"buffer_store_dwordx4 v[56:59], v60, {sr(RWS,4)}, {sr(sU1)} offen")
            if jj < 3: a(f"s_add_u32 {sr(sU1)}, {sr(sU1)}, 4096")
    poll("L_pollQ", [f"buffer_load_dwordx4 {vr(32+4*u,4)}, v8, {sr(RWS,4)}, {sr(sU0)} offen offset:{u*1024} sc1" for u in range(4)],
         range(32, 48), 48, spin=QTRY, fail="L_qfail")
    a("v_pk_add_f32 v[32:33], v[32:33], v[36:37]"); a("v_pk_add_f32 v[34:35], v[34:35], v[38:39]")
    a("v_pk_add_f32 v[40:41], v[40:41], v[44:45]"); a("v_pk_add_f32 v[42:43], v[42:43], v[46:47]")
    a("v_pk_add_f32 v[32:33], v[32:33], v[40:41]"); a("v_pk_add_f32 v[34:35], v[34:35], v[42:43]")
    for k in range(4): a(f"v_mov_b32 {vr(36+k)}, {vr(32+k)}")
    for k in range(4): a(f"v_permlane32_swap_b32 {vr(32+k)}, {vr(36+k)}")
    a("v_pk_add_f32 v[56:57], v[32:33], v[36:37]"); a("v_pk_add_f32 v[58:59], v[34:35], v[38:39]")
    g.lab("L_qput")
    a("v_cvt_pk_bf16_f32 v32, v56, v57")
    a("v_cvt_pk_bf16_f32 v33, v58, v59")
    a("v_mov_b32 v34, 1")
    a("ds_write_b64 v62, v[32:33]")
    a(f"ds_write_b32 {vr(vCNT)}, v34 offset:16")
    a("s_mov_b64 exec, -1")
    stamp(2)
    a(f"s_cmp_eq_u32 {sr(sROLE)}, 0")
    a("s_cbranch_scc1 L_fin")
    a("s_branch L_role")
    g.lab("L_qfail")
    a(f"s_mov_b32 {sr(sDRY)}, 8")
    g.lab("L_qmore")
    a(f"s_sub_u32 {sr(sDRY)}, {sr(sDRY)}, 1")
    a(f"s_cmp_eq_u32 {sr(sDRY)}, 0")
    a("s_cbranch_scc1 L_qown")
    a(f"s_and_b32 {sr(sSO)}, {sr(sSO)}, 0x3fffff")
    a(f"s_lshr_b32 {sr(sT2)}, {sr(sSO)}, 12")
    tile_loads()
    a("s_branch L_tile")
    g.lab("L_qown")
    a(f"s_lshl_b32 {sr(sT0)}, {sr(sB)}, 5")
    a(f"s_bfm_b64 exec, 32, {sr(sT0)}")
    a("s_branch L_qput")

    g.lab("L_other")
    a(f"s_cmp_eq_u32 {sr(sW4)}, 3")
    a("s_cbranch_scc0 L_noinit")
    for k in range(4): a(f"v_mov_b32 {vr(12+k)}, 0")
    a(f"ds_write_b128 {vr(vCNT)}, v[12:15]")
    a(f"ds_write_b128 {vr(vCNT)}, v[12:15] offset:16")
    if pf:
        a(f"v_lshlrev_b32 v20, 7, {vr(vLANE)}")
        a(f"s_lshl_b32 {sr(sT0)}, {sr(sSLOT)}, 5")
        a(f"s_mul_i32 {sr(sT1)}, s2, {43*128}")
        a("s_waitcnt lgkmcnt(0)")
        srd(R0, sWO, sT0, 16384)
        srd(R1, sW1, sT1, 43*128)
        srd(R2, sW2, sT1, 43*128)
        if pfwait: a(f"s_sleep {pfwait}")
        a(f"s_mov_b32 {sr(sSO)}, 0x2000")
        a(f"buffer_load_dword v21, v20, {sr(R0,4)}, 0 offen {pfpol}")
        a(f"buffer_load_dword v22, v20, {sr(R0,4)}, {sr(sSO)} offen {pfpol}")
        a(f"buffer_load_dword v23, v20, {sr(R1,4)}, 0 offen {pfpol}")
        a(f"buffer_load_dword v24, v20, {sr(R2,4)}, 0 offen {pfpol}")
    g.lab("L_noinit")
    a("s_waitcnt lgkmcnt(0)")
    a("s_barrier")
    a("s_waitcnt vmcnt(0)")
    a(f"s_cmp_eq_u32 {sr(sROLE)}, 0")
    a("s_cbranch_scc1 L_fin")
    srd(R0, sX, None, 2048)
    srd(RWS, sWS, None, WS_END)
    make_masks(True)
    a(f"s_cmp_eq_u32 {sr(sW4)}, 1")
    a("s_cbranch_scc1 L_loader")
    a(f"s_cmp_eq_u32 {sr(sW4)}, 2")
    a("s_cbranch_scc0 L_role")
    a(f"s_cmp_eq_u32 {sr(sROLE)}, 1")
    a("s_cbranch_scc0 L_role")
    if 'noclear' in dbg: a("s_branch L_clr2")
    for k in range(4): a(f"v_mov_b32 {vr(16+k)}, -1")
    a(f"s_lshr_b32 {sr(sT0)}, {sr(sY)}, 1")
    a(f"s_lshl_b32 {sr(sT0)}, {sr(sT0)}, 3")
    a(f"s_add_u32 {sr(sT0)}, {sr(sT0)}, {sr(sCLS)}")
    a(f"s_lshl_b32 {sr(sT0)}, {sr(sT0)}, 12")
    a(f"s_and_b32 {sr(sT1)}, {sr(sY)}, 1")
    a(f"s_lshl_b32 {sr(sT1)}, {sr(sT1)}, 11")
    a(f"s_add_u32 {sr(sT0)}, {sr(sT0)}, {sr(sT1)}")
    a(f"buffer_store_dwordx4 v[16:19], v8, {sr(RWS,4)}, {sr(sT0)} offen sc1")
    a(f"buffer_store_dwordx4 v[16:19], v8, {sr(RWS,4)}, {sr(sT0)} offen offset:1024 sc1")
    a(f"s_lshl_b32 {sr(sT0)}, {sr(sCLS)}, 11")
    a(f"s_lshl_b32 {sr(sT1)}, {sr(sY)}, 7")
    a(f"s_add_u32 {sr(sT0)}, {sr(sT0)}, {sr(sT1)}")
    a(f"s_add_u32 {sr(sT0)}, {sr(sT0)}, {WS_A}")
    a("s_mov_b64 exec, 0xff")
    a(f"buffer_store_dwordx4 v[16:19], v8, {sr(RWS,4)}, {sr(sT0)} offen sc1")
    a(f"buffer_store_dwordx4 v[16:19], v8, {sr(RWS,4)}, {sr(sT0)} offen offset:1024 sc1")
    a("s_mov_b64 exec, -1")
    a(f"s_cmp_eq_u32 {sr(sCLS)}, {XF}")
    a("s_cbranch_scc0 L_clr2")
    a(f"v_and_b32 v12, 31, {vr(vLANE)}")
    a("v_lshlrev_b32 v12, 4, v12")
    a(f"v_lshrrev_b32 v13, 5, {vr(vLANE)}")
    a("v_lshl_add_u32 v12, v13, 12, v12")
    a(f"s_lshl_b32 {sr(sT0)}, {sr(sY)}, 9")
    a(f"s_add_u32 {sr(sT0)}, {sr(sT0)}, {WS_Y}")
    for k in range(NF // 2):
        a(f"buffer_store_dwordx4 v[16:19], v12, {sr(RWS,4)}, {sr(sT0)} offen sc1")
        a(f"s_add_u32 {sr(sT0)}, {sr(sT0)}, 0x2000")
        a("s_waitcnt vmcnt(2)")
    g.lab("L_clr2")
    a(f"s_lshl_b32 {sr(sT0)}, {sr(sCLS)}, 5")
    a(f"s_add_u32 {sr(sT0)}, {sr(sT0)}, {sr(sY)}")
    a(f"s_or_b32 {sr(sT1)}, {sr(sXCC)}, 0x80")
    a(f"v_mov_b32 v12, {sr(sT0)}")
    a(f"v_mov_b32 v13, {sr(sT1)}")
    a("s_waitcnt vmcnt(0)")
    a("s_mov_b64 exec, 1")
    if 'noflag' not in dbg: a(f"global_store_byte v12, v13, {sr(sDBG,2)} sc1")
    a("s_mov_b64 exec, -1")
    a("s_branch L_role")
    g.lab("L_loader")
    if 'noload' in dbg: a("s_branch L_loaded")
    if ldelay: lds_spin("L_ldw", vCNT, 16, 12, 1, sleep=4)
    a(f"v_lshrrev_b32 v9, 3, {vr(vLANE)}")
    a(f"v_and_b32 v10, 7, {vr(vLANE)}")
    a(f"s_mov_b32 {sr(sT3)}, {L_W}")
    a(f"s_cmp_eq_u32 {sr(sROLE)}, 2")
    a("s_cbranch_scc1 L_loadF")
    if 'noO' in dbg: a("s_branch L_loaded")
    a(f"s_lshl_b32 {sr(sT0)}, {sr(sCLS)}, 17")
    a(f"s_lshl_b32 {sr(sT1)}, {sr(sY)}, 7")
    a(f"s_add_u32 {sr(sT0)}, {sr(sT0)}, {sr(sT1)}")
    srd(R2, sWO, sT0, 3*(1 << 20) + 127*1024 + 128)
    a("v_lshlrev_b32 v9, 10, v9")
    a("v_lshl_add_u32 v9, v10, 4, v9")
    a(f"s_mul_i32 {sr(sT2)}, {sr(sCLS)}, {rotO}")
    a(f"s_mov_b32 {sr(sT1)}, 64")
    g.lab("L_ldO")
    a(f"s_and_b32 {sr(sT2)}, {sr(sT2)}, 63")
    a(f"s_lshr_b32 {sr(sSO)}, {sr(sT2)}, 4")
    a(f"s_lshl_b32 {sr(sSO)}, {sr(sSO)}, 7")
    a(f"s_and_b32 {sr(sT0)}, {sr(sT2)}, 15")
    a(f"s_add_u32 {sr(sSO)}, {sr(sSO)}, {sr(sT0)}")
    a(f"s_lshl_b32 {sr(sSO)}, {sr(sSO)}, 13")
    a(f"s_lshl_b32 m0, {sr(sT2)}, 10")
    a(f"s_waitcnt vmcnt({WO-1})")
    a(f"buffer_load_dwordx4 v9, {sr(R2,4)}, {sr(sSO)} offen {wopol} lds")
    a(f"s_add_u32 {sr(sT2)}, {sr(sT2)}, 1")
    a(f"s_sub_u32 {sr(sT1)}, {sr(sT1)}, 1")
    a(f"s_cmp_lg_u32 {sr(sT1)}, 0")
    a("s_cbranch_scc1 L_ldO")
    a("s_branch L_loaded")
    g.lab("L_loadF")
    if 'noF' in dbg: a("s_branch L_loaded")
    a(f"s_sub_u32 {sr(sT1)}, {sr(sY)}, 8")
    a(f"s_lshl_b32 {sr(sT0)}, {sr(sT1)}, 7")
    srd(R2, sW1, sT0, 0)
    a(f"s_sub_u32 {sr(R2+2)}, {512*2752}, {sr(sT0)}")
    a(f"s_lshl_b32 {sr(sT0)}, {sr(sT1)}, 16")
    srd(R3, sW2, sT0, 0)
    a(f"s_sub_u32 {sr(R3+2)}, {1376*1024}, {sr(sT0)}")
    a("v_mul_u32_u24 v9, 2752, v9")
    a("v_lshl_add_u32 v9, v10, 4, v9")
    a(f"s_mul_i32 {sr(sT2)}, {sr(sT1)}, {rot1}")
    a(f"s_mul_i32 {sr(sT3)}, {sr(sT1)}, {rot2}")
    a(f"s_mov_b32 {sr(sT1)}, 64")
    g.lab("L_ldF")
    a(f"s_and_b32 {sr(sT2)}, {sr(sT2)}, 63")
    a(f"s_and_b32 {sr(sT3)}, {sr(sT3)}, 63")
    a(f"s_mul_i32 {sr(sT0)}, {sr(sT2)}, {8*2752}")
    a(f"v_add_u32 v10, {sr(sT0)}, v9")
    a(f"s_lshl_b32 {sr(sT0)}, {sr(sT3)}, 10")
    a(f"v_add_u32 v11, {sr(sT0)}, v8")
    a(f"s_lshl_b32 m0, {sr(sT2)}, 10")
    a(f"s_waitcnt vmcnt({WF-1})")
    if 'now1' not in dbg: a(f"buffer_load_dwordx4 v10, {sr(R2,4)}, 0 offen {w1pol} lds")
    a(f"s_mul_i32 {sr(sT0)}, {sr(sT3)}, {W2P}")
    a(f"s_add_u32 m0, {sr(sT0)}, {L_W2}")
    a(f"s_waitcnt vmcnt({WF-1})")
    if 'now2' not in dbg: a(f"buffer_load_dwordx4 v11, {sr(R3,4)}, 0 offen {w2pol} lds")
    a(f"s_add_u32 {sr(sT2)}, {sr(sT2)}, 1")
    a(f"s_add_u32 {sr(sT3)}, {sr(sT3)}, 1")
    a(f"s_sub_u32 {sr(sT1)}, {sr(sT1)}, 1")
    a(f"s_cmp_lg_u32 {sr(sT1)}, 0")
    a("s_cbranch_scc1 L_ldF")
    g.lab("L_loaded")
    a("v_mov_b32 v9, 1")
    a("s_waitcnt vmcnt(0)")
    a(f"ds_write_b32 {vr(vCNT)}, v9 offset:8")
    stamp(3)
    g.lab("L_role")
    if 'norole' in dbg: a("s_branch L_fin")
    a("s_setprio 1")
    lds_spin("L_stg", vCNT, 8, 12, 1, sleep=16)
    a(f"v_and_b32 v11, 3, {vr(vLANE)}")
    a("v_lshlrev_b32 v11, 3, v11")
    a(f"s_cmp_eq_u32 {sr(sROLE)}, 2")
    a("s_cbranch_scc1 L_roleF")

    vB = 64
    a(f"s_lshl_b32 {sr(sU0)}, {sr(sW4)}, 3")
    a(f"s_add_u32 {sr(sU0)}, {sr(sU0)}, {sr(sCLS)}")
    a(f"s_lshl_b32 {sr(sU0)}, {sr(sU0)}, 12")
    a(f"s_lshl_b32 {sr(sU1)}, {sr(sY)}, 7")
    a(f"v_bfe_u32 v10, {vr(vLANE)}, 3, 1")
    a("v_lshlrev_b32 v10, 5, v10")
    a(f"v_bfe_u32 v12, {vr(vLANE)}, 2, 1")
    a("v_add_u32 v10, v10, v12")
    a(f"v_lshl_add_u32 v10, {vr(vG)}, 2, v10")
    a("v_lshl_add_u32 v10, v10, 7, v11")
    a(f"s_lshl_b32 {sr(sT3)}, {sr(sW4)}, 14")
    a(f"v_add_u32 v10, {sr(sT3)}, v10")
    for nu in range(4):
        for u in range(2):
            for p in range(4):
                row = 64*u + 16*(p >> 1) + 2*(p & 1)
                a(f"ds_read_b64_tr_b16 {vr(vB+16*nu+8*u+2*p,2)}, v10 offset:{L_W + row*128 + nu*32}")
        a("s_waitcnt lgkmcnt(0)")
    vRX, vRB, vRO, vRA, vRY = 128, 129, 130, 131, 132
    a(f"s_lshl_b32 {sr(sT0)}, {sr(sY)}, 2")
    a(f"s_add_u32 {sr(sT0)}, {sr(sT0)}, {sr(sW4)}")
    a(f"s_lshl_b32 {sr(sT1)}, {sr(sT0)}, 7")
    a(f"s_add_u32 {sr(sT1)}, {sr(sT1)}, {WS_Y}")
    srd(R3, sWS, sT1, (NF-1)*4096 + 128)
    a(f"s_lshr_b32 {sr(sT0)}, {sr(sY)}, 1")
    a(f"s_lshl_b32 {sr(sT0)}, {sr(sT0)}, 8")
    a(f"s_and_b32 {sr(sC1)}, {sr(sY)}, 1")
    a(f"s_lshl_b32 {sr(sT1)}, {sr(sC1)}, 6")
    a(f"s_add_u32 {sr(sT1)}, {sr(sT1)}, {sr(sT0)}")
    a(f"s_lshl_b32 {sr(sT2)}, {sr(sW4)}, 4")
    a(f"s_add_u32 {sr(sT1)}, {sr(sT1)}, {sr(sT2)}")
    a(f"v_and_b32 v14, 7, {vr(vLANE)}")
    a(f"v_bfe_u32 v12, {vr(vLANE)}, 4, 1")
    a("v_lshlrev_b32 v12, 7, v12")
    a("v_lshl_add_u32 v12, v14, 1, v12")
    a(f"v_add_u32 v12, {sr(sT1)}, v12")
    a(f"v_lshrrev_b32 v13, 5, {vr(vLANE)}")
    a(f"v_lshl_add_u32 {vr(vRO)}, v13, 10, v12")
    srd(R1, sB2, None, 1024)
    a(f"buffer_load_ushort {vr(vRX)}, {vr(vRO)}, {sr(R0,4)}, 0 offen")
    a(f"buffer_load_ushort {vr(vRB)}, v12, {sr(R1,4)}, 0 offen")
    a(f"v_lshrrev_b32 v12, 3, {vr(vLANE)}")
    a("v_lshlrev_b32 v13, 11, v12")
    a("v_lshl_add_u32 v13, v14, 2, v13")
    a(f"s_lshl_b32 {sr(sT2)}, {sr(sW4)}, 5")
    a(f"s_add_u32 {sr(sT0)}, {sr(sT0)}, {sr(sT2)}")
    a(f"s_add_u32 {sr(sT0)}, {sr(sT0)}, {WS_A}")
    a(f"v_add_u32 {vr(vRA)}, {sr(sT0)}, v13")
    a(f"s_lshl_b32 {sr(sC1)}, {sr(sC1)}, 4")
    a(f"s_sub_u32 {sr(sC1)}, 16, {sr(sC1)}")
    a("v_lshlrev_b32 v12, 12, v12")
    a(f"v_lshl_add_u32 {vr(vRY)}, v14, 4, v12")
    for u in range(1, 3): a(f"v_add_u32 {vr(vRY+u)}, {u*0x8000}, {vr(vRY)}")
    wait_flags("L_cntO", 12)
    a(f"v_lshlrev_b32 {vr(vRX)}, 16, {vr(vRX)}")
    a(f"v_lshlrev_b32 {vr(vRB)}, 16, {vr(vRB)}")
    a(f"v_and_b32 v10, 7, {vr(vI)}")
    a("v_lshlrev_b32 v10, 9, v10")
    a(f"v_lshrrev_b32 v11, 3, {vr(vI)}")
    a("v_lshl_add_u32 v10, v11, 6, v10")
    a(f"v_lshl_add_u32 v10, {vr(vG)}, 4, v10")
    a("v_mul_u32_u24 v22, 0xaaaa, v11")
    a("v_add_u32 v22, 0x4444, v22")
    a(f"v_add_u32 v9, {L_RED}, v8")
    a(f"s_lshl_b32 {sr(sT2)}, {sr(sW4)}, 10")
    a(f"v_add_u32 v11, {sr(sT2)}, v9")
    a(f"v_and_b32 v23, 1, {vr(vG)}")
    a("v_lshlrev_b32 v21, 10, v23")
    a(f"v_lshrrev_b32 v12, 1, {vr(vG)}")
    a("v_lshl_add_u32 v21, v12, 6, v21")
    a(f"v_lshl_add_u32 v21, {vr(vI)}, 2, v21")
    a("v_lshlrev_b32 v23, 11, v23")
    a(f"s_lshl_b32 {sr(sT2)}, {sr(sCLS)}, 11")
    a(f"s_add_u32 {sr(sT2)}, {sr(sT2)}, {sr(sU1)}")
    a(f"s_add_u32 {sr(sT2)}, {sr(sT2)}, {WS_A}")
    srd(R2, sWS, sT2, 0 if dry else 2048)
    srd(R1, sOUT, None, 0 if dry else 2048)
    a(f"s_mov_b32 {sr(sDRY)}, {0 if dry else SPIN_MAX}")
    a(f"s_mov_b32 {sr(sU2)}, {0 if dry else 3}")
    a(f"v_mov_b32 v135, {0 if dry else 1}")
    if dry: a("s_branch L_Orun")
    g.lab("L_Oreal")
    lds_spin("L_waitst", vCNT, 4, 12, 4, sleep=8)
    poll("L_pollOs", [f"buffer_load_dwordx2 {vr(12+2*r,2)}, v23, {sr(RWS,4)}, {sr(sU0)} offen offset:{r*512+256} sc1" for r in range(4)],
         range(12, 20), 20, sleep=24)
    a("v_max3_f32 v20, v12, v14, v16")
    a("v_max_f32 v20, v20, v18")
    for r in range(4): a(f"v_sub_f32 {vr(28+r)}, {vr(12+2*r)}, v20")
    for r in range(4): a(f"v_exp_f32 {vr(28+r)}, {vr(28+r)}")
    a("s_nop 0")
    for r in range(4): a(f"v_mul_f32 {vr(28+r)}, {vr(28+r)}, {vr(13+2*r)}")
    a("v_add_f32 v20, v28, v29")
    a("v_add_f32 v12, v30, v31")
    a("v_add_f32 v20, v20, v12")
    a("v_rcp_f32 v20, v20")
    for k in range(8): a(f"v_mov_b32 {vr(40+k)}, 0")
    for r in range(4): a(f"v_mul_f32 {vr(28+r)}, {vr(28+r)}, v20")
    stamp(4)
    a("s_barrier")
    stamp(5)
    g.lab("L_Orun")
    def osm(nu, u): return f"v_smfmac_f32_16x16x64_bf16 {vr(32+4*nu,4)}, {vr(12+4*u,4)}, {vr(vB+16*nu+8*u,8)}, v22"
    poll("L_pollO", [f"buffer_load_dwordx4 {vr(12+4*u,4)}, v10, {sr(RWS,4)}, {sr(sU0)} offen offset:{u*128} sc1" for u in range(2)],
         range(12, 20), 20, spin=sr(sDRY), pre=["s_nop 1"] + [f"v_mov_b32 {vr(32+k)}, 0" for k in range(8)] + ["s_nop 0"],
         spec=[osm(0, 0), osm(0, 1), osm(1, 0)], post=[osm(1, 1)])
    stamp(6)
    def oep(nu):
        return [f"v_pk_mul_f32 {vr(32+4*nu,2)}, {vr(32+4*nu,2)}, v[28:29]",
                f"v_pk_fma_f32 {vr(32+4*nu,2)}, {vr(34+4*nu,2)}, v[30:31], {vr(32+4*nu,2)}",
                f"v_add_f32 {vr(48+nu)}, {vr(32+4*nu)}, {vr(33+4*nu)}"]
    e0, e1, e2, e3 = oep(0), oep(1), oep(2), oep(3)
    a(osm(2, 0)); a(osm(2, 1)); a(e0[0]); a(osm(3, 0)); a(e0[1]); a(osm(3, 1)); a(e0[2])
    for l in e1: a(l)
    a("s_nop 0")
    for l in e2: a(l)
    for l in e3: a(l)
    a("ds_write_b128 v11, v[48:51]")
    a("s_mov_b64 exec, 1")
    a(f"ds_add_rtn_u32 v20, {vr(vCNT)}, v135 offset:12")
    a("s_mov_b64 exec, -1")
    for w in range(4): a(f"ds_read_b128 {vr(32+4*w,4)}, v9 offset:{w*1024}")
    a("s_waitcnt lgkmcnt(2)")
    a(f"v_readfirstlane_b32 {sr(sT0)}, v20")
    a("v_pk_add_f32 v[32:33], v[32:33], v[36:37]")
    a("v_pk_add_f32 v[34:35], v[34:35], v[38:39]")
    a("s_waitcnt lgkmcnt(1)")
    a("v_pk_add_f32 v[32:33], v[32:33], v[40:41]")
    a("v_pk_add_f32 v[34:35], v[34:35], v[42:43]")
    a("s_waitcnt lgkmcnt(0)")
    a("v_pk_add_f32 v[32:33], v[32:33], v[44:45]")
    a("v_pk_add_f32 v[34:35], v[34:35], v[46:47]")
    a(f"s_cmp_eq_u32 {sr(sT0)}, {sr(sU2)}")
    a("v_permlane32_swap_b32 v32, v33")
    a("v_permlane32_swap_b32 v34, v35")
    a("v_add_f32 v32, v32, v33")
    a("v_add_f32 v34, v34, v35")
    a("s_cbranch_scc0 L_Odone")
    a("v_cvt_pk_bf16_f32 v32, v32, v34")
    a(f"buffer_store_dword v32, v21, {sr(R2,4)}, 0 offen sc1")
    stamp(7)
    g.lab("L_Odone")
    a(f"s_cmp_eq_u32 {sr(sCLS)}, {XF}")
    a("s_cbranch_scc0 L_Rdone")
    def red8(b):
        a(f"v_permlane32_swap_b32 {vr(b)}, {vr(b+1)}")
        a(f"v_permlane32_swap_b32 {vr(b+2)}, {vr(b+3)}")
        a(f"v_add_f32 {vr(b)}, {vr(b)}, {vr(b+1)}")
        a(f"v_add_f32 {vr(b+2)}, {vr(b+2)}, {vr(b+3)}")
        a("s_nop 1")
        a(f"v_permlane16_swap_b32 {vr(b)}, {vr(b+2)}")
        a(f"v_add_f32 {vr(b)}, {vr(b)}, {vr(b+2)}")
        a("s_nop 1")
        a(f"v_add_f32_dpp {vr(b)}, {vr(b)}, {vr(b)} row_ror:8 {DPPF}")
    poll("L_pollRa", [f"buffer_load_dword {vr(12+r)}, {vr(vRA)}, {sr(RWS,4)}, 0 offen offset:{(r&1)*1024 + (r>>1)*128} sc1" for r in range(4)],
         range(12, 16), 16, spin=sr(sDRY))
    for k in range(4): a(f"v_lshlrev_b32 {vr(12+k)}, {sr(sC1)}, {vr(12+k)}")
    for k in range(4): a(f"v_and_b32 {vr(12+k)}, 0xffff0000, {vr(12+k)}")
    a("s_nop 1")
    red8(12)
    rnd(12, 12)
    a(f"v_add_f32 v136, {vr(vRX)}, v12")
    rnd(136, 136)
    poll("L_pollRy", [f"buffer_load_dwordx4 {vr(32+4*u,4)}, {vr(vRY+u)}, {sr(R3,4)}, 0 offen sc1" for u in range(3)], range(32, 44), 16, spin=sr(sDRY),
         post=["v_pk_add_f32 v[12:13], v[32:33], v[36:37]", "v_pk_add_f32 v[14:15], v[34:35], v[38:39]",
               "v_pk_add_f32 v[12:13], v[12:13], v[40:41]", "v_pk_add_f32 v[14:15], v[14:15], v[42:43]"])
    stamp(8)
    red8(12)
    rnd(12, 12)
    a(f"v_add_f32 v12, v12, {vr(vRB)}")
    rnd(12, 12)
    a("v_add_f32 v12, v12, v136")
    a("v_cvt_pk_bf16_f32 v12, v12, v12")
    a(f"buffer_store_short v12, {vr(vRO)}, {sr(R1,4)}, 0 offen")
    stamp(9)
    g.lab("L_Rdone")
    a(f"s_cmp_eq_u32 {sr(sDRY)}, 0")
    a("s_cbranch_scc0 L_fin")
    a("s_waitcnt vmcnt(0) lgkmcnt(0)")
    a(f"s_mov_b32 {sr(R2+2)}, 2048")
    a(f"s_mov_b32 {sr(R1+2)}, 2048")
    a(f"s_mov_b32 {sr(sDRY)}, {SPIN_MAX}")
    a(f"s_mov_b32 {sr(sU2)}, 3")
    a("v_mov_b32 v135, 1")
    a("s_branch L_Oreal")

    g.lab("L_roleF")
    vW1 = 64
    vW2 = 128
    vA1 = 192
    vA2 = 224
    vAC = 240
    sF = sU0
    a(f"s_sub_u32 {sr(sF)}, {sr(sY)}, 8")
    a(f"s_lshl_b32 {sr(sU1)}, {sr(sF)}, 7")
    a(f"v_lshrrev_b32 v12, 1, {vr(vG)}")
    a("v_lshlrev_b32 v12, 7, v12")
    a(f"v_lshl_add_u32 v12, {vr(vI)}, 3, v12")
    a(f"v_and_b32 v15, 1, {vr(vG)}")
    a("v_lshl_add_u32 v12, v15, 2, v12")
    a("v_and_b32 v13, 0xc0, v12")
    a("v_and_b32 v14, 63, v12")
    a("v_lshl_add_u32 v13, v13, 1, v14")
    a(f"s_lshl_b32 {sr(sU2)}, {sr(sW4)}, 9")
    a(f"buffer_load_dword v40, v13, {sr(R0,4)}, {sr(sU2)} offen")
    a(f"buffer_load_dword v41, v13, {sr(R0,4)}, {sr(sU2)} offen offset:64")
    a("v_lshlrev_b32 v12, 1, v12")
    a(f"v_add_u32 v12, {sr(sU2)}, v12")
    a(f"v_add_u32 v46, {L_HN}, v12")
    srd(R1, sB1, None, 2752)
    a(f"s_lshl_b32 {sr(sT0)}, {sr(sW4)}, 5")
    a(f"v_lshl_add_u32 v13, {vr(vI)}, 1, {sr(sT0)}")
    a(f"v_add_u32 v14, {sr(sU1)}, v13")
    a(f"buffer_load_ushort v44, v14, {sr(R1,4)}, 0 offen")
    a("v_lshl_add_u32 v13, v15, 7, v13")
    a(f"v_add_u32 v47, {L_RR}, v13")
    a(f"v_and_b32 v14, 1, {vr(vI)}")
    a(f"v_bfe_u32 v15, {vr(vI)}, 1, 1")
    a("v_lshlrev_b32 v13, 7, v14")
    a("v_lshl_add_u32 v13, v15, 6, v13")
    a(f"v_lshl_add_u32 v13, {vr(vG)}, 4, v13")
    a(f"v_add_u32 v48, {L_RR}, v13")
    a("v_mul_u32_u24 v51, 0xaaaa, v15")
    a("v_add_u32 v51, 0x4444, v51")
    a("v_mul_u32_u24 v50, 0xaaaa, v14")
    a("v_add_u32 v50, 0x4444, v50")
    a(f"v_bfe_u32 v13, {vr(vI)}, 2, 1")
    a("v_lshlrev_b32 v13, 10, v13")
    a("v_lshl_add_u32 v13, v14, 6, v13")
    a(f"v_lshl_add_u32 v13, {vr(vG)}, 4, v13")
    a(f"v_add_u32 v49, {L_HN}, v13")
    a(f"s_lshl_b32 {sr(sT0)}, {sr(sW4)}, 3")
    a(f"s_add_u32 {sr(sT0)}, {sr(sT0)}, {L_FS}")
    a(f"v_mov_b32 v52, {sr(sT0)}")
    a("v_xor_b32 v53, 8, v52")
    a(f"v_lshlrev_b32 v54, 11, {vr(vG)}")
    a(f"v_lshl_add_u32 v54, {vr(vI)}, 4, v54")
    a("v_add_u32 v55, 0x2000, v54")
    a(f"s_add_u32 {sr(sU2)}, {sr(sU2)}, {WS_A}")
    a(f"v_cmp_gt_u32 vcc, 8, {vr(vI)}")
    for k in range(4): a(f"v_and_b32 {vr(60+k)}, 0x3f803f80, {vr(vMASK+k)}")
    for k in range(4):
        a(f"v_cndmask_b32 {vr(56+k)}, 0, {vr(60+k)}, vcc")
        a(f"v_cndmask_b32 {vr(60+k)}, {vr(60+k)}, 0, vcc")
    for k in range(16): a(f"v_mov_b32 {vr(vA2+k)}, 0")
    a(f"v_bfe_u32 v12, {vr(vLANE)}, 3, 1")
    a(f"v_bfe_u32 v13, {vr(vLANE)}, 2, 1")
    a("v_lshl_add_u32 v10, v12, 5, v13")
    a(f"v_lshl_add_u32 v10, {vr(vG)}, 2, v10")
    a(f"v_mul_u32_u24 v10, {W2P}, v10")
    a(f"s_lshl_b32 {sr(sT0)}, {sr(sW4)}, 8")
    a(f"s_add_u32 {sr(sT0)}, {sr(sT0)}, {L_W2}")
    a(f"v_add3_u32 v10, v10, v11, {sr(sT0)}")
    for nu in range(8):
        for p in range(4):
            a(f"ds_read_b64_tr_b16 {vr(vW2+8*nu+2*p,2)}, v10 offset:{(16*(p>>1) + 2*(p&1))*W2P + nu*32}")
        if nu & 1: a("s_waitcnt lgkmcnt(0)")
    a("v_lshlrev_b32 v10, 5, v13")
    a("v_lshl_add_u32 v10, v12, 4, v10")
    a(f"v_lshl_add_u32 v10, {vr(vG)}, 1, v10")
    a("v_lshl_add_u32 v10, v10, 7, v11")
    a(f"s_lshl_b32 {sr(sT0)}, {sr(sW4)}, 5")
    a(f"v_add_u32 v10, {sr(sT0)}, v10")
    for s in range(8):
        for p in range(4):
            a(f"ds_read_b64_tr_b16 {vr(vW1+8*s+2*p,2)}, v10 offset:{L_W + (64*s + 8*(p>>1) + (p&1))*128}")
        if s & 1: a("s_waitcnt lgkmcnt(0)")
    wait_flags("L_cntF", 12)
    a("v_and_b32 v42, 0xffff0000, v40")
    a("v_and_b32 v43, 0xffff0000, v41")
    a("v_lshlrev_b32 v40, 16, v40")
    a("v_lshlrev_b32 v41, 16, v41")
    a("v_lshlrev_b32 v44, 16, v44")
    a(f"s_lshl_b32 {sr(sT0)}, {sr(sF)}, 12")
    a(f"s_lshl_b32 {sr(sT1)}, {sr(sW4)}, 10")
    a(f"s_add_u32 {sr(sT0)}, {sr(sT0)}, {sr(sT1)}")
    a(f"s_add_u32 {sr(sT0)}, {sr(sT0)}, {WS_Y}")
    srd(R3, sWS, sT0, 0 if dry else 1024)
    a(f"s_mov_b32 {sr(sM0)}, 0x000f000f"); a(f"s_mov_b32 {sr(sM0+1)}, 0x000f000f")
    a(f"s_mov_b32 {sr(sDRY)}, {0 if dry else SPIN_MAX}")
    if dry: a("s_branch L_Frun")
    g.lab("L_Freal")
    for k in range(12): a(f"v_mov_b32 {vr(vAC+k)}, 0")
    stamp(4)
    a("s_barrier")
    stamp(5)
    g.lab("L_Frun")
    nb = [0]
    def fbar():
        nb[0] += 1
        a(f"s_cmp_eq_u32 {sr(sDRY)}, 0")
        a(f"s_cbranch_scc1 L_fb{nb[0]}")
        a("s_waitcnt lgkmcnt(0)")
        a("s_barrier")
        g.lab(f"L_fb{nb[0]}")
    poll("L_pollF", [f"buffer_load_dwordx4 {vr(vA1+8*ch+4*u,4)}, {vr(54+u)}, {sr(RWS,4)}, {sr(sU2)} offen offset:{ch*256} sc1" for ch in range(2) for u in range(2)],
         range(vA1, vA1+16), 32, spin=sr(sDRY),
         spec=[f"v_mfma_f32_16x16x32_bf16 v[28:31], v[56:59], {vr(vA1,4)}, 0",
               f"v_mfma_f32_16x16x32_bf16 v[28:31], v[56:59], {vr(vA1+4,4)}, v[28:31]",
               f"v_mfma_f32_16x16x32_bf16 v[28:31], v[60:63], {vr(vA1+8,4)}, v[28:31]",
               f"v_mfma_f32_16x16x32_bf16 v[28:31], v[60:63], {vr(vA1+12,4)}, v[28:31]", "s_nop 0"],
         post=["s_nop 2"])
    stamp(6)
    def rnd4(base):
        a(f"v_cvt_pk_bf16_f32 {vr(base)}, {vr(base)}, {vr(base+1)}")
        a(f"v_cvt_pk_bf16_f32 {vr(base+2)}, {vr(base+2)}, {vr(base+3)}")
        a(f"v_and_b32 {vr(base+1)}, 0xffff0000, {vr(base)}")
        a(f"v_and_b32 {vr(base+3)}, 0xffff0000, {vr(base+2)}")
        a(f"v_lshlrev_b32 {vr(base)}, 16, {vr(base)}")
        a(f"v_lshlrev_b32 {vr(base+2)}, 16, {vr(base+2)}")
    rnd4(28)
    a("v_pk_add_f32 v[28:29], v[28:29], v[40:41]")
    a("v_pk_add_f32 v[30:31], v[30:31], v[42:43]")
    rnd4(28)
    a("v_pk_add_f32 v[32:33], v[28:29], v[30:31]")
    a("v_pk_mul_f32 v[34:35], v[28:29], v[28:29]")
    a("v_pk_fma_f32 v[34:35], v[30:31], v[30:31], v[34:35]")
    a("v_add_f32 v32, v32, v33")
    a("v_add_f32 v33, v34, v35")
    allred("v_add_f32", [32, 33], [34, 35])
    a("ds_write_b64 v52, v[32:33]")
    fbar()
    a("ds_read_b64 v[34:35], v53")
    a("s_waitcnt lgkmcnt(0)")
    a("v_pk_add_f32 v[32:33], v[32:33], v[34:35]")
    a("v_mul_f32 v32, 0x3b000000, v32")
    a("v_mul_f32 v33, 0x3b000000, v33")
    a("v_fma_f32 v33, -v32, v32, v33")
    a("v_max_f32 v36, 0, v33")
    ln_scale(32, 36)
    a("v_pk_add_f32 v[28:29], v[28:29], v[32:33] op_sel_hi:[1,0] neg_lo:[0,1] neg_hi:[0,1]")
    a("v_pk_add_f32 v[30:31], v[30:31], v[32:33] op_sel_hi:[1,0] neg_lo:[0,1] neg_hi:[0,1]")
    rnd4(28)
    a("v_pk_mul_f32 v[28:29], v[28:29], v[36:37] op_sel_hi:[1,0]")
    a("v_pk_mul_f32 v[30:31], v[30:31], v[36:37] op_sel_hi:[1,0]")
    a("v_cvt_pk_bf16_f32 v28, v28, v29")
    a("v_cvt_pk_bf16_f32 v29, v30, v31")
    a("ds_write_b64 v46, v[28:29]")
    fbar()
    for s in range(8): a(f"ds_read_b128 {vr(vA1+4*s,4)}, v49 offset:{s*128}")
    for s in range(8):
        a(f"s_waitcnt lgkmcnt({7-s})")
        a(f"v_smfmac_f32_16x16x64_bf16 {vr(vAC,4)}, {vr(vA1+4*s,4)}, {vr(vW1+8*s,8)}, v50")
    stamp(7)
    a("s_nop 7")
    a(f"v_add_f32 v28, {vr(vAC)}, {vr(vAC+1)}")
    rnd(28, 28)
    a("v_add_f32 v28, v28, v44")
    rnd(28, 28)
    a("v_max_f32 v28, 0, v28")
    a("v_mul_f32 v28, v28, v28")
    a("v_cvt_pk_bf16_f32 v28, v28, v28")
    a("ds_write_b16 v47, v28")
    a(f"s_mov_b64 exec, {sr(sM0,2)}")
    fbar()
    for q in range(4):
        a(f"ds_read_b128 {vr(vA2+4*q,4)}, v48")
        if q < 3: a(f"s_lshl_b64 exec, {sr(sM0,2)}, {4*(q+1)}")
    a("s_mov_b64 exec, -1")
    a(f"s_cmp_eq_u32 {sr(sLOC)}, {LOCV}")
    for q in range(4):
        a(f"s_waitcnt lgkmcnt({3-q})")
        for aa in range(2):
            a(f"v_smfmac_f32_16x16x64_bf16 {vr(vAC+4+4*aa,4)}, {vr(vA2+4*q,4)}, {vr(vW2+8*(4*aa+q),8)}, v51")
    a("s_nop 5")
    a("s_cbranch_scc0 L_F2far")
    a(f"v_pk_add_f32 v[28:29], {vr(vAC+4,2)}, {vr(vAC+6,2)}")
    a(f"v_pk_add_f32 v[30:31], {vr(vAC+8,2)}, {vr(vAC+10,2)}")
    a(f"buffer_store_dwordx4 v[28:31], v8, {sr(R3,4)}, 0 offen")
    stamp(8)
    g.lab("L_Fdone")
    a(f"s_cmp_eq_u32 {sr(sDRY)}, 0")
    a("s_cbranch_scc0 L_fin")
    a("s_waitcnt vmcnt(0) lgkmcnt(0)")
    a(f"s_mov_b32 {sr(R3+2)}, 1024")
    a(f"s_mov_b32 {sr(sDRY)}, {SPIN_MAX}")
    a("s_branch L_Freal")
    g.lab("L_F2far")
    a(f"v_pk_add_f32 v[28:29], {vr(vAC+4,2)}, {vr(vAC+6,2)}")
    a(f"v_pk_add_f32 v[30:31], {vr(vAC+8,2)}, {vr(vAC+10,2)}")
    a(f"buffer_store_dwordx4 v[28:31], v8, {sr(R3,4)}, 0 offen sc1")
    stamp(8)
    a("s_branch L_Fdone")

    g.lab("L_fin")
    if prof:
        a("s_mov_b64 exec, -1")
        a(f"s_memrealtime {sr(sST+20,2)}")
        a(f"s_mov_b32 {sr(sST+22)}, {sr(sXCC)}")
        a("s_waitcnt lgkmcnt(0)")
        a(f"s_lshl_b32 {sr(sT0)}, s2, 3")
        a(f"s_add_u32 {sr(sT0)}, {sr(sT0)}, {sr(sWAVE)}")
        a(f"s_mul_i32 {sr(sT0)}, {sr(sT0)}, 96")
        a(f"s_add_u32 {sr(sT0)}, {sr(sT0)}, {STAMP_OFF}")
        a(f"s_add_u32 {sr(sWS)}, {sr(sWS)}, {sr(sT0)}"); a(f"s_addc_u32 {sr(sWS+1)}, {sr(sWS+1)}, 0")
        a("s_mov_b64 exec, 1")
        a("v_mov_b32 v8, 0")
        for i in range(6):
            for k in range(4): a(f"v_mov_b32 {vr(64+4*i+k)}, {sr(sST+4*i+k)}")
            a(f"global_store_dwordx4 v8, {vr(64+4*i,4)}, {sr(sWS,2)} offset:{16*i}")
    g.lab("L_end")
    a("s_endpgm")

    nv = 252
    out = [HEADER.rstrip("\n"),
           f"; @launch grid=(256,1,1) block=(512,1,1) lds={L_END}",
           '.amdgcn_target "amdgcn-amd-amdhsa--gfx950"', ".text", f".globl {NAME}_kernel", ".p2align 8",
           f".type {NAME}_kernel,@function", f"{NAME}_kernel:"]
    out += g.L
    out += ['.section .rodata,"a"', ".p2align 6", f".amdhsa_kernel {NAME}_kernel",
            f"  .amdhsa_next_free_vgpr {nv}", "  .amdhsa_next_free_sgpr 100", f"  .amdhsa_accum_offset {nv}",
            "  .amdhsa_group_segment_fixed_size 0", "  .amdhsa_kernarg_size 104",
            "  .amdhsa_user_sgpr_count 2", "  .amdhsa_user_sgpr_kernarg_segment_ptr 1",
            "  .amdhsa_system_sgpr_workgroup_id_x 1", "  .amdhsa_float_denorm_mode_32 3",
            ".end_amdhsa_kernel"]
    return "\n".join(out) + "\n"

if __name__ == "__main__":
    kw = eval("dict(" + (sys.argv[2] if len(sys.argv) > 2 else "") + ")")
    open(sys.argv[1], "w").write(gen(**kw))
```

```python
import struct, sys
NAME = "sequential_preLN__mha_block_cached__dense_activation_squared_relu__decode"

def f2u(x): return struct.unpack("<I", struct.pack("<f", x))[0]
LOG2E = f2u(1.4426950408889634)
SCALE = f2u(128 ** -0.5)
EPS = f2u(1e-5)
NF = 22

WS_P = 0
WS_A = 0x20000
WS_Y = 0x30000
WS_IN = 0x100000
WS_END = 0x200000
STAMP_OFF = 128 << 20

W2P = 1056
L_W = 0
L_W2 = 0x10000
L_Q = L_W2 + 64 * W2P
L_O = L_Q + 256
L_ST = L_O + 2048
L_CNT = L_ST + 32
L_RED = L_CNT + 32
L_HN = L_RED + 4096
L_RR = L_HN + 2048
L_FS = L_RR + 256
L_END = L_FS + 64
SPIN_MAX = 400000

HEADER = open("cdna_kernels/" + NAME + ".s.ref").read().split("; Override launch")[0]

class G:
    def __init__(s): s.L = []
    def __call__(s, x): s.L.append("  " + x)
    def lab(s, x): s.L.append(x + ":")

def gen(kvpol="nt", wqpol="nt", wopol="nt", w1pol="", w2pol="nt", prof=False, D=5, DH=7, ramp=(3, 3, 3, 3), N0=32, budget=40, XF=0,
        WO=3, WF=7, QTRY=24, dry=True, local=True, NSTAT=92, null=False, forcefb=False,
        patN=0, patO=0, patX=0, patF=0, patXO=0, hprio=0, ldelay=0, dbg='', rotO=0, rot1=0, rot2=0, pf=1, pfpol='', B0N=0, qb0=1, pfwait=0, diag=None):
    g = G()
    a = g
    def vr(r, n=1): return f"v{r}" if n == 1 else f"v[{r}:{r+n-1}]"
    def sr(r, n=1): return f"s{r}" if n == 1 else f"s[{r}:{r+n-1}]"
    DPPF = "row_mask:0xf bank_mask:0xf"
    sX, sK, sV, sWQ, sWO, sBX, sW1, sB1 = 4, 6, 8, 10, 12, 14, 16, 18
    sW2, sB2, sOUT, sDBG, sWS = 20, 22, 24, 26, 28
    sWAVE, sH, sB, sJ, sSUB, sW4 = 30, 31, 32, 33, 34, 35
    sT0, sT1, sT2, sT3 = 36, 37, 38, 39
    R0, R1, R2, R3, RWS = 40, 44, 48, 52, 56
    sSO, sSPIN, sSLOT, sXCC = 60, 61, 62, 63
    sM0 = 64
    sC0, sC1 = 66, 67
    sCLS, sY, sLOC, sDRY = 68, 69, 70, 71
    sST = 72
    sU0, sU1, sU2, sROLE = 96, 97, 98, 99
    store_prof = prof
    if diag: prof = True
    usepat = any((patN, patO, patX, patF, patXO))
    def stamp(i):
        if prof: a(f"s_memrealtime {sr(sST+2*i,2)}")
    def srd(R, base, off_sgpr, nrec):
        if off_sgpr is None:
            a(f"s_mov_b32 {sr(R)}, {sr(base)}"); a(f"s_mov_b32 {sr(R+1)}, {sr(base+1)}")
        else:
            a(f"s_add_u32 {sr(R)}, {sr(base)}, {sr(off_sgpr)}"); a(f"s_addc_u32 {sr(R+1)}, {sr(base+1)}, 0")
        a(f"s_mov_b32 {sr(R+2)}, {nrec}"); a(f"s_mov_b32 {sr(R+3)}, 0x20000")
    def rnd(dst, src):
        a(f"v_cvt_pk_bf16_f32 {vr(dst)}, {vr(src)}, {vr(src)}")
        a(f"v_lshlrev_b32 {vr(dst)}, 16, {vr(dst)}")
    def allred(op, regs, tmps, quad=True, s32=True):
        steps = (["quad_perm:[1,0,3,2]", "quad_perm:[2,3,0,1]"] if quad else []) + ["row_ror:4", "row_ror:8"]
        pad = max(0, 2 - (len(regs) - 1))
        for st in steps:
            if pad: a(f"s_nop {pad-1}")
            for r in regs: a(f"{op}_dpp {vr(r)}, {vr(r)}, {vr(r)} {st} {DPPF}")
        for sw in ("v_permlane16_swap_b32", "v_permlane32_swap_b32")[:2 if s32 else 1]:
            for r, t in zip(regs, tmps): a(f"v_mov_b32 {vr(t)}, {vr(r)}")
            a(f"s_nop {1 if len(regs) == 1 else 0}")
            for r, t in zip(regs, tmps): a(f"{sw} {vr(r)}, {vr(t)}")
            for r, t in zip(regs, tmps): a(f"{op} {vr(r)}, {vr(r)}, {vr(t)}")
    def sent_ops(regs, tmp):
        rs = list(regs); o = []
        o.append(f"v_max3_u32 {vr(tmp)}, {vr(rs[0])}, {vr(rs[1])}, {vr(rs[2])}"); rs = rs[3:]
        while len(rs) >= 2:
            o.append(f"v_max3_u32 {vr(tmp)}, {vr(tmp)}, {vr(rs[0])}, {vr(rs[1])}"); rs = rs[2:]
        if rs: o.append(f"v_max_u32 {vr(tmp)}, {vr(tmp)}, {vr(rs[0])}")
        o.append(f"v_cmp_eq_u32 vcc, -1, {vr(tmp)}")
        return o
    def poll(label, loads, regs, tmp, spin=None, fail=None, pre=(), spec=(), post=(), sleep=0):
        a(f"s_mov_b32 {sr(sSPIN)}, {SPIN_MAX if spin is None else spin}")
        a(f"s_branch {label}")
        g.lab(label + "_r")
        a(f"s_sub_u32 {sr(sSPIN)}, {sr(sSPIN)}, 1")
        a(f"s_cbranch_scc1 {fail or label + '_x'}")
        if sleep: a(f"s_sleep {sleep}")
        a("s_mov_b64 exec, vcc")
        g.lab(label)
        for l in loads: a(l)
        a("s_mov_b64 exec, -1")
        for l in pre: a(l)
        a("s_waitcnt vmcnt(0)")
        chk = sent_ops(regs, tmp); spec = list(spec)
        per = -(-len(chk) // max(1, len(spec)))
        while chk or spec:
            if spec: a(spec.pop(0))
            for _ in range(per if True else 0):
                if chk: a(chk.pop(0))
        for l in post: a(l)
        a(f"s_cbranch_vccnz {label}_r")
        g.lab(label + "_x")
    def wait_flags(label, v):
        a(f"s_mov_b32 {sr(sSPIN)}, {SPIN_MAX}")
        a(f"v_lshrrev_b32 {vr(v+1)}, 1, {vr(vI)}")
        a(f"v_lshlrev_b32 {vr(v+1)}, 5, {vr(v+1)}")
        a(f"v_and_b32 {vr(v+2)}, 1, {vr(vI)}")
        a(f"v_lshl_add_u32 {vr(v+1)}, {vr(v+2)}, 2, {vr(v+1)}")
        a(f"s_mov_b32 {sr(sT0)}, 0x80808080")
        g.lab(label)
        a(f"global_load_dword {vr(v)}, {vr(v+1)}, {sr(sDBG,2)} sc1")
        a("s_waitcnt vmcnt(0)")
        a(f"v_and_b32 {vr(v+2)}, {sr(sT0)}, {vr(v)}")
        a(f"v_cmp_ne_u32 vcc, {sr(sT0)}, {vr(v+2)}")
        a(f"s_cbranch_vccz {label}_x")
        a("s_sleep 16")
        a(f"s_sub_u32 {sr(sSPIN)}, {sr(sSPIN)}, 4")
        a(f"s_cbranch_scc0 {label}")
        g.lab(label + "_x")
        a(f"s_mul_i32 {sr(sT1)}, {sr(sXCC)}, 0x01010101")
        a(f"s_or_b32 {sr(sT1)}, {sr(sT1)}, {sr(sT0)}")
        a(f"v_cmp_eq_u32 vcc, {sr(sT1)}, {vr(v)}")
        a(f"s_lshl_b32 {sr(sT0)}, {sr(sCLS)}, 1")
        a(f"s_lshr_b32 {sr(sLOC)}, vcc_lo, {sr(sT0)}")
        a(f"s_and_b32 {sr(sLOC)}, {sr(sLOC)}, 3")
    def lds_spin(label, vaddr, off, vt, want, sleep=0):
        g.lab(label)
        a(f"ds_read_b32 {vr(vt)}, {vr(vaddr)} offset:{off}")
        if sleep: a(f"s_sleep {sleep}")
        a("s_waitcnt lgkmcnt(0)")
        a(f"v_cmp_ne_u32 vcc, {want}, {vr(vt)}")
        a(f"s_cbranch_vccnz {label}")
    LOCV = 3 if local else 99

    vLANE, vI, vG = 1, 2, 3
    vMASK = 4
    vCNT = 26
    a(f"s_cmp_ge_u32 s2, {0 if null else 0x100}")
    a("s_cbranch_scc1 L_end")
    a(f"s_load_dwordx16 {sr(4,16)}, s[0:1], 0")
    a(f"s_load_dwordx8 {sr(20,8)}, s[0:1], 64")
    a(f"s_load_dwordx2 {sr(28,2)}, s[0:1], 96")
    if prof:
        for i in range(12): a(f"s_mov_b64 {sr(sST+2*i,2)}, 0")
    stamp(0)
    a(f"v_lshrrev_b32 {vr(vI)}, 6, v0")
    a(f"v_and_b32 {vr(vLANE)}, 63, v0")
    a(f"s_and_b32 {sr(sH)}, s2, 31")
    a(f"v_readfirstlane_b32 {sr(sWAVE)}, {vr(vI)}")
    a(f"s_lshr_b32 {sr(sSUB)}, s2, 5")
    a(f"s_lshr_b32 {sr(sB)}, s2, 7")
    a(f"s_and_b32 {sr(sJ)}, {sr(sSUB)}, 3")
    a(f"s_and_b32 {sr(sCLS)}, s2, 7")
    a(f"s_lshr_b32 {sr(sY)}, s2, 3")
    a(f"s_getreg_b32 {sr(sXCC)}, hwreg(HW_REG_XCC_ID, 0, 3)")
    a(f"v_and_b32 {vr(vI)}, 15, {vr(vLANE)}")
    a(f"v_lshrrev_b32 {vr(vG)}, 4, {vr(vLANE)}")
    a(f"v_lshlrev_b32 v8, 4, {vr(vLANE)}")
    a(f"v_mov_b32 {vr(vCNT)}, {L_CNT}")
    a(f"s_and_b32 {sr(sW4)}, {sr(sWAVE)}, 3")
    a(f"s_lshl_b32 {sr(sSLOT)}, {sr(sH)}, 3")
    a(f"s_add_u32 {sr(sSLOT)}, {sr(sSLOT)}, {sr(sSUB)}")
    a(f"s_lshl_b32 {sr(sSLOT)}, {sr(sSLOT)}, 9")
    a(f"s_cmp_lt_u32 {sr(sY)}, {8+NF}")
    a(f"s_cselect_b32 {sr(sROLE)}, 2, 0")
    a(f"s_cmp_eq_u32 {sr(sCLS)}, {XF}")
    a(f"s_cselect_b32 {sr(sROLE)}, {sr(sROLE)}, 0")
    a(f"s_cmp_lt_u32 {sr(sY)}, 8")
    a(f"s_cselect_b32 {sr(sROLE)}, 1, {sr(sROLE)}")
    a(f"s_cmp_ge_u32 {sr(sWAVE)}, 4")
    a("s_cbranch_scc1 L_helper")

    def make_masks(both):
        a(f"v_and_b32 v10, 1, {vr(vI)}")
        a("v_lshlrev_b32 v10, 4, v10")
        a("v_mov_b32 v9, 0xffff")
        a("v_lshlrev_b32 v10, v10, v9")
        if both: a(f"v_bfe_u32 v9, {vr(vI)}, 1, 2")
        else: a(f"v_lshrrev_b32 v9, 1, {vr(vI)}")
        for r in range(4):
            a(f"v_cmp_eq_u32 vcc, {r}, v9")
            a("s_nop 1")
            a(f"v_cndmask_b32 {vr(vMASK+r)}, 0, v10, vcc")

    vOFF = 8
    vQ, vP, vU = 12, 16, 20
    vMX, vL, vT = 22, 23, 24
    vACC, vA, vF, vS, vRING = 28, 32, 40, 48, 64
    NR = 32
    sPAT = sU0
    a(f"s_lshl_b32 {sr(sT0)}, {sr(sB)}, 5")
    a(f"s_add_u32 {sr(sT0)}, {sr(sT0)}, {sr(sH)}")
    a(f"s_lshl_b32 {sr(sT0)}, {sr(sT0)}, 20")
    a(f"s_lshl_b32 {sr(sT1)}, {sr(sJ)}, 14")
    a(f"s_add_u32 {sr(sT0)}, {sr(sT0)}, {sr(sT1)}")
    a(f"s_lshl_b32 {sr(sT1)}, {sr(sW4)}, 12")
    a(f"s_add_u32 {sr(sT0)}, {sr(sT0)}, {sr(sT1)}")
    a(f"s_mov_b32 {sr(R0+2)}, {15*65536 + 4096}"); a(f"s_mov_b32 {sr(R0+3)}, 0x20000")
    a(f"s_mov_b32 {sr(sSO)}, 0")
    a("s_waitcnt lgkmcnt(0)")
    a(f"s_add_u32 {sr(R0)}, {sr(sK)}, {sr(sT0)}"); a(f"s_addc_u32 {sr(R0+1)}, {sr(sK+1)}, 0")
    stamp(1)
    ops = []
    landed = [-1]
    def wait_vm(n):
        a(f"s_waitcnt vmcnt({n})")
        landed[0] = max(landed[0], len(ops) - 1 - n)
    def slot(n): return vRING + (n % NR) * 4
    done = set()
    def issue(n):
        assert n < NR or (n - NR) in done, n
        R = R0 if n < 64 else R1
        t, r = (n % 64) >> 2, n & 3
        if r == 0 and n > 0: a(f"s_mov_b32 {sr(sSO)}, {t * 65536}")
        if n < len(ramp) or not usepat:
            d = ramp[n] if n < len(ramp) else D
            if len(ops) >= d: wait_vm(d - 1)
        else:
            a(f"s_bitcmp1_b32 {sr(sPAT)}, {n & 31}")
            wait_vm(DH - 1)
            a(f"s_cbranch_scc1 L_w{n}")
            a(f"s_waitcnt vmcnt({D-1})")
            g.lab(f"L_w{n}")
        a(f"buffer_load_dwordx4 {vr(slot(n),4)}, {vr(vOFF)}, {sr(R,4)}, {sr(sSO)} offen offset:{r*1024} {kvpol}")
        ops.append(('ld', n))
    def has(key): return key in ops and ops.index(key) <= landed[0]
    chunks = []
    def k_item(n):
        def f():
            r = n & 3
            for k in range(4):
                a(f"v_dot2_f32_bf16 {vr(vP+r)}, {vr(slot(n)+k)}, {vr(vQ+k)}, {'0' if k == 0 else vr(vP+r)}")
        chunks.append((('ld', n), 5, f, n))
    def k_block(t):
        def f():
            s = vS + t
            a(f"v_add_f32_dpp {vr(vU)}, {vr(vP)}, {vr(vP)} row_ror:8 row_mask:0xf bank_mask:0x3")
            a(f"v_add_f32_dpp {vr(vU+1)}, {vr(vP+1)}, {vr(vP+1)} row_ror:8 row_mask:0xf bank_mask:0x3")
            a(f"v_add_f32_dpp {vr(vU)}, {vr(vP+2)}, {vr(vP+2)} row_ror:8 row_mask:0xf bank_mask:0xc")
            a(f"v_add_f32_dpp {vr(vU+1)}, {vr(vP+3)}, {vr(vP+3)} row_ror:8 row_mask:0xf bank_mask:0xc")
            a("s_nop 0")
            a(f"v_add_f32_dpp {vr(s)}, {vr(vU)}, {vr(vU)} row_shl:4 row_mask:0xf bank_mask:0x5")
            a(f"v_add_f32_dpp {vr(s)}, {vr(vU+1)}, {vr(vU+1)} row_shr:4 row_mask:0xf bank_mask:0xa")
            a("s_nop 1")
            a(f"v_add_f32_dpp {vr(s)}, {vr(s)}, {vr(s)} quad_perm:[1,0,3,2] {DPPF}")
            a("s_nop 1")
            a(f"v_add_f32_dpp {vr(s)}, {vr(s)}, {vr(s)} quad_perm:[2,3,0,1] {DPPF}")
            rnd(s, s)
            a(f"v_mul_f32 {vr(s)}, {sr(sC1)}, {vr(s)}")
            rnd(s, s)
            a(f"v_max_f32 {vr(vMX)}, {vr(vMX)}, {vr(s)}")
        chunks.append((None, 19, f, None))
    def v_item(n):
        def f():
            m = n - 64
            t, r = m >> 2, m & 3
            A = vA + 4 * (m & 1)
            for k in range(4):
                a(f"v_and_b32_dpp {vr(A+k)}, {vr(vS+t)}, {vr(vMASK+k)} row_newbcast:{4*r} {DPPF}")
            if has(('ld', n)):
                a("s_nop 1")
            else:
                a("s_nop 0")
                wait_vm(len(ops) - 1 - ops.index(('ld', n)))
            a(f"v_mfma_f32_16x16x32_bf16 {vr(vACC,4)}, {vr(A,4)}, {vr(slot(n),4)}, {'0' if m == 0 else vr(vACC,4)}")
        chunks.append((('ld', n), 8, f, n))
    for t in range(16):
        for r in range(4): k_item(4*t + r)
        k_block(t)
    def c_max():
        stamp(3)
        allred("v_max_f32", [vMX], [vT], quad=False)
        a(f"v_mul_f32 {vr(vMX)}, {sr(sC0)}, {vr(vMX)}")
        a(f"v_mov_b32 {vr(vL)}, 0")
    chunks.append((None, 24, c_max, None))
    for t0 in range(0, 16, 4):
        def f(t0=t0):
            rs = [vS + t for t in range(t0, t0 + 4)]
            for s in rs: a(f"v_fma_f32 {vr(s)}, {vr(s)}, {sr(sC0)}, -{vr(vMX)}")
            for s in rs: a(f"v_exp_f32 {vr(s)}, {vr(s)}")
            for s in rs:
                a(f"v_add_f32 {vr(vL)}, {vr(vL)}, {vr(s)}")
                a(f"v_cvt_pk_bf16_f32 {vr(s)}, {vr(s)}, {vr(s)}")
        chunks.append((None, 20, f, None))
    def c_sum():
        allred("v_add_f32", [vL], [vT], quad=False)
        a(f"s_lshl_b32 {sr(sT0)}, {sr(sW4)}, 3")
        a(f"s_add_u32 {sr(sT0)}, {sr(sT0)}, {L_ST}")
        a(f"v_mov_b32 {vr(vT)}, {sr(sT0)}")
        a("v_mov_b32 v27, 1")
        a("s_mov_b64 exec, 1")
        a(f"ds_write_b64 {vr(vT)}, {vr(vMX,2)}")
        a(f"ds_add_u32 {vr(vCNT)}, v27 offset:4")
        a("s_mov_b64 exec, -1")
    chunks.append((None, 30, c_sum, None))
    for n in range(64, 128): v_item(n)
    def x_cls_load():
        a(f"s_lshl_b32 {sr(sT0)}, {sr(sCLS)}, 5")
        a(f"v_mov_b32 v46, {sr(sT0)}")
        a("s_mov_b64 exec, 1")
        a(f"global_load_dwordx2 v[44:45], v46, {sr(sDBG,2)} sc1")
        a("s_mov_b64 exec, -1")
        ops.append(('x', 'cls'))
    def x_stats():
        assert has(('x', 'cls')) and ci[0] > 16*5 + 6
        a(f"s_mov_b32 {sr(sSPIN)}, {SPIN_MAX}")
        g.lab("L_cchk")
        a(f"v_readfirstlane_b32 {sr(sT2)}, v44")
        a(f"v_readfirstlane_b32 {sr(sT3)}, v45")
        a(f"s_and_b32 {sr(sT0)}, {sr(sT2)}, {sr(sT3)}")
        a(f"s_and_b32 {sr(sT0)}, {sr(sT0)}, 0x80808080")
        a(f"s_cmp_eq_u32 {sr(sT0)}, 0x80808080")
        if 'noflag' not in dbg: a("s_cbranch_scc0 L_cwait")
        g.lab("L_sspin")
        a(f"ds_read_b32 v20, {vr(vCNT)} offset:4")
        a(f"v_mov_b32 {vr(vT)}, {L_ST}")
        a(f"ds_read_b128 v[12:15], {vr(vT)}")
        a(f"ds_read_b128 v[16:19], {vr(vT)} offset:16")
        a(f"s_mul_i32 {sr(sT0)}, {sr(sXCC)}, 0x01010101")
        a(f"s_or_b32 {sr(sT0)}, {sr(sT0)}, 0x80808080")
        a(f"s_mov_b32 {sr(sT1)}, {sr(sT0)}")
        a(f"s_cmp_eq_u64 {sr(sT0,2)}, {sr(sT2,2)}")
        a(f"s_cselect_b32 {sr(sLOC)}, 3, 0")
        a("s_waitcnt lgkmcnt(0)")
        a("v_cmp_ne_u32 vcc, 4, v20")
        a("s_cbranch_vccnz L_sspin")
        a("v_max3_f32 v20, v12, v14, v16")
        a("v_max_f32 v20, v20, v18")
        for w in range(4): a(f"v_sub_f32 {vr(vF+w)}, {vr(12+2*w)}, v20")
        for w in range(4): a(f"v_exp_f32 {vr(vF+w)}, {vr(vF+w)}")
        a(f"s_lshl_b32 {sr(sT0)}, {sr(sW4)}, 24")
        a(f"v_mul_f32 v21, {vr(vF)}, v13")
        for w in range(1, 4): a(f"v_fmac_f32 v21, {vr(vF+w)}, {vr(13+2*w)}")
        a(f"v_mov_b32 v12, {sr(sT0)}")
        a("v_rcp_f32 v13, v21")
        a("s_mov_b64 exec, 1")
        a(f"s_cmp_eq_u32 {sr(sLOC)}, {LOCV}")
        a("s_cbranch_scc1 L_st_loc")
        a(f"buffer_store_dwordx2 v[20:21], v12, {sr(RWS,4)}, {sr(sSLOT)} offen offset:256 sc1")
        a("s_branch L_st_done")
        g.lab("L_st_loc")
        a(f"buffer_store_dwordx2 v[20:21], v12, {sr(RWS,4)}, {sr(sSLOT)} offen offset:256")
        g.lab("L_st_done")
        ops.append(('x', 'st'))
        a("s_mov_b64 exec, -1")
        for w in range(4): a(f"v_mul_f32 {vr(vF+w)}, {vr(vF+w)}, v13")
        stamp(4)
    def x_addr():
        a(f"v_lshlrev_b32 v9, 5, {vr(vI)}")
        a(f"v_lshl_add_u32 v9, {vr(vG)}, 4, v9")
        a("v_lshrrev_b32 v11, 1, v9")
        a(f"v_add_u32 v9, {L_O}, v9")
        a(f"s_lshl_b32 {sr(sT0)}, {sr(sW4)}, 9")
        a(f"v_add_u32 v10, {sr(sT0)}, v9")
    extra = {NSTAT - max(D, DH) - 2: x_cls_load, NSTAT: x_stats, NSTAT + 1: x_addr}
    ci = [0]
    def run_chunks(bud, force=False):
        while ci[0] < len(chunks):
            needs, cost, fn, frees = chunks[ci[0]]
            if not force:
                if needs is not None and not has(needs): break
                if cost > bud: break
            fn(); bud -= cost; ci[0] += 1
            if frees is not None: done.add(frees)
    for n in range(N0):
        if n == B0N: a("s_barrier")
        issue(n)
        if n == 2:
            a(f"s_add_u32 {sr(R1)}, {sr(sV)}, {sr(sT0)}"); a(f"s_addc_u32 {sr(R1+1)}, {sr(sV+1)}, 0")
            a(f"s_mov_b32 {sr(R1+2)}, {15*65536 + 4096}"); a(f"s_mov_b32 {sr(R1+3)}, 0x20000")
            srd(RWS, sWS, None, WS_END)
            a(f"s_mov_b32 {sr(sC0)}, {LOG2E:#x}")
            a(f"s_mov_b32 {sr(sC1)}, {SCALE:#x}")
            if usepat:
                a(f"s_mov_b32 {sr(sT1)}, {patXO:#x}"); a(f"s_mov_b32 {sr(sT2)}, {patX:#x}")
                a(f"s_cmp_eq_u32 {sr(sCLS)}, {XF}")
                a(f"s_cselect_b32 {sr(sT1)}, {sr(sT1)}, {patO:#x}")
                a(f"s_cselect_b32 {sr(sT2)}, {sr(sT2)}, {patN:#x}")
                a(f"s_cmp_eq_u32 {sr(sROLE)}, 1")
                a(f"s_cselect_b32 {sr(sPAT)}, {sr(sT1)}, {sr(sT2)}")
                a(f"s_cmp_eq_u32 {sr(sROLE)}, 2")
                a(f"s_cselect_b32 {sr(sPAT)}, {patF:#x}, {sr(sPAT)}")
            make_masks(False)
            a(f"v_lshlrev_b32 v9, 4, {vr(vI)}")
            a(f"v_add_u32 v9, {L_Q}, v9")
            a(f"v_mov_b32 {vr(vMX)}, 0xff800000")
    g.lab("L_qspin")
    a(f"ds_read_b32 {vr(vT)}, {vr(vCNT)} offset:16")
    a(f"ds_read_b128 {vr(vQ,4)}, v9")
    a("s_waitcnt lgkmcnt(0)")
    a(f"v_cmp_ne_u32 vcc, 1, {vr(vT)}")
    a("s_cbranch_vccnz L_qspin")
    stamp(2)
    if N0 == NR: run_chunks(5)
    for n in range(N0, 128):
        issue(n)
        if n in extra: extra[n]()
        else: run_chunks(budget)
    run_chunks(0, force=True)
    a("s_mov_b32 exec_hi, 0")
    stamp(5)
    a("s_nop 6")
    a(f"ds_write_b128 v10, {vr(vACC,4)}")
    a("s_mov_b32 exec_lo, 1")
    a(f"ds_add_rtn_u32 v27, {vr(vCNT)}, v27")
    a("s_mov_b32 exec_lo, -1")
    for w in range(4): a(f"ds_read_b128 {vr(48+4*w,4)}, v9 offset:{w*512}")
    a(f"s_cmp_eq_u32 {sr(sLOC)}, {LOCV}")
    a(f"s_cselect_b32 {sr(sT1)}, 3, 7")
    a("s_waitcnt lgkmcnt(3)")
    a(f"v_readfirstlane_b32 {sr(sT0)}, v27")
    def sel(w): return "op_sel_hi:[1,0,1]" if w % 2 == 0 else "op_sel:[0,1,0]"
    for k in (0, 2): a(f"v_pk_mul_f32 {vr(48+k,2)}, {vr(48+k,2)}, {vr(vF,2)} op_sel_hi:[1,0]")
    for w in range(1, 4):
        a(f"s_waitcnt lgkmcnt({3-w})")
        for k in (0, 2): a(f"v_pk_fma_f32 {vr(48+k,2)}, {vr(48+4*w+k,2)}, {vr(vF+(w&2),2)}, {vr(48+k,2)} {sel(w)}")
    a(f"s_cmp_eq_u32 {sr(sT0)}, {sr(sT1)}")
    a("v_cvt_pk_bf16_f32 v48, v48, v49")
    a("v_cvt_pk_bf16_f32 v49, v50, v51")
    a("s_cbranch_scc0 L_pub_far")
    a(f"buffer_store_dwordx2 v[48:49], v11, {sr(RWS,4)}, {sr(sSLOT)} offen")
    stamp(6)
    g.lab("L_sdone")
    a("s_barrier")
    a("s_branch L_fin")
    g.lab("L_pub_far")
    a(f"s_cmp_eq_u32 {sr(sT0)}, 3")
    a("s_cbranch_scc0 L_sdone")
    a(f"buffer_store_dwordx2 v[48:49], v11, {sr(RWS,4)}, {sr(sSLOT)} offen sc1")
    stamp(6)
    a("s_branch L_sdone")
    g.lab("L_cwait")
    a(f"s_sub_u32 {sr(sSPIN)}, {sr(sSPIN)}, 4")
    a("s_cbranch_scc1 L_sspin")
    a("s_sleep 16")
    a("s_mov_b64 exec, 1")
    a(f"global_load_dwordx2 v[44:45], v46, {sr(sDBG,2)} sc1")
    a("s_mov_b64 exec, -1")
    a("s_waitcnt vmcnt(0)")
    a("s_branch L_cchk")

    g.lab("L_helper")
    a(f"s_cmp_eq_u32 {sr(sW4)}, 0")
    a("s_cbranch_scc0 L_other")
    if hprio: a(f"s_setprio {hprio}")
    hW = 64
    a(f"v_lshlrev_b32 v11, 13, {vr(vG)}")
    a(f"v_lshl_add_u32 v11, {vr(vI)}, 4, v11")
    a(f"v_lshlrev_b32 v12, 5, {vr(vLANE)}")
    a(f"v_lshl_add_u32 v63, {vr(vI)}, 2, {vr(vG)}")
    a("v_lshlrev_b32 v63, 1, v63")
    a(f"s_lshl_b32 {sr(sT2)}, {sr(sSUB)}, 7")
    a(f"s_lshl_b32 {sr(sT0)}, {sr(sH)}, 8")
    a(f"s_lshl_b32 {sr(sSO)}, {sr(sSUB)}, 19")
    a(f"s_lshl_b32 {sr(sU0)}, {sr(sSLOT)}, 3")
    a(f"s_add_u32 {sr(sU0)}, {sr(sU0)}, {WS_IN}")
    for k in range(4): a(f"v_mov_b32 {vr(16+k)}, -1")
    a("s_waitcnt lgkmcnt(0)")
    srd(RWS, sWS, None, WS_END)
    stamp(1)
    for u in range(4):
        a(f"buffer_store_dwordx4 v[16:19], v8, {sr(RWS,4)}, {sr(sU0)} offen offset:{u*1024}")
    srd(R0, sX, None, 2048)
    srd(R1, sWQ, sT0, 511*8192 + 256)
    a(f"buffer_load_dwordx4 v[20:23], v12, {sr(R0,4)}, 0 offen")
    a(f"buffer_load_dwordx4 v[128:131], v12, {sr(R0,4)}, 0 offen offset:16")
    def tile_loads():
        a(f"buffer_load_ushort v14, v63, {sr(R0,4)}, {sr(sT2)} offen")
        a(f"buffer_load_ushort v15, v63, {sr(R0,4)}, {sr(sT2)} offen offset:1024")
        for t in range(16):
            a(f"buffer_load_dwordx4 {vr(hW+4*t,4)}, v11, {sr(R1,4)}, {sr(sSO)} offen {wqpol}")
            a(f"s_add_u32 {sr(sSO)}, {sr(sSO)}, 0x8000")
    if not qb0: a("s_barrier")
    tile_loads()
    if qb0: a("s_barrier")
    make_masks(True)
    a(f"v_and_b32 v12, 31, {vr(vLANE)}")
    a("v_lshlrev_b32 v12, 4, v12")
    a(f"v_lshrrev_b32 v13, 5, {vr(vLANE)}")
    a("v_lshl_add_u32 v60, v13, 14, v12")
    a(f"s_lshl_b32 {sr(sU1)}, {sr(sH)}, 15")
    a(f"s_lshl_b32 {sr(sT0)}, {sr(sSUB)}, 9")
    a(f"s_add_u32 {sr(sU1)}, {sr(sU1)}, {sr(sT0)}")
    a(f"s_add_u32 {sr(sU1)}, {sr(sU1)}, {WS_IN}")
    a(f"v_and_b32 v13, 1, {vr(vG)}")
    a("v_lshlrev_b32 v13, 3, v13")
    a(f"v_lshl_add_u32 v62, {vr(vI)}, 4, v13")
    a(f"v_add_u32 v62, {L_Q}, v62")
    for k in range(4): a(f"v_mov_b32 {vr(56+k)}, 0")
    a(f"s_mov_b32 {sr(sDRY)}, 0")
    a("s_waitcnt vmcnt(18)")
    for k in range(8):
        src = 20 + k if k < 4 else 124 + k
        a(f"v_and_b32 {vr(33+2*k)}, 0xffff0000, {vr(src)}")
        a(f"v_lshlrev_b32 {vr(32+2*k)}, 16, {vr(src)}")
    for k in range(4): a(f"v_pk_add_f32 {vr(48+2*k,2)}, {vr(32+4*k,2)}, {vr(34+4*k,2)}")
    a("v_pk_add_f32 v[48:49], v[48:49], v[50:51]")
    a("v_pk_add_f32 v[52:53], v[52:53], v[54:55]")
    a("v_pk_add_f32 v[48:49], v[48:49], v[52:53]")
    a("v_add_f32 v28, v48, v49")
    allred("v_add_f32", [28], [29], s32=False)
    a("v_mul_f32 v28, 0x3b000000, v28")
    for k in range(8): a(f"v_pk_add_f32 {vr(32+2*k,2)}, {vr(32+2*k,2)}, v[28:29] op_sel_hi:[1,0] neg_lo:[0,1] neg_hi:[0,1]")
    a("v_pk_mul_f32 v[30:31], v[32:33], v[32:33]")
    for k in range(1, 8): a(f"v_pk_fma_f32 v[30:31], {vr(32+2*k,2)}, {vr(32+2*k,2)}, v[30:31]")
    a("v_add_f32 v30, v30, v31")
    allred("v_add_f32", [30], [29], s32=False)
    a("v_mul_f32 v30, 0x3b000000, v30")
    def ln_scale(vmean, vvar):
        rnd(vvar, vvar)
        a(f"v_add_f32 {vr(vvar)}, {EPS:#x}, {vr(vvar)}")
        rnd(vvar, vvar)
        a(f"v_sqrt_f32 {vr(vvar)}, {vr(vvar)}")
        rnd(vmean, vmean)
        rnd(vvar, vvar)
        a(f"v_rcp_f32 {vr(vvar)}, {vr(vvar)}")
    ln_scale(28, 30)
    a("v_mov_b32 v29, v28")
    a("v_mov_b32 v31, v30")
    a("s_nop 1")
    a("v_permlane32_swap_b32 v28, v29")
    a("v_permlane32_swap_b32 v30, v31")
    g.lab("L_tile")
    a("s_waitcnt vmcnt(16)")
    a("v_lshlrev_b32 v14, 16, v14")
    a("v_lshlrev_b32 v15, 16, v15")
    a("v_sub_f32 v14, v14, v28")
    a("v_sub_f32 v15, v15, v29")
    rnd(14, 14); rnd(15, 15)
    a("v_mul_f32 v14, v14, v30")
    a("v_mul_f32 v15, v15, v31")
    a("v_cvt_pk_bf16_f32 v14, v14, v14")
    a("v_cvt_pk_bf16_f32 v15, v15, v15")
    a("s_nop 0")
    for t in range(16):
        a(f"v_mov_b32_dpp {vr(40+t)}, v14 row_newbcast:{t} row_mask:0xf bank_mask:0x3")
        a(f"v_mov_b32_dpp {vr(40+t)}, v15 row_newbcast:{t} row_mask:0xf bank_mask:0xc")
    for t in range(16):
        A = 32 + 4 * (t & 1)
        for k in range(4): a(f"v_and_b32 {vr(A+k)}, {vr(40+t)}, {vr(vMASK+k)}")
        a(f"s_waitcnt vmcnt({15-t})")
        a("s_nop 0")
        a(f"v_mfma_f32_16x16x32_bf16 v[56:59], {vr(A,4)}, {vr(hW+4*t,4)}, v[56:59]")
    a(f"s_cmp_eq_u32 {sr(sDRY)}, 0")
    a("s_nop 5")
    a("s_cbranch_scc0 L_qmore")
    stamp(3)
    if not forcefb:
        for jj in range(4):
            a(f"buffer_store_dwordx4 v[56:59], v60, {sr(RWS,4)}, {sr(sU1)} offen")
            if jj < 3: a(f"s_add_u32 {sr(sU1)}, {sr(sU1)}, 4096")
    poll("L_pollQ", [f"buffer_load_dwordx4 {vr(32+4*u,4)}, v8, {sr(RWS,4)}, {sr(sU0)} offen offset:{u*1024} sc1" for u in range(4)],
         range(32, 48), 48, spin=QTRY, fail="L_qfail")
    a("v_pk_add_f32 v[32:33], v[32:33], v[36:37]"); a("v_pk_add_f32 v[34:35], v[34:35], v[38:39]")
    a("v_pk_add_f32 v[40:41], v[40:41], v[44:45]"); a("v_pk_add_f32 v[42:43], v[42:43], v[46:47]")
    a("v_pk_add_f32 v[32:33], v[32:33], v[40:41]"); a("v_pk_add_f32 v[34:35], v[34:35], v[42:43]")
    for k in range(4): a(f"v_mov_b32 {vr(36+k)}, {vr(32+k)}")
    for k in range(4): a(f"v_permlane32_swap_b32 {vr(32+k)}, {vr(36+k)}")
    a("v_pk_add_f32 v[56:57], v[32:33], v[36:37]"); a("v_pk_add_f32 v[58:59], v[34:35], v[38:39]")
    g.lab("L_qput")
    a("v_cvt_pk_bf16_f32 v32, v56, v57")
    a("v_cvt_pk_bf16_f32 v33, v58, v59")
    a("v_mov_b32 v34, 1")
    a("ds_write_b64 v62, v[32:33]")
    a(f"ds_write_b32 {vr(vCNT)}, v34 offset:16")
    a("s_mov_b64 exec, -1")
    stamp(2)
    a(f"s_cmp_eq_u32 {sr(sROLE)}, 0")
    a("s_cbranch_scc1 L_fin")
    a("s_branch L_role")
    g.lab("L_qfail")
    a(f"s_mov_b32 {sr(sDRY)}, 8")
    g.lab("L_qmore")
    a(f"s_sub_u32 {sr(sDRY)}, {sr(sDRY)}, 1")
    a(f"s_cmp_eq_u32 {sr(sDRY)}, 0")
    a("s_cbranch_scc1 L_qown")
    a(f"s_and_b32 {sr(sSO)}, {sr(sSO)}, 0x3fffff")
    a(f"s_lshr_b32 {sr(sT2)}, {sr(sSO)}, 12")
    tile_loads()
    a("s_branch L_tile")
    g.lab("L_qown")
    a(f"s_lshl_b32 {sr(sT0)}, {sr(sB)}, 5")
    a(f"s_bfm_b64 exec, 32, {sr(sT0)}")
    a("s_branch L_qput")

    g.lab("L_other")
    a(f"s_cmp_eq_u32 {sr(sW4)}, 3")
    a("s_cbranch_scc0 L_noinit")
    for k in range(4): a(f"v_mov_b32 {vr(12+k)}, 0")
    a(f"ds_write_b128 {vr(vCNT)}, v[12:15]")
    a(f"ds_write_b128 {vr(vCNT)}, v[12:15] offset:16")
    if pf:
        a(f"v_lshlrev_b32 v20, 7, {vr(vLANE)}")
        a(f"s_lshl_b32 {sr(sT0)}, {sr(sSLOT)}, 5")
        a(f"s_mul_i32 {sr(sT1)}, s2, {43*128}")
        a("s_waitcnt lgkmcnt(0)")
        srd(R0, sWO, sT0, 16384)
        srd(R1, sW1, sT1, 43*128)
        srd(R2, sW2, sT1, 43*128)
        if pfwait: a(f"s_sleep {pfwait}")
        a(f"s_mov_b32 {sr(sSO)}, 0x2000")
        a(f"buffer_load_dword v21, v20, {sr(R0,4)}, 0 offen {pfpol}")
        a(f"buffer_load_dword v22, v20, {sr(R0,4)}, {sr(sSO)} offen {pfpol}")
        a(f"buffer_load_dword v23, v20, {sr(R1,4)}, 0 offen {pfpol}")
        a(f"buffer_load_dword v24, v20, {sr(R2,4)}, 0 offen {pfpol}")
    g.lab("L_noinit")
    a("s_waitcnt lgkmcnt(0)")
    a("s_barrier")
    a("s_waitcnt vmcnt(0)")
    a(f"s_cmp_eq_u32 {sr(sROLE)}, 0")
    a("s_cbranch_scc1 L_fin")
    srd(R0, sX, None, 2048)
    srd(RWS, sWS, None, WS_END)
    make_masks(True)
    a(f"s_cmp_eq_u32 {sr(sW4)}, 1")
    a("s_cbranch_scc1 L_loader")
    a(f"s_cmp_eq_u32 {sr(sW4)}, 2")
    a("s_cbranch_scc0 L_role")
    a(f"s_cmp_eq_u32 {sr(sROLE)}, 1")
    a("s_cbranch_scc0 L_role")
    if 'noclear' in dbg: a("s_branch L_clr2")
    for k in range(4): a(f"v_mov_b32 {vr(16+k)}, -1")
    a(f"s_lshr_b32 {sr(sT0)}, {sr(sY)}, 1")
    a(f"s_lshl_b32 {sr(sT0)}, {sr(sT0)}, 3")
    a(f"s_add_u32 {sr(sT0)}, {sr(sT0)}, {sr(sCLS)}")
    a(f"s_lshl_b32 {sr(sT0)}, {sr(sT0)}, 12")
    a(f"s_and_b32 {sr(sT1)}, {sr(sY)}, 1")
    a(f"s_lshl_b32 {sr(sT1)}, {sr(sT1)}, 11")
    a(f"s_add_u32 {sr(sT0)}, {sr(sT0)}, {sr(sT1)}")
    a(f"buffer_store_dwordx4 v[16:19], v8, {sr(RWS,4)}, {sr(sT0)} offen sc1")
    a(f"buffer_store_dwordx4 v[16:19], v8, {sr(RWS,4)}, {sr(sT0)} offen offset:1024 sc1")
    a(f"s_lshl_b32 {sr(sT0)}, {sr(sCLS)}, 11")
    a(f"s_lshl_b32 {sr(sT1)}, {sr(sY)}, 7")
    a(f"s_add_u32 {sr(sT0)}, {sr(sT0)}, {sr(sT1)}")
    a(f"s_add_u32 {sr(sT0)}, {sr(sT0)}, {WS_A}")
    a("s_mov_b64 exec, 0xff")
    a(f"buffer_store_dwordx4 v[16:19], v8, {sr(RWS,4)}, {sr(sT0)} offen sc1")
    a(f"buffer_store_dwordx4 v[16:19], v8, {sr(RWS,4)}, {sr(sT0)} offen offset:1024 sc1")
    a("s_mov_b64 exec, -1")
    a(f"s_cmp_eq_u32 {sr(sCLS)}, {XF}")
    a("s_cbranch_scc0 L_clr2")
    a(f"v_and_b32 v12, 31, {vr(vLANE)}")
    a("v_lshlrev_b32 v12, 4, v12")
    a(f"v_lshrrev_b32 v13, 5, {vr(vLANE)}")
    a("v_lshl_add_u32 v12, v13, 12, v12")
    a(f"s_lshl_b32 {sr(sT0)}, {sr(sY)}, 9")
    a(f"s_add_u32 {sr(sT0)}, {sr(sT0)}, {WS_Y}")
    for k in range(NF // 2):
        a(f"buffer_store_dwordx4 v[16:19], v12, {sr(RWS,4)}, {sr(sT0)} offen sc1")
        a(f"s_add_u32 {sr(sT0)}, {sr(sT0)}, 0x2000")
        a("s_waitcnt vmcnt(2)")
    g.lab("L_clr2")
    a(f"s_lshl_b32 {sr(sT0)}, {sr(sCLS)}, 5")
    a(f"s_add_u32 {sr(sT0)}, {sr(sT0)}, {sr(sY)}")
    a(f"s_or_b32 {sr(sT1)}, {sr(sXCC)}, 0x80")
    a(f"v_mov_b32 v12, {sr(sT0)}")
    a(f"v_mov_b32 v13, {sr(sT1)}")
    a("s_waitcnt vmcnt(0)")
    a("s_mov_b64 exec, 1")
    if 'noflag' not in dbg: a(f"global_store_byte v12, v13, {sr(sDBG,2)} sc1")
    a("s_mov_b64 exec, -1")
    a("s_branch L_role")
    g.lab("L_loader")
    if 'noload' in dbg: a("s_branch L_loaded")
    if ldelay: lds_spin("L_ldw", vCNT, 16, 12, 1, sleep=4)
    a(f"v_lshrrev_b32 v9, 3, {vr(vLANE)}")
    a(f"v_and_b32 v10, 7, {vr(vLANE)}")
    a(f"s_mov_b32 {sr(sT3)}, {L_W}")
    a(f"s_cmp_eq_u32 {sr(sROLE)}, 2")
    a("s_cbranch_scc1 L_loadF")
    if 'noO' in dbg: a("s_branch L_loaded")
    a(f"s_lshl_b32 {sr(sT0)}, {sr(sCLS)}, 17")
    a(f"s_lshl_b32 {sr(sT1)}, {sr(sY)}, 7")
    a(f"s_add_u32 {sr(sT0)}, {sr(sT0)}, {sr(sT1)}")
    srd(R2, sWO, sT0, 3*(1 << 20) + 127*1024 + 128)
    a("v_lshlrev_b32 v9, 10, v9")
    a("v_lshl_add_u32 v9, v10, 4, v9")
    a(f"s_mul_i32 {sr(sT2)}, {sr(sCLS)}, {rotO}")
    a(f"s_mov_b32 {sr(sT1)}, 64")
    g.lab("L_ldO")
    a(f"s_and_b32 {sr(sT2)}, {sr(sT2)}, 63")
    a(f"s_lshr_b32 {sr(sSO)}, {sr(sT2)}, 4")
    a(f"s_lshl_b32 {sr(sSO)}, {sr(sSO)}, 7")
    a(f"s_and_b32 {sr(sT0)}, {sr(sT2)}, 15")
    a(f"s_add_u32 {sr(sSO)}, {sr(sSO)}, {sr(sT0)}")
    a(f"s_lshl_b32 {sr(sSO)}, {sr(sSO)}, 13")
    a(f"s_lshl_b32 m0, {sr(sT2)}, 10")
    a(f"s_waitcnt vmcnt({WO-1})")
    a(f"buffer_load_dwordx4 v9, {sr(R2,4)}, {sr(sSO)} offen {wopol} lds")
    a(f"s_add_u32 {sr(sT2)}, {sr(sT2)}, 1")
    a(f"s_sub_u32 {sr(sT1)}, {sr(sT1)}, 1")
    a(f"s_cmp_lg_u32 {sr(sT1)}, 0")
    a("s_cbranch_scc1 L_ldO")
    a("s_branch L_loaded")
    g.lab("L_loadF")
    if 'noF' in dbg: a("s_branch L_loaded")
    a(f"s_sub_u32 {sr(sT1)}, {sr(sY)}, 8")
    a(f"s_lshl_b32 {sr(sT0)}, {sr(sT1)}, 7")
    srd(R2, sW1, sT0, 0)
    a(f"s_sub_u32 {sr(R2+2)}, {512*2752}, {sr(sT0)}")
    a(f"s_lshl_b32 {sr(sT0)}, {sr(sT1)}, 16")
    srd(R3, sW2, sT0, 0)
    a(f"s_sub_u32 {sr(R3+2)}, {1376*1024}, {sr(sT0)}")
    a("v_mul_u32_u24 v9, 2752, v9")
    a("v_lshl_add_u32 v9, v10, 4, v9")
    a(f"s_mul_i32 {sr(sT2)}, {sr(sT1)}, {rot1}")
    a(f"s_mul_i32 {sr(sT3)}, {sr(sT1)}, {rot2}")
    a(f"s_mov_b32 {sr(sT1)}, 64")
    g.lab("L_ldF")
    a(f"s_and_b32 {sr(sT2)}, {sr(sT2)}, 63")
    a(f"s_and_b32 {sr(sT3)}, {sr(sT3)}, 63")
    a(f"s_mul_i32 {sr(sT0)}, {sr(sT2)}, {8*2752}")
    a(f"v_add_u32 v10, {sr(sT0)}, v9")
    a(f"s_lshl_b32 {sr(sT0)}, {sr(sT3)}, 10")
    a(f"v_add_u32 v11, {sr(sT0)}, v8")
    a(f"s_lshl_b32 m0, {sr(sT2)}, 10")
    a(f"s_waitcnt vmcnt({WF-1})")
    if 'now1' not in dbg: a(f"buffer_load_dwordx4 v10, {sr(R2,4)}, 0 offen {w1pol} lds")
    a(f"s_mul_i32 {sr(sT0)}, {sr(sT3)}, {W2P}")
    a(f"s_add_u32 m0, {sr(sT0)}, {L_W2}")
    a(f"s_waitcnt vmcnt({WF-1})")
    if 'now2' not in dbg: a(f"buffer_load_dwordx4 v11, {sr(R3,4)}, 0 offen {w2pol} lds")
    a(f"s_add_u32 {sr(sT2)}, {sr(sT2)}, 1")
    a(f"s_add_u32 {sr(sT3)}, {sr(sT3)}, 1")
    a(f"s_sub_u32 {sr(sT1)}, {sr(sT1)}, 1")
    a(f"s_cmp_lg_u32 {sr(sT1)}, 0")
    a("s_cbranch_scc1 L_ldF")
    g.lab("L_loaded")
    a("v_mov_b32 v9, 1")
    a("s_waitcnt vmcnt(0)")
    a(f"ds_write_b32 {vr(vCNT)}, v9 offset:8")
    stamp(3)
    g.lab("L_role")
    if 'norole' in dbg: a("s_branch L_fin")
    a("s_setprio 1")
    lds_spin("L_stg", vCNT, 8, 12, 1, sleep=16)
    a(f"v_and_b32 v11, 3, {vr(vLANE)}")
    a("v_lshlrev_b32 v11, 3, v11")
    a(f"s_cmp_eq_u32 {sr(sROLE)}, 2")
    a("s_cbranch_scc1 L_roleF")

    vB = 64
    a(f"s_lshl_b32 {sr(sU0)}, {sr(sW4)}, 3")
    a(f"s_add_u32 {sr(sU0)}, {sr(sU0)}, {sr(sCLS)}")
    a(f"s_lshl_b32 {sr(sU0)}, {sr(sU0)}, 12")
    a(f"s_lshl_b32 {sr(sU1)}, {sr(sY)}, 7")
    a(f"v_bfe_u32 v10, {vr(vLANE)}, 3, 1")
    a("v_lshlrev_b32 v10, 5, v10")
    a(f"v_bfe_u32 v12, {vr(vLANE)}, 2, 1")
    a("v_add_u32 v10, v10, v12")
    a(f"v_lshl_add_u32 v10, {vr(vG)}, 2, v10")
    a("v_lshl_add_u32 v10, v10, 7, v11")
    a(f"s_lshl_b32 {sr(sT3)}, {sr(sW4)}, 14")
    a(f"v_add_u32 v10, {sr(sT3)}, v10")
    for nu in range(4):
        for u in range(2):
            for p in range(4):
                row = 64*u + 16*(p >> 1) + 2*(p & 1)
                a(f"ds_read_b64_tr_b16 {vr(vB+16*nu+8*u+2*p,2)}, v10 offset:{L_W + row*128 + nu*32}")
        a("s_waitcnt lgkmcnt(0)")
    vRX, vRB, vRO, vRA, vRY = 128, 129, 130, 131, 132
    a(f"s_lshl_b32 {sr(sT0)}, {sr(sY)}, 2")
    a(f"s_add_u32 {sr(sT0)}, {sr(sT0)}, {sr(sW4)}")
    a(f"s_lshl_b32 {sr(sT1)}, {sr(sT0)}, 7")
    a(f"s_add_u32 {sr(sT1)}, {sr(sT1)}, {WS_Y}")
    srd(R3, sWS, sT1, (NF-1)*4096 + 128)
    a(f"s_lshr_b32 {sr(sT0)}, {sr(sY)}, 1")
    a(f"s_lshl_b32 {sr(sT0)}, {sr(sT0)}, 8")
    a(f"s_and_b32 {sr(sC1)}, {sr(sY)}, 1")
    a(f"s_lshl_b32 {sr(sT1)}, {sr(sC1)}, 6")
    a(f"s_add_u32 {sr(sT1)}, {sr(sT1)}, {sr(sT0)}")
    a(f"s_lshl_b32 {sr(sT2)}, {sr(sW4)}, 4")
    a(f"s_add_u32 {sr(sT1)}, {sr(sT1)}, {sr(sT2)}")
    a(f"v_and_b32 v14, 7, {vr(vLANE)}")
    a(f"v_bfe_u32 v12, {vr(vLANE)}, 4, 1")
    a("v_lshlrev_b32 v12, 7, v12")
    a("v_lshl_add_u32 v12, v14, 1, v12")
    a(f"v_add_u32 v12, {sr(sT1)}, v12")
    a(f"v_lshrrev_b32 v13, 5, {vr(vLANE)}")
    a(f"v_lshl_add_u32 {vr(vRO)}, v13, 10, v12")
    srd(R1, sB2, None, 1024)
    a(f"buffer_load_ushort {vr(vRX)}, {vr(vRO)}, {sr(R0,4)}, 0 offen")
    a(f"buffer_load_ushort {vr(vRB)}, v12, {sr(R1,4)}, 0 offen")
    a(f"v_lshrrev_b32 v12, 3, {vr(vLANE)}")
    a("v_lshlrev_b32 v13, 11, v12")
    a("v_lshl_add_u32 v13, v14, 2, v13")
    a(f"s_lshl_b32 {sr(sT2)}, {sr(sW4)}, 5")
    a(f"s_add_u32 {sr(sT0)}, {sr(sT0)}, {sr(sT2)}")
    a(f"s_add_u32 {sr(sT0)}, {sr(sT0)}, {WS_A}")
    a(f"v_add_u32 {vr(vRA)}, {sr(sT0)}, v13")
    a(f"s_lshl_b32 {sr(sC1)}, {sr(sC1)}, 4")
    a(f"s_sub_u32 {sr(sC1)}, 16, {sr(sC1)}")
    a("v_lshlrev_b32 v12, 12, v12")
    a(f"v_lshl_add_u32 {vr(vRY)}, v14, 4, v12")
    for u in range(1, 3): a(f"v_add_u32 {vr(vRY+u)}, {u*0x8000}, {vr(vRY)}")
    wait_flags("L_cntO", 12)
    a(f"v_lshlrev_b32 {vr(vRX)}, 16, {vr(vRX)}")
    a(f"v_lshlrev_b32 {vr(vRB)}, 16, {vr(vRB)}")
    a(f"v_and_b32 v10, 7, {vr(vI)}")
    a("v_lshlrev_b32 v10, 9, v10")
    a(f"v_lshrrev_b32 v11, 3, {vr(vI)}")
    a("v_lshl_add_u32 v10, v11, 6, v10")
    a(f"v_lshl_add_u32 v10, {vr(vG)}, 4, v10")
    a("v_mul_u32_u24 v22, 0xaaaa, v11")
    a("v_add_u32 v22, 0x4444, v22")
    a(f"v_add_u32 v9, {L_RED}, v8")
    a(f"s_lshl_b32 {sr(sT2)}, {sr(sW4)}, 10")
    a(f"v_add_u32 v11, {sr(sT2)}, v9")
    a(f"v_and_b32 v23, 1, {vr(vG)}")
    a("v_lshlrev_b32 v21, 10, v23")
    a(f"v_lshrrev_b32 v12, 1, {vr(vG)}")
    a("v_lshl_add_u32 v21, v12, 6, v21")
    a(f"v_lshl_add_u32 v21, {vr(vI)}, 2, v21")
    a("v_lshlrev_b32 v23, 11, v23")
    a(f"s_lshl_b32 {sr(sT2)}, {sr(sCLS)}, 11")
    a(f"s_add_u32 {sr(sT2)}, {sr(sT2)}, {sr(sU1)}")
    a(f"s_add_u32 {sr(sT2)}, {sr(sT2)}, {WS_A}")
    srd(R2, sWS, sT2, 0 if dry else 2048)
    srd(R1, sOUT, None, 0 if dry else 2048)
    a(f"s_mov_b32 {sr(sDRY)}, {0 if dry else SPIN_MAX}")
    a(f"s_mov_b32 {sr(sU2)}, {0 if dry else 3}")
    a(f"v_mov_b32 v135, {0 if dry else 1}")
    if dry: a("s_branch L_Orun")
    g.lab("L_Oreal")
    lds_spin("L_waitst", vCNT, 4, 12, 4, sleep=8)
    poll("L_pollOs", [f"buffer_load_dwordx2 {vr(12+2*r,2)}, v23, {sr(RWS,4)}, {sr(sU0)} offen offset:{r*512+256} sc1" for r in range(4)],
         range(12, 20), 20, sleep=24)
    a("v_max3_f32 v20, v12, v14, v16")
    a("v_max_f32 v20, v20, v18")
    for r in range(4): a(f"v_sub_f32 {vr(28+r)}, {vr(12+2*r)}, v20")
    for r in range(4): a(f"v_exp_f32 {vr(28+r)}, {vr(28+r)}")
    a("s_nop 0")
    for r in range(4): a(f"v_mul_f32 {vr(28+r)}, {vr(28+r)}, {vr(13+2*r)}")
    a("v_add_f32 v20, v28, v29")
    a("v_add_f32 v12, v30, v31")
    a("v_add_f32 v20, v20, v12")
    a("v_rcp_f32 v20, v20")
    for k in range(8): a(f"v_mov_b32 {vr(40+k)}, 0")
    for r in range(4): a(f"v_mul_f32 {vr(28+r)}, {vr(28+r)}, v20")
    stamp(4)
    a("s_barrier")
    stamp(5)
    g.lab("L_Orun")
    def osm(nu, u): return f"v_smfmac_f32_16x16x64_bf16 {vr(32+4*nu,4)}, {vr(12+4*u,4)}, {vr(vB+16*nu+8*u,8)}, v22"
    poll("L_pollO", [f"buffer_load_dwordx4 {vr(12+4*u,4)}, v10, {sr(RWS,4)}, {sr(sU0)} offen offset:{u*128} sc1" for u in range(2)],
         range(12, 20), 20, spin=sr(sDRY), pre=["s_nop 1"] + [f"v_mov_b32 {vr(32+k)}, 0" for k in range(8)] + ["s_nop 0"],
         spec=[osm(0, 0), osm(0, 1), osm(1, 0)], post=[osm(1, 1)])
    stamp(6)
    def oep(nu):
        return [f"v_pk_mul_f32 {vr(32+4*nu,2)}, {vr(32+4*nu,2)}, v[28:29]",
                f"v_pk_fma_f32 {vr(32+4*nu,2)}, {vr(34+4*nu,2)}, v[30:31], {vr(32+4*nu,2)}",
                f"v_add_f32 {vr(48+nu)}, {vr(32+4*nu)}, {vr(33+4*nu)}"]
    e0, e1, e2, e3 = oep(0), oep(1), oep(2), oep(3)
    a(osm(2, 0)); a(osm(2, 1)); a(e0[0]); a(osm(3, 0)); a(e0[1]); a(osm(3, 1)); a(e0[2])
    for l in e1: a(l)
    a("s_nop 0")
    for l in e2: a(l)
    for l in e3: a(l)
    a("ds_write_b128 v11, v[48:51]")
    a("s_mov_b64 exec, 1")
    a(f"ds_add_rtn_u32 v20, {vr(vCNT)}, v135 offset:12")
    a("s_mov_b64 exec, -1")
    for w in range(4): a(f"ds_read_b128 {vr(32+4*w,4)}, v9 offset:{w*1024}")
    a("s_waitcnt lgkmcnt(2)")
    a(f"v_readfirstlane_b32 {sr(sT0)}, v20")
    a("v_pk_add_f32 v[32:33], v[32:33], v[36:37]")
    a("v_pk_add_f32 v[34:35], v[34:35], v[38:39]")
    a("s_waitcnt lgkmcnt(1)")
    a("v_pk_add_f32 v[32:33], v[32:33], v[40:41]")
    a("v_pk_add_f32 v[34:35], v[34:35], v[42:43]")
    a("s_waitcnt lgkmcnt(0)")
    a("v_pk_add_f32 v[32:33], v[32:33], v[44:45]")
    a("v_pk_add_f32 v[34:35], v[34:35], v[46:47]")
    a(f"s_cmp_eq_u32 {sr(sT0)}, {sr(sU2)}")
    a("v_permlane32_swap_b32 v32, v33")
    a("v_permlane32_swap_b32 v34, v35")
    a("v_add_f32 v32, v32, v33")
    a("v_add_f32 v34, v34, v35")
    a("s_cbranch_scc0 L_Odone")
    a("v_cvt_pk_bf16_f32 v32, v32, v34")
    a(f"buffer_store_dword v32, v21, {sr(R2,4)}, 0 offen sc1")
    stamp(7)
    g.lab("L_Odone")
    a(f"s_cmp_eq_u32 {sr(sCLS)}, {XF}")
    a("s_cbranch_scc0 L_Rdone")
    def red8(b):
        a(f"v_permlane32_swap_b32 {vr(b)}, {vr(b+1)}")
        a(f"v_permlane32_swap_b32 {vr(b+2)}, {vr(b+3)}")
        a(f"v_add_f32 {vr(b)}, {vr(b)}, {vr(b+1)}")
        a(f"v_add_f32 {vr(b+2)}, {vr(b+2)}, {vr(b+3)}")
        a("s_nop 1")
        a(f"v_permlane16_swap_b32 {vr(b)}, {vr(b+2)}")
        a(f"v_add_f32 {vr(b)}, {vr(b)}, {vr(b+2)}")
        a("s_nop 1")
        a(f"v_add_f32_dpp {vr(b)}, {vr(b)}, {vr(b)} row_ror:8 {DPPF}")
    poll("L_pollRa", [f"buffer_load_dword {vr(12+r)}, {vr(vRA)}, {sr(RWS,4)}, 0 offen offset:{(r&1)*1024 + (r>>1)*128} sc1" for r in range(4)],
         range(12, 16), 16, spin=sr(sDRY))
    for k in range(4): a(f"v_lshlrev_b32 {vr(12+k)}, {sr(sC1)}, {vr(12+k)}")
    for k in range(4): a(f"v_and_b32 {vr(12+k)}, 0xffff0000, {vr(12+k)}")
    a("s_nop 1")
    red8(12)
    rnd(12, 12)
    a(f"v_add_f32 v136, {vr(vRX)}, v12")
    rnd(136, 136)
    poll("L_pollRy", [f"buffer_load_dwordx4 {vr(32+4*u,4)}, {vr(vRY+u)}, {sr(R3,4)}, 0 offen sc1" for u in range(3)], range(32, 44), 16, spin=sr(sDRY),
         post=["v_pk_add_f32 v[12:13], v[32:33], v[36:37]", "v_pk_add_f32 v[14:15], v[34:35], v[38:39]",
               "v_pk_add_f32 v[12:13], v[12:13], v[40:41]", "v_pk_add_f32 v[14:15], v[14:15], v[42:43]"])
    stamp(8)
    red8(12)
    rnd(12, 12)
    a(f"v_add_f32 v12, v12, {vr(vRB)}")
    rnd(12, 12)
    a("v_add_f32 v12, v12, v136")
    a("v_cvt_pk_bf16_f32 v12, v12, v12")
    a(f"buffer_store_short v12, {vr(vRO)}, {sr(R1,4)}, 0 offen")
    stamp(9)
    g.lab("L_Rdone")
    a(f"s_cmp_eq_u32 {sr(sDRY)}, 0")
    a("s_cbranch_scc0 L_fin")
    a("s_waitcnt vmcnt(0) lgkmcnt(0)")
    a(f"s_mov_b32 {sr(R2+2)}, 2048")
    a(f"s_mov_b32 {sr(R1+2)}, 2048")
    a(f"s_mov_b32 {sr(sDRY)}, {SPIN_MAX}")
    a(f"s_mov_b32 {sr(sU2)}, 3")
    a("v_mov_b32 v135, 1")
    a("s_branch L_Oreal")

    g.lab("L_roleF")
    vW1 = 64
    vW2 = 128
    vA1 = 192
    vA2 = 224
    vAC = 240
    sF = sU0
    a(f"s_sub_u32 {sr(sF)}, {sr(sY)}, 8")
    a(f"s_lshl_b32 {sr(sU1)}, {sr(sF)}, 7")
    a(f"v_lshrrev_b32 v12, 1, {vr(vG)}")
    a("v_lshlrev_b32 v12, 7, v12")
    a(f"v_lshl_add_u32 v12, {vr(vI)}, 3, v12")
    a(f"v_and_b32 v15, 1, {vr(vG)}")
    a("v_lshl_add_u32 v12, v15, 2, v12")
    a("v_and_b32 v13, 0xc0, v12")
    a("v_and_b32 v14, 63, v12")
    a("v_lshl_add_u32 v13, v13, 1, v14")
    a(f"s_lshl_b32 {sr(sU2)}, {sr(sW4)}, 9")
    a(f"buffer_load_dword v40, v13, {sr(R0,4)}, {sr(sU2)} offen")
    a(f"buffer_load_dword v41, v13, {sr(R0,4)}, {sr(sU2)} offen offset:64")
    a("v_lshlrev_b32 v12, 1, v12")
    a(f"v_add_u32 v12, {sr(sU2)}, v12")
    a(f"v_add_u32 v46, {L_HN}, v12")
    srd(R1, sB1, None, 2752)
    a(f"s_lshl_b32 {sr(sT0)}, {sr(sW4)}, 5")
    a(f"v_lshl_add_u32 v13, {vr(vI)}, 1, {sr(sT0)}")
    a(f"v_add_u32 v14, {sr(sU1)}, v13")
    a(f"buffer_load_ushort v44, v14, {sr(R1,4)}, 0 offen")
    a("v_lshl_add_u32 v13, v15, 7, v13")
    a(f"v_add_u32 v47, {L_RR}, v13")
    a(f"v_and_b32 v14, 1, {vr(vI)}")
    a(f"v_bfe_u32 v15, {vr(vI)}, 1, 1")
    a("v_lshlrev_b32 v13, 7, v14")
    a("v_lshl_add_u32 v13, v15, 6, v13")
    a(f"v_lshl_add_u32 v13, {vr(vG)}, 4, v13")
    a(f"v_add_u32 v48, {L_RR}, v13")
    a("v_mul_u32_u24 v51, 0xaaaa, v15")
    a("v_add_u32 v51, 0x4444, v51")
    a("v_mul_u32_u24 v50, 0xaaaa, v14")
    a("v_add_u32 v50, 0x4444, v50")
    a(f"v_bfe_u32 v13, {vr(vI)}, 2, 1")
    a("v_lshlrev_b32 v13, 10, v13")
    a("v_lshl_add_u32 v13, v14, 6, v13")
    a(f"v_lshl_add_u32 v13, {vr(vG)}, 4, v13")
    a(f"v_add_u32 v49, {L_HN}, v13")
    a(f"s_lshl_b32 {sr(sT0)}, {sr(sW4)}, 3")
    a(f"s_add_u32 {sr(sT0)}, {sr(sT0)}, {L_FS}")
    a(f"v_mov_b32 v52, {sr(sT0)}")
    a("v_xor_b32 v53, 8, v52")
    a(f"v_lshlrev_b32 v54, 11, {vr(vG)}")
    a(f"v_lshl_add_u32 v54, {vr(vI)}, 4, v54")
    a("v_add_u32 v55, 0x2000, v54")
    a(f"s_add_u32 {sr(sU2)}, {sr(sU2)}, {WS_A}")
    a(f"v_cmp_gt_u32 vcc, 8, {vr(vI)}")
    for k in range(4): a(f"v_and_b32 {vr(60+k)}, 0x3f803f80, {vr(vMASK+k)}")
    for k in range(4):
        a(f"v_cndmask_b32 {vr(56+k)}, 0, {vr(60+k)}, vcc")
        a(f"v_cndmask_b32 {vr(60+k)}, {vr(60+k)}, 0, vcc")
    for k in range(16): a(f"v_mov_b32 {vr(vA2+k)}, 0")
    a(f"v_bfe_u32 v12, {vr(vLANE)}, 3, 1")
    a(f"v_bfe_u32 v13, {vr(vLANE)}, 2, 1")
    a("v_lshl_add_u32 v10, v12, 5, v13")
    a(f"v_lshl_add_u32 v10, {vr(vG)}, 2, v10")
    a(f"v_mul_u32_u24 v10, {W2P}, v10")
    a(f"s_lshl_b32 {sr(sT0)}, {sr(sW4)}, 8")
    a(f"s_add_u32 {sr(sT0)}, {sr(sT0)}, {L_W2}")
    a(f"v_add3_u32 v10, v10, v11, {sr(sT0)}")
    for nu in range(8):
        for p in range(4):
            a(f"ds_read_b64_tr_b16 {vr(vW2+8*nu+2*p,2)}, v10 offset:{(16*(p>>1) + 2*(p&1))*W2P + nu*32}")
        if nu & 1: a("s_waitcnt lgkmcnt(0)")
    a("v_lshlrev_b32 v10, 5, v13")
    a("v_lshl_add_u32 v10, v12, 4, v10")
    a(f"v_lshl_add_u32 v10, {vr(vG)}, 1, v10")
    a("v_lshl_add_u32 v10, v10, 7, v11")
    a(f"s_lshl_b32 {sr(sT0)}, {sr(sW4)}, 5")
    a(f"v_add_u32 v10, {sr(sT0)}, v10")
    for s in range(8):
        for p in range(4):
            a(f"ds_read_b64_tr_b16 {vr(vW1+8*s+2*p,2)}, v10 offset:{L_W + (64*s + 8*(p>>1) + (p&1))*128}")
        if s & 1: a("s_waitcnt lgkmcnt(0)")
    wait_flags("L_cntF", 12)
    a("v_and_b32 v42, 0xffff0000, v40")
    a("v_and_b32 v43, 0xffff0000, v41")
    a("v_lshlrev_b32 v40, 16, v40")
    a("v_lshlrev_b32 v41, 16, v41")
    a("v_lshlrev_b32 v44, 16, v44")
    a(f"s_lshl_b32 {sr(sT0)}, {sr(sF)}, 12")
    a(f"s_lshl_b32 {sr(sT1)}, {sr(sW4)}, 10")
    a(f"s_add_u32 {sr(sT0)}, {sr(sT0)}, {sr(sT1)}")
    a(f"s_add_u32 {sr(sT0)}, {sr(sT0)}, {WS_Y}")
    srd(R3, sWS, sT0, 0 if dry else 1024)
    a(f"s_mov_b32 {sr(sM0)}, 0x000f000f"); a(f"s_mov_b32 {sr(sM0+1)}, 0x000f000f")
    a(f"s_mov_b32 {sr(sDRY)}, {0 if dry else SPIN_MAX}")
    if dry: a("s_branch L_Frun")
    g.lab("L_Freal")
    for k in range(12): a(f"v_mov_b32 {vr(vAC+k)}, 0")
    stamp(4)
    a("s_barrier")
    stamp(5)
    g.lab("L_Frun")
    nb = [0]
    def fbar():
        nb[0] += 1
        a(f"s_cmp_eq_u32 {sr(sDRY)}, 0")
        a(f"s_cbranch_scc1 L_fb{nb[0]}")
        a("s_waitcnt lgkmcnt(0)")
        a("s_barrier")
        g.lab(f"L_fb{nb[0]}")
    poll("L_pollF", [f"buffer_load_dwordx4 {vr(vA1+8*ch+4*u,4)}, {vr(54+u)}, {sr(RWS,4)}, {sr(sU2)} offen offset:{ch*256} sc1" for ch in range(2) for u in range(2)],
         range(vA1, vA1+16), 32, spin=sr(sDRY),
         spec=[f"v_mfma_f32_16x16x32_bf16 v[28:31], v[56:59], {vr(vA1,4)}, 0",
               f"v_mfma_f32_16x16x32_bf16 v[28:31], v[56:59], {vr(vA1+4,4)}, v[28:31]",
               f"v_mfma_f32_16x16x32_bf16 v[28:31], v[60:63], {vr(vA1+8,4)}, v[28:31]",
               f"v_mfma_f32_16x16x32_bf16 v[28:31], v[60:63], {vr(vA1+12,4)}, v[28:31]", "s_nop 0"],
         post=["s_nop 2"])
    stamp(6)
    def rnd4(base):
        a(f"v_cvt_pk_bf16_f32 {vr(base)}, {vr(base)}, {vr(base+1)}")
        a(f"v_cvt_pk_bf16_f32 {vr(base+2)}, {vr(base+2)}, {vr(base+3)}")
        a(f"v_and_b32 {vr(base+1)}, 0xffff0000, {vr(base)}")
        a(f"v_and_b32 {vr(base+3)}, 0xffff0000, {vr(base+2)}")
        a(f"v_lshlrev_b32 {vr(base)}, 16, {vr(base)}")
        a(f"v_lshlrev_b32 {vr(base+2)}, 16, {vr(base+2)}")
    rnd4(28)
    a("v_pk_add_f32 v[28:29], v[28:29], v[40:41]")
    a("v_pk_add_f32 v[30:31], v[30:31], v[42:43]")
    rnd4(28)
    a("v_pk_add_f32 v[32:33], v[28:29], v[30:31]")
    a("v_pk_mul_f32 v[34:35], v[28:29], v[28:29]")
    a("v_pk_fma_f32 v[34:35], v[30:31], v[30:31], v[34:35]")
    a("v_add_f32 v32, v32, v33")
    a("v_add_f32 v33, v34, v35")
    allred("v_add_f32", [32, 33], [34, 35])
    a("ds_write_b64 v52, v[32:33]")
    fbar()
    a("ds_read_b64 v[34:35], v53")
    a("s_waitcnt lgkmcnt(0)")
    a("v_pk_add_f32 v[32:33], v[32:33], v[34:35]")
    a("v_mul_f32 v32, 0x3b000000, v32")
    a("v_mul_f32 v33, 0x3b000000, v33")
    a("v_fma_f32 v33, -v32, v32, v33")
    a("v_max_f32 v36, 0, v33")
    ln_scale(32, 36)
    a("v_pk_add_f32 v[28:29], v[28:29], v[32:33] op_sel_hi:[1,0] neg_lo:[0,1] neg_hi:[0,1]")
    a("v_pk_add_f32 v[30:31], v[30:31], v[32:33] op_sel_hi:[1,0] neg_lo:[0,1] neg_hi:[0,1]")
    rnd4(28)
    a("v_pk_mul_f32 v[28:29], v[28:29], v[36:37] op_sel_hi:[1,0]")
    a("v_pk_mul_f32 v[30:31], v[30:31], v[36:37] op_sel_hi:[1,0]")
    a("v_cvt_pk_bf16_f32 v28, v28, v29")
    a("v_cvt_pk_bf16_f32 v29, v30, v31")
    a("ds_write_b64 v46, v[28:29]")
    fbar()
    for s in range(8): a(f"ds_read_b128 {vr(vA1+4*s,4)}, v49 offset:{s*128}")
    for s in range(8):
        a(f"s_waitcnt lgkmcnt({7-s})")
        a(f"v_smfmac_f32_16x16x64_bf16 {vr(vAC,4)}, {vr(vA1+4*s,4)}, {vr(vW1+8*s,8)}, v50")
    stamp(7)
    a("s_nop 7")
    a(f"v_add_f32 v28, {vr(vAC)}, {vr(vAC+1)}")
    rnd(28, 28)
    a("v_add_f32 v28, v28, v44")
    rnd(28, 28)
    a("v_max_f32 v28, 0, v28")
    a("v_mul_f32 v28, v28, v28")
    a("v_cvt_pk_bf16_f32 v28, v28, v28")
    a("ds_write_b16 v47, v28")
    a(f"s_mov_b64 exec, {sr(sM0,2)}")
    fbar()
    for q in range(4):
        a(f"ds_read_b128 {vr(vA2+4*q,4)}, v48")
        if q < 3: a(f"s_lshl_b64 exec, {sr(sM0,2)}, {4*(q+1)}")
    a("s_mov_b64 exec, -1")
    a(f"s_cmp_eq_u32 {sr(sLOC)}, {LOCV}")
    for q in range(4):
        a(f"s_waitcnt lgkmcnt({3-q})")
        for aa in range(2):
            a(f"v_smfmac_f32_16x16x64_bf16 {vr(vAC+4+4*aa,4)}, {vr(vA2+4*q,4)}, {vr(vW2+8*(4*aa+q),8)}, v51")
    a("s_nop 5")
    a("s_cbranch_scc0 L_F2far")
    a(f"v_pk_add_f32 v[28:29], {vr(vAC+4,2)}, {vr(vAC+6,2)}")
    a(f"v_pk_add_f32 v[30:31], {vr(vAC+8,2)}, {vr(vAC+10,2)}")
    a(f"buffer_store_dwordx4 v[28:31], v8, {sr(R3,4)}, 0 offen")
    stamp(8)
    g.lab("L_Fdone")
    a(f"s_cmp_eq_u32 {sr(sDRY)}, 0")
    a("s_cbranch_scc0 L_fin")
    a("s_waitcnt vmcnt(0) lgkmcnt(0)")
    a(f"s_mov_b32 {sr(R3+2)}, 1024")
    a(f"s_mov_b32 {sr(sDRY)}, {SPIN_MAX}")
    a("s_branch L_Freal")
    g.lab("L_F2far")
    a(f"v_pk_add_f32 v[28:29], {vr(vAC+4,2)}, {vr(vAC+6,2)}")
    a(f"v_pk_add_f32 v[30:31], {vr(vAC+8,2)}, {vr(vAC+10,2)}")
    a(f"buffer_store_dwordx4 v[28:31], v8, {sr(R3,4)}, 0 offen sc1")
    stamp(8)
    a("s_branch L_Fdone")

    g.lab("L_fin")
    if diag:
        dwg, dwave, didx, dK = diag
        a(f"s_cmp_eq_u32 s2, {dwg}"); a("s_cbranch_scc0 L_end")
        a(f"s_cmp_eq_u32 {sr(sWAVE)}, {dwave}"); a("s_cbranch_scc0 L_end")
        a("s_waitcnt lgkmcnt(0)")
        if didx < 0: a(f"s_mov_b32 {sr(sT0)}, {sr(sXCC)}")
        else: a(f"s_sub_u32 {sr(sT0)}, {sr(sST+2*didx)}, {sr(sST)}")
        a(f"s_min_u32 {sr(sT0)}, {sr(sT0)}, 10000")
        a(f"s_mul_i32 {sr(sT0)}, {sr(sT0)}, {dK}")
        a(f"s_add_u32 {sr(sT0)}, {sr(sT0)}, 4000")
        g.lab("L_diag")
        a(f"s_memrealtime {sr(sT2,2)}")
        a("s_waitcnt lgkmcnt(0)")
        a(f"s_sub_u32 {sr(sT2)}, {sr(sT2)}, {sr(sST)}")
        a(f"s_cmp_lt_u32 {sr(sT2)}, {sr(sT0)}")
        a("s_cbranch_scc1 L_diag")
    if store_prof:
        a("s_mov_b64 exec, -1")
        a(f"s_memrealtime {sr(sST+20,2)}")
        a(f"s_mov_b32 {sr(sST+22)}, {sr(sXCC)}")
        a("s_waitcnt lgkmcnt(0)")
        a(f"s_lshl_b32 {sr(sT0)}, s2, 3")
        a(f"s_add_u32 {sr(sT0)}, {sr(sT0)}, {sr(sWAVE)}")
        a(f"s_mul_i32 {sr(sT0)}, {sr(sT0)}, 96")
        a(f"s_add_u32 {sr(sT0)}, {sr(sT0)}, {STAMP_OFF}")
        a(f"s_add_u32 {sr(sWS)}, {sr(sWS)}, {sr(sT0)}"); a(f"s_addc_u32 {sr(sWS+1)}, {sr(sWS+1)}, 0")
        a("s_mov_b64 exec, 1")
        a("v_mov_b32 v8, 0")
        for i in range(6):
            for k in range(4): a(f"v_mov_b32 {vr(64+4*i+k)}, {sr(sST+4*i+k)}")
            a(f"global_store_dwordx4 v8, {vr(64+4*i,4)}, {sr(sWS,2)} offset:{16*i}")
    g.lab("L_end")
    a("s_endpgm")

    nv = 252
    out = [HEADER.rstrip("\n"),
           f"; @launch grid=(256,1,1) block=(512,1,1) lds={L_END}",
           '.amdgcn_target "amdgcn-amd-amdhsa--gfx950"', ".text", f".globl {NAME}_kernel", ".p2align 8",
           f".type {NAME}_kernel,@function", f"{NAME}_kernel:"]
    out += g.L
    out += ['.section .rodata,"a"', ".p2align 6", f".amdhsa_kernel {NAME}_kernel",
            f"  .amdhsa_next_free_vgpr {nv}", "  .amdhsa_next_free_sgpr 100", f"  .amdhsa_accum_offset {nv}",
            "  .amdhsa_group_segment_fixed_size 0", "  .amdhsa_kernarg_size 104",
            "  .amdhsa_user_sgpr_count 2", "  .amdhsa_user_sgpr_kernarg_segment_ptr 1",
            "  .amdhsa_system_sgpr_workgroup_id_x 1", "  .amdhsa_float_denorm_mode_32 3",
            ".end_amdhsa_kernel"]
    return "\n".join(out) + "\n"

if __name__ == "__main__":
    kw = eval("dict(" + (sys.argv[2] if len(sys.argv) > 2 else "") + ")")
    open(sys.argv[1], "w").write(gen(**kw))
```

```python
import struct
def f2u(x): return struct.unpack("<I", struct.pack("<f", x))[0]
STAMP_OFF = 128 << 20
def emit(L):
    g = a = L['g']; sr = L['sr']; vr = L['vr']; allred = L['allred']
    sT0, sT2, sST, sWAVE, sXCC, sWS, vLANE = (L[k] for k in ('sT0','sT2','sST','sWAVE','sXCC','sWS','vLANE'))
    diag, agg, store_prof = L['diag'], L['agg'], L['store_prof']
    if diag:
        dwg, dwave, didx, dK = diag
        a(f"s_cmp_eq_u32 s2, {dwg}"); a("s_cbranch_scc0 L_end")
        a(f"s_cmp_eq_u32 {sr(sWAVE)}, {dwave}"); a("s_cbranch_scc0 L_end")
        a("s_waitcnt lgkmcnt(0)")
        a(f"s_sub_u32 {sr(sT0)}, {sr(sST+2*didx)}, {sr(sST)}")
        a(f"s_min_u32 {sr(sT0)}, {sr(sT0)}, 10000")
        a(f"s_mul_i32 {sr(sT0)}, {sr(sT0)}, {dK}")
        a(f"s_add_u32 {sr(sT0)}, {sr(sT0)}, 4000")
        g.lab("L_diag")
        a(f"s_memrealtime {sr(sT2,2)}"); a("s_waitcnt lgkmcnt(0)")
        a(f"s_sub_u32 {sr(sT2)}, {sr(sT2)}, {sr(sST)}")
        a(f"s_cmp_lt_u32 {sr(sT2)}, {sr(sT0)}"); a("s_cbranch_scc1 L_diag")
    if store_prof:
        a("s_mov_b64 exec, -1")
        a(f"s_memrealtime {sr(sST+20,2)}")
        a(f"s_and_b32 {sr(sST+22)}, {sr(sXCC)}, 7")
        a("s_waitcnt lgkmcnt(0)")
        a(f"s_lshl_b32 {sr(sT0)}, s2, 3")
        a(f"s_add_u32 {sr(sT0)}, {sr(sT0)}, {sr(sWAVE)}")
        a(f"s_mul_i32 {sr(sT0)}, {sr(sT0)}, 96")
        a(f"s_add_u32 {sr(sT0)}, {sr(sT0)}, {STAMP_OFF}")
        a(f"s_add_u32 {sr(sWS)}, {sr(sWS)}, {sr(sT0)}"); a(f"s_addc_u32 {sr(sWS+1)}, {sr(sWS+1)}, 0")
        a("s_mov_b64 exec, 1")
        a("v_mov_b32 v8, 0")
        for i in range(6):
            for k in range(4): a(f"v_mov_b32 {vr(64+4*i+k)}, {sr(sST+4*i+k)}")
            a(f"global_store_dwordx4 v8, {vr(64+4*i,4)}, {sr(sWS,2)} offset:{16*i}{' sc1' if agg else ''}")
    if agg:
        awave, aidx, cmask, ylo, yhi, op, K = agg
        a("s_cmp_eq_u32 s2, 255"); a("s_cbranch_scc0 L_end")
        a(f"s_cmp_eq_u32 {sr(sWAVE)}, 0"); a("s_cbranch_scc0 L_end")
        a("s_mov_b64 exec, -1")
        g.lab("L_ag0")
        a(f"s_memrealtime {sr(sT2,2)}"); a("s_waitcnt lgkmcnt(0)")
        a(f"s_sub_u32 {sr(sT2)}, {sr(sT2)}, {sr(sST)}"); a(f"s_cmp_lt_u32 {sr(sT2)}, 3500"); a("s_cbranch_scc1 L_ag0")
        a(f"s_sub_u32 {sr(sWS)}, {sr(sWS)}, {255*768}"); a(f"s_subb_u32 {sr(sWS+1)}, {sr(sWS+1)}, 0")
        a(f"v_mul_u32_u24 v8, 768, {vr(vLANE)}")
        for i in range(4):
            a(f"global_load_dword {vr(12+i)}, v8, {sr(sWS,2)} sc1")
            a(f"global_load_dword {vr(16+i)}, v8, {sr(sWS,2)} offset:{awave*96 + aidx*8} sc1")
            a(f"v_add_u32 v8, {64*768}, v8")
        a("s_waitcnt vmcnt(0)")
        for i in range(8):
            a(f"v_subrev_u32 {vr(12+i)}, {sr(sST)}, {vr(12+i)}"); a(f"v_cvt_f32_i32 {vr(12+i)}, {vr(12+i)}")
        a("v_min3_f32 v12, v12, v13, v14"); a("v_min_f32 v12, v12, v15")
        allred("v_min_f32", 12, 13)
        a("v_mov_b32 v20, 0")
        cnt_ = 0
        for i in range(4):
            m = 0
            for l in range(64):
                w_ = l + 64*i
                if (cmask >> (w_ & 7)) & 1 and ylo <= (w_ >> 3) < yhi: m |= 1 << l; cnt_ += 1
            a(f"v_sub_f32 {vr(16+i)}, {vr(16+i)}, v12")
            a(f"s_mov_b32 exec_lo, {m & 0xffffffff:#x}"); a(f"s_mov_b32 exec_hi, {m >> 32:#x}")
            a(f"v_{'max' if op == 'max' else 'add'}_f32 v20, v20, {vr(16+i)}")
            a("s_mov_b64 exec, -1")
        allred("v_max_f32" if op == 'max' else "v_add_f32", 20, 13)
        a(f"v_mul_f32 v20, {f2u(K if op == 'max' else K / cnt_):#x}, v20")
        a("v_add_f32 v20, v20, v12")
        a("v_cvt_i32_f32 v20, v20")
        a("s_nop 0")
        a(f"v_readfirstlane_b32 {sr(sT0)}, v20")
        a(f"s_max_i32 {sr(sT0)}, {sr(sT0)}, -300"); a(f"s_min_i32 {sr(sT0)}, {sr(sT0)}, 60000")
        a(f"s_add_u32 {sr(sT0)}, {sr(sT0)}, 4000")
        g.lab("L_ag1")
        a(f"s_memrealtime {sr(sT2,2)}"); a("s_waitcnt lgkmcnt(0)")
        a(f"s_sub_u32 {sr(sT2)}, {sr(sT2)}, {sr(sST)}"); a(f"s_cmp_lt_u32 {sr(sT2)}, {sr(sT0)}"); a("s_cbranch_scc1 L_ag1")
```

```python
import struct, sys
NAME = "sequential_preLN__mha_block_cached__dense_activation_squared_relu__decode"

def f2u(x): return struct.unpack("<I", struct.pack("<f", x))[0]
LOG2E = f2u(1.4426950408889634)
SCALE = f2u(128 ** -0.5)
EPS = f2u(1e-5)
NF = 22

WS_P = 0
WS_A = 0x20000
WS_Y = 0x30000
WS_R = 0x50000
WS_QF = 0x60000
WS_QD = 0x80000
WS_IN = 0x100000
WS_END = 0x200000
STAMP_OFF = 128 << 20

C_COMB, C_STAT, C_STG, C_ORED, C_Q, C_QP, C_TRIG, C_TRIG2 = [16*i for i in range(8)]
L_Q = 128
L_ST = L_Q + 256
L_FS = L_ST + 64
L_RR = L_FS + 128
L_O = 1024
L_HN = L_O + 2048
L_RED = L_HN + 2048
L_W = L_RED + 4096
W2P = 1056
L_W2 = L_W + 0x10000
L_END = L_W2 + 64 * W2P
SPIN_MAX = 400000

HEADER = open("cdna_kernels/" + NAME + ".s.ref").read().split("; Override launch")[0]

class G:
    def __init__(s): s.L = []
    def __call__(s, x): s.L.append("  " + x)
    def lab(s, x): s.L.append(x + ":")
    def c(s, x): s.L.append("  ; " + x)

def gen(prof=False, diag=None, agg=None, dbg='', local=True, forcefb=False,
        D=5, DH=6, DE=8, NE=8, N0=40, budget=40, ramp=(), XF=2, WO=5, WF=5, W2W=16, QTRY=32,
        NSTAT=92, NTRIG=126, NT2=127, chk=(60,), r0=10, rs=4, kF=16, kO=0, kX=0,
        lin='1 2 30 8 800 80 200 480 a0 53c 40 140 0 100 0 400 0 0', qmode=1, pfw2=True, sleepR=2, mimic=False, rpipe=False,
        w1pol='', qsleep=0, qprio=0):
    g = G()
    a = g
    dbg = set(dbg.split())
    if agg: prof = True
    store_prof = prof
    if diag: prof = True
    lin = [int(t_, 16) & ~3 for t_ in lin.split()]
    def vr(r, n=1): return f"v{r}" if n == 1 else f"v[{r}:{r+n-1}]"
    def sr(r, n=1): return f"s{r}" if n == 1 else f"s[{r}:{r+n-1}]"
    DPPF = "row_mask:0xf bank_mask:0xf"
    sX, sK, sV, sWQ, sWO, sBX, sW1, sB1 = 4, 6, 8, 10, 12, 14, 16, 18
    sW2, sB2, sOUT, sDBG, sWS = 20, 22, 24, 26, 28
    sWAVE, sH, sB, sSUB, sW4 = 30, 31, 32, 34, 35
    sT0, sT1, sT2, sT3 = 36, 37, 38, 39
    R0, R1, R2, R3, RWS = 40, 44, 48, 52, 56
    sSO, sSPIN, sSLOT, sXCC = 60, 61, 62, 63
    sM0 = 64
    sC0, sC1 = 66, 67
    sCLS, sY, sLOC, sU3 = 68, 69, 70, 71
    sST = 72
    sU0, sU1, sU2, sROLE = 96, 97, 98, 99
    def stamp(i):
        if prof: a(f"s_memrealtime {sr(sST+2*i,2)}")
    def srd(R, base, off_sgpr, nrec):
        if off_sgpr is None:
            a(f"s_mov_b64 {sr(R,2)}, {sr(base,2)}")
        else:
            a(f"s_add_u32 {sr(R)}, {sr(base)}, {sr(off_sgpr)}"); a(f"s_addc_u32 {sr(R+1)}, {sr(base+1)}, 0")
        a(f"s_mov_b32 {sr(R+2)}, {nrec}"); a(f"s_mov_b32 {sr(R+3)}, 0x20000")
    def rnd(dst, src):
        a(f"v_cvt_pk_bf16_f32 {vr(dst)}, {vr(src)}, {vr(src)}")
        a(f"v_lshlrev_b32 {vr(dst)}, 16, {vr(dst)}")
    def allred(op, r, t, quad=True, s32=True):
        for st in (["quad_perm:[1,0,3,2]", "quad_perm:[2,3,0,1]"] if quad else []) + ["row_ror:4", "row_ror:8"]:
            a("s_nop 1")
            a(f"{op}_dpp {vr(r)}, {vr(r)}, {vr(r)} {st} {DPPF}")
        for sw in ("v_permlane16_swap_b32", "v_permlane32_swap_b32")[:2 if s32 else 1]:
            a(f"v_mov_b32 {vr(t)}, {vr(r)}")
            a("s_nop 1")
            a(f"{sw} {vr(r)}, {vr(t)}")
            a(f"{op} {vr(r)}, {vr(r)}, {vr(t)}")
    def sent_ops(regs, tmp):
        rs_ = list(regs); o = []
        if len(rs_) == 1: return [f"v_cmp_eq_u32 vcc, -1, {vr(rs_[0])}"]
        o.append(f"v_max3_u32 {vr(tmp)}, {vr(rs_[0])}, {vr(rs_[1])}, {vr(rs_[2])}"); rs_ = rs_[3:]
        while len(rs_) >= 2:
            o.append(f"v_max3_u32 {vr(tmp)}, {vr(tmp)}, {vr(rs_[0])}, {vr(rs_[1])}"); rs_ = rs_[2:]
        if rs_: o.append(f"v_max_u32 {vr(tmp)}, {vr(tmp)}, {vr(rs_[0])}")
        o.append(f"v_cmp_eq_u32 vcc, -1, {vr(tmp)}")
        return o
    def poll(label, loads, regs, tmp, spin=SPIN_MAX, fail=None, pre=(), spec=(), per=99, post=(), sleep=0, pipe=False):
        a(f"s_mov_b32 {sr(sSPIN)}, {spin}")
        if pipe:
            for l in loads: a(l)
        a(f"s_branch {label}")
        g.lab(label + "_r")
        a(f"s_sub_u32 {sr(sSPIN)}, {sr(sSPIN)}, 1")
        a(f"s_cbranch_scc1 {fail or label + '_x'}")
        if sleep: a(f"s_sleep {sleep}")
        a("s_mov_b64 exec, vcc")
        g.lab(label)
        for l in loads: a(l)
        a("s_mov_b64 exec, -1")
        for l in pre: a(l)
        a(f"s_waitcnt vmcnt({len(loads) if pipe else 0})")
        chk_ = sent_ops(regs, tmp); spec = list(spec)
        while spec:
            a(spec.pop(0))
            for _ in range(per):
                if chk_: a(chk_.pop(0))
        for l in chk_: a(l)
        for l in post: a(l)
        a(f"s_cbranch_vccnz {label}_r")
        g.lab(label + "_x")
    def flags_addr(v, t):
        a(f"v_lshrrev_b32 {vr(v)}, 1, {vr(vI)}")
        a(f"v_lshlrev_b32 {vr(v)}, 5, {vr(v)}")
        a(f"v_and_b32 {vr(t)}, 1, {vr(vI)}")
        a(f"v_lshl_add_u32 {vr(v)}, {vr(t)}, 2, {vr(v)}")
    def flags_eval(v, t):
        a(f"s_mov_b32 {sr(sT0)}, 0x80808080")
        a(f"s_mul_i32 {sr(sT1)}, {sr(sXCC)}, 0x01010101")
        a(f"v_and_b32 {vr(t)}, {sr(sT0)}, {vr(v)}")
        a(f"v_cmp_eq_u32 {sr(sT2,2)}, {sr(sT1)}, {vr(v)}")
        a(f"v_cmp_ne_u32 vcc, {sr(sT0)}, {vr(t)}")
        a(f"s_lshl_b32 {sr(sT0)}, {sr(sCLS)}, 1")
        a(f"s_lshr_b32 {sr(sLOC)}, {sr(sT2)}, {sr(sT0)}")
        a(f"s_and_b32 {sr(sLOC)}, {sr(sLOC)}, 3")
        a(f"s_and_b32 {sr(sU3)}, vcc_lo, 0xffff")
    def wait_flags(label, v):
        a(f"s_mov_b32 {sr(sSPIN)}, {SPIN_MAX}")
        flags_addr(v+1, v+2)
        g.lab(label)
        a(f"global_load_dword {vr(v)}, {vr(v+1)}, {sr(sDBG,2)} sc1")
        a("s_waitcnt vmcnt(0)")
        flags_eval(v, v+2)
        a(f"s_cbranch_scc0 {label}_x")
        a("s_sleep 16")
        a(f"s_sub_u32 {sr(sSPIN)}, {sr(sSPIN)}, 4")
        a(f"s_cbranch_scc0 {label}")
        g.lab(label + "_x")
    def lds_spin(label, off, vt, want, sleep=0):
        g.lab(label)
        a(f"ds_read_b32 {vr(vt)}, {vr(vZ)} offset:{off}")
        if sleep: a(f"s_sleep {sleep}")
        a("s_waitcnt lgkmcnt(0)")
        a(f"v_cmp_ne_u32 vcc, {want}, {vr(vt)}")
        a(f"s_cbranch_vccnz {label}")
    def make_masks(both):
        a(f"v_and_b32 v10, 1, {vr(vI)}")
        a("v_lshlrev_b32 v10, 4, v10")
        a("v_mov_b32 v9, 0xffff")
        a("v_lshlrev_b32 v10, v10, v9")
        if both: a(f"v_bfe_u32 v9, {vr(vI)}, 1, 2")
        else: a(f"v_lshrrev_b32 v9, 1, {vr(vI)}")
        for r in range(4):
            a(f"v_cmp_eq_u32 vcc, {r}, v9")
            a("s_nop 1")
            a(f"v_cndmask_b32 {vr(vMASK+r)}, 0, v10, vcc")
    def ln_scale(vmean, vvar):
        rnd(vvar, vvar)
        a(f"v_add_f32 {vr(vvar)}, {EPS:#x}, {vr(vvar)}")
        rnd(vvar, vvar)
        a(f"v_sqrt_f32 {vr(vvar)}, {vr(vvar)}")
        rnd(vmean, vmean)
        rnd(vvar, vvar)
        a(f"v_rcp_f32 {vr(vvar)}, {vr(vvar)}")
    LOCV = 3 if local else 99

    vLANE, vI, vG = 1, 2, 3
    vMASK = 4
    vZ, vONE = 26, 27
    a(f"s_load_dwordx16 {sr(4,16)}, s[0:1], 0")
    a(f"s_load_dwordx8 {sr(20,8)}, s[0:1], 64")
    a(f"s_load_dwordx2 {sr(28,2)}, s[0:1], 96")
    a(f"s_lshr_b32 {sr(sT0)}, s2, 8")
    a("s_cbranch_scc1 L_end")
    stamp(0)
    a(f"s_and_b32 {sr(sH)}, s2, 31")
    a(f"s_lshr_b32 {sr(sSUB)}, s2, 5")
    a(f"s_lshl3_add_u32 {sr(sSLOT)}, {sr(sH)}, {sr(sSUB)}")
    a(f"s_lshl_b32 {sr(sT0)}, {sr(sSLOT)}, 14")
    a("v_lshlrev_b32 v10, 4, v0")
    a(f"v_mov_b32 {vr(vZ)}, 0")
    a(f"ds_write_b32 v10, {vr(vZ)}")
    a(f"v_lshl_add_u32 v9, v0, 5, {sr(sT0)}")
    a(f"s_mul_i32 {sr(sT0)}, s2, 5504")
    a("v_min_u32 v11, 5488, v10")
    a(f"v_add_u32 v11, {sr(sT0)}, v11")
    a("s_waitcnt lgkmcnt(0)")
    npf = 0
    if 'nopf' not in dbg:
        a(f"global_load_dword v250, v9, {sr(sWO,2)}")
        a(f"global_load_dword v251, v11, {sr(sW1,2)}")
        if pfw2: a(f"global_load_dword v249, v11, {sr(sW2,2)}")
        npf = 3 if pfw2 else 2
    a("s_barrier")
    if prof:
        for i in range(1, 12): a(f"s_mov_b64 {sr(sST+2*i,2)}, 0")
    stamp(1)
    a(f"v_lshrrev_b32 {vr(vI)}, 6, v0")
    a(f"v_and_b32 {vr(vLANE)}, 63, v0")
    a(f"s_lshr_b32 {sr(sB)}, s2, 7")
    a(f"v_readfirstlane_b32 {sr(sWAVE)}, {vr(vI)}")
    a(f"v_and_b32 {vr(vI)}, 15, {vr(vLANE)}")
    a(f"v_lshrrev_b32 {vr(vG)}, 4, {vr(vLANE)}")
    a(f"v_lshlrev_b32 v8, 4, {vr(vLANE)}")
    a(f"s_and_b32 {sr(sW4)}, {sr(sWAVE)}, 3")
    srd(RWS, sWS, None, WS_END)
    a(f"s_cmp_lt_u32 {sr(sWAVE)}, 4")
    a("s_cbranch_scc1 L_stream")
    a(f"s_cmp_eq_u32 {sr(sWAVE)}, 4")
    a("s_cbranch_scc0 L_other")
    def common2():
        a(f"s_and_b32 {sr(sCLS)}, s2, 7")
        a(f"s_lshr_b32 {sr(sY)}, s2, 3")
        a(f"s_getreg_b32 {sr(sXCC)}, hwreg(HW_REG_XCC_ID, 0, 3)")
        a(f"s_or_b32 {sr(sXCC)}, {sr(sXCC)}, 0x80")
        a(f"v_mov_b32 {vr(vONE)}, 1")
        a(f"s_cmp_lt_u32 {sr(sY)}, {8+NF}")
        a(f"s_cselect_b32 {sr(sROLE)}, 2, 0")
        a(f"s_cmp_eq_u32 {sr(sCLS)}, {XF}")
        a(f"s_cselect_b32 {sr(sROLE)}, {sr(sROLE)}, 0")
        a(f"s_cmp_lt_u32 {sr(sY)}, 8")
        a(f"s_cselect_b32 {sr(sROLE)}, 1, {sr(sROLE)}")

    hW = 64
    if qprio: a(f"s_setprio {qprio}")
    for k in range(4): a(f"v_mov_b32 {vr(16+k)}, -1")
    if qmode == 0:
        a(f"s_lshl_b32 {sr(sU0)}, {sr(sSLOT)}, 12")
        a(f"s_add_u32 {sr(sU0)}, {sr(sU0)}, {WS_IN}")
        for u in range(4):
            a(f"buffer_store_dwordx4 v[16:19], v8, {sr(RWS,4)}, {sr(sU0)} offen offset:{u*1024}")
    else:
        a(f"s_lshl_b32 {sr(sU0)}, {sr(sSLOT)}, 7")
        a(f"s_add_u32 {sr(sU0)}, {sr(sU0)}, {WS_QF}")
        a("s_mov_b64 exec, 0xff")
        a(f"buffer_store_dwordx4 v[16:19], v8, {sr(RWS,4)}, {sr(sU0)} offen")
        a("s_mov_b64 exec, -1")
    a(f"v_lshlrev_b32 v12, 5, {vr(vLANE)}")
    srd(R0, sX, None, 2048)
    a(f"buffer_load_dwordx4 v[20:23], v12, {sr(R0,4)}, 0 offen")
    a(f"buffer_load_dwordx4 v[128:131], v12, {sr(R0,4)}, 0 offen offset:16")
    a(f"v_lshlrev_b32 v11, 13, {vr(vG)}")
    a(f"v_lshl_add_u32 v11, {vr(vI)}, 4, v11")
    a(f"v_lshl_add_u32 v63, {vr(vI)}, 2, {vr(vG)}")
    a("v_lshlrev_b32 v63, 1, v63")
    a(f"s_lshl_b32 {sr(sT0)}, {sr(sH)}, 8")
    a(f"s_lshl_b32 {sr(sSO)}, {sr(sSUB)}, 19")
    srd(R1, sWQ, sT0, 511*8192 + 256)
    a(f"s_mov_b32 {sr(sU3)}, 0")
    g.lab("L_qload")
    a(f"s_lshr_b32 {sr(sT2)}, {sr(sSO)}, 12")
    a(f"buffer_load_ushort v14, v63, {sr(R0,4)}, {sr(sT2)} offen")
    a(f"buffer_load_ushort v15, v63, {sr(R0,4)}, {sr(sT2)} offen offset:1024")
    for t in range(16):
        a(f"buffer_load_dwordx4 {vr(hW+4*t,4)}, v11, {sr(R1,4)}, {sr(sSO)} offen nt")
        a(f"s_add_u32 {sr(sSO)}, {sr(sSO)}, 0x8000")
    a("s_branch L_q2")

    g.lab("L_stream")
    vOFF = 8
    vQ, vP, vU = 12, 16, 20
    vMX, vL, vT = 22, 23, 24
    vACC, vA, vF, vS, vRING = 28, 32, 40, 48, 64
    NR = N0
    assert vRING + 4*NR <= 249
    sPAT, sJW, sK0 = sU0, sU1, sU2
    a(f"s_lshl_b32 {sr(sT0)}, {sr(sB)}, 5")
    a(f"s_add_u32 {sr(sT0)}, {sr(sT0)}, {sr(sH)}")
    a(f"s_lshl_b32 {sr(sT0)}, {sr(sT0)}, 20")
    srd(R0, sK, sT0, 1 << 20)
    first = True
    for (reg, bit), col in zip([(sW4, 0), (sW4, 1), (2, 5), (2, 6)] + [(2, k) for k in range(5)] + [(2, 7)], lin[8:18]):
        if col:
            a(f"s_bitcmp1_b32 {sr(reg)}, {bit}")
            a(f"s_cselect_b32 {sr(sJW if first else sT2)}, {col << 8:#x}, 0")
            if not first: a(f"s_xor_b32 {sr(sJW)}, {sr(sJW)}, {sr(sT2)}")
            first = False
    ops = [('pf', m) for m in range(npf)]
    landed = [-1]
    def wait_vm(n):
        a(f"s_waitcnt vmcnt({n})")
        landed[0] = max(landed[0], len(ops) - 1 - n)
    def slot(n): return vRING + (n % NR) * 4
    done = set()
    usepat = bool(chk) or kF or kO or kX
    def issue(n):
        assert n < NR or (n - NR) in done, n
        c_ = 0
        for k in range(6):
            if n >> k & 1: c_ ^= lin[2 + k]
        a(f"s_xor_b32 {sr(sSO)}, {sr(sJW)}, {c_ << 8:#x}")
        def cnt(d):
            k = c = 0
            for o in reversed(ops):
                if o[0] != 'x':
                    if k == d - 1: break
                    k += 1
                c += 1
            return c
        if n < len(ramp) or not usepat or n < 6 or n >= 128 - NE:
            d = ramp[n] if n < len(ramp) else (DE if n >= 128 - NE else D)
            if len(ops) >= d: wait_vm(cnt(d))
        else:
            a(f"s_bitcmp1_b32 {sr(sPAT)}, {n & 31}")
            lo = cnt(D)
            wait_vm(cnt(DH))
            a(f"s_cbranch_scc1 L_w{n}")
            a(f"s_waitcnt vmcnt({lo})")
            g.lab(f"L_w{n}")
        a(f"buffer_load_dwordx4 {vr(slot(n),4)}, {vr(vOFF)}, {sr(R0 if n < 64 else R1,4)}, {sr(sSO)} offen nt")
        ops.append(('ld', n))
    def has(key): return key in ops and ops.index(key) <= landed[0]
    chunks = []
    def k_item(n):
        def f():
            r = n & 3
            for k in range(4):
                a(f"v_dot2_f32_bf16 {vr(vP+r)}, {vr(slot(n)+k)}, {vr(vQ+k)}, {'0' if k == 0 else vr(vP+r)}")
        chunks.append((('ld', n), 5, f, n))
    def k_block(t):
        def f():
            s = vS + t
            a(f"v_add_f32_dpp {vr(vU)}, {vr(vP)}, {vr(vP)} row_ror:8 row_mask:0xf bank_mask:0x3")
            a(f"v_add_f32_dpp {vr(vU+1)}, {vr(vP+1)}, {vr(vP+1)} row_ror:8 row_mask:0xf bank_mask:0x3")
            a(f"v_add_f32_dpp {vr(vU)}, {vr(vP+2)}, {vr(vP+2)} row_ror:8 row_mask:0xf bank_mask:0xc")
            a(f"v_add_f32_dpp {vr(vU+1)}, {vr(vP+3)}, {vr(vP+3)} row_ror:8 row_mask:0xf bank_mask:0xc")
            a("s_nop 0")
            a(f"v_add_f32_dpp {vr(s)}, {vr(vU)}, {vr(vU)} row_shl:4 row_mask:0xf bank_mask:0x5")
            a(f"v_add_f32_dpp {vr(s)}, {vr(vU+1)}, {vr(vU+1)} row_shr:4 row_mask:0xf bank_mask:0xa")
            a("s_nop 1")
            a(f"v_add_f32_dpp {vr(s)}, {vr(s)}, {vr(s)} quad_perm:[1,0,3,2] {DPPF}")
            a("s_nop 1")
            a(f"v_add_f32_dpp {vr(s)}, {vr(s)}, {vr(s)} quad_perm:[2,3,0,1] {DPPF}")
            rnd(s, s)
            a(f"v_mul_f32 {vr(s)}, {sr(sC1)}, {vr(s)}")
            rnd(s, s)
            a(f"v_max_f32 {vr(vMX)}, {vr(vMX)}, {vr(s)}")
        chunks.append((None, 19, f, None))
    def v_item(n):
        def f():
            m = n - 64
            t, r = m >> 2, m & 3
            A = vA + 4 * (m & 1)
            for k in range(4):
                a(f"v_and_b32_dpp {vr(A+k)}, {vr(vS+t)}, {vr(vMASK+k)} row_newbcast:{4*r} {DPPF}")
            if has(('ld', n)):
                a("s_nop 1")
            else:
                a("s_nop 0")
                wait_vm(len(ops) - 1 - ops.index(('ld', n)))
            a(f"v_mfma_f32_16x16x32_bf16 {vr(vACC,4)}, {vr(A,4)}, {vr(slot(n),4)}, {'0' if m == 0 else vr(vACC,4)}")
        chunks.append((('ld', n), 8, f, n))
    for t in range(16):
        for r in range(4): k_item(4*t + r)
        k_block(t)
    def c_max():
        stamp(3)
        allred("v_max_f32", vMX, vT, quad=False)
        a(f"v_mul_f32 {vr(vMX)}, {sr(sC0)}, {vr(vMX)}")
        a(f"v_mov_b32 {vr(vL)}, 0")
    chunks.append((None, 24, c_max, None))
    for t0 in range(0, 16, 4):
        def f(t0=t0):
            rs_ = [vS + t for t in range(t0, t0 + 4)]
            for s in rs_: a(f"v_fma_f32 {vr(s)}, {vr(s)}, {sr(sC0)}, -{vr(vMX)}")
            for s in rs_: a(f"v_exp_f32 {vr(s)}, {vr(s)}")
            for s in rs_:
                a(f"v_add_f32 {vr(vL)}, {vr(vL)}, {vr(s)}")
                a(f"v_cvt_pk_bf16_f32 {vr(s)}, {vr(s)}, {vr(s)}")
        chunks.append((None, 20, f, None))
    sum_done = [False]
    def c_sum():
        allred("v_add_f32", vL, vT, quad=False)
        a(f"s_lshl_b32 {sr(sT0)}, {sr(sW4)}, 3")
        a(f"v_mov_b32 {vr(vT)}, {sr(sT0)}")
        a("s_mov_b64 exec, 1")
        a(f"ds_write_b64 {vr(vT)}, {vr(vMX,2)} offset:{L_ST}")
        a(f"ds_add_u32 {vr(vZ)}, {vr(vONE)} offset:{C_STAT}")
        a("s_mov_b64 exec, -1")
        sum_done[0] = True
    chunks.append((None, 28, c_sum, None))
    for n in range(64, 128): v_item(n)
    def x_cls_load():
        flags_addr(46, 45)
        a("s_mov_b64 exec, 0xffff")
        a(f"global_load_dword v44, v46, {sr(sDBG,2)} sc1")
        a("s_mov_b64 exec, -1")
        ops.append(('x', 'cls'))
    def x_flags():
        assert has(('x', 'cls'))
        flags_eval(44, 45)
        a(f"s_cselect_b32 {sr(sT0)}, {1 << 24}, 0")
        a(f"s_and_b32 {sr(sT1)}, {sr(sY)}, 7")
        a(f"s_lshl4_add_u32 {sr(sT1)}, {sr(sT1)}, {sr(sW4)}")
        a(f"s_lshl_b32 {sr(sT1)}, {sr(sT1)}, 7")
        a(f"s_add_u32 {sr(sT0)}, {sr(sT0)}, {sr(sT1)}")
        a(f"s_add_u32 {sr(sT0)}, {sr(sT0)}, {WS_R}")
        a(f"v_mov_b32 v47, {sr(sT0)}")
    def x_arrive(c):
        def f():
            a("v_mov_b32 v25, 1")
            a("s_mov_b64 exec, 1")
            a(f"buffer_atomic_add v25, v47, {sr(RWS,4)}, 0 offen offset:{c*512} sc0 sc1")
            a("s_mov_b64 exec, -1")
            ops.append(('x', f'arr{c}'))
        return f
    def x_rank(c):
        def f():
            assert has(('x', f'arr{c}'))
            a(f"v_readfirstlane_b32 {sr(sT0)}, v25")
            a(f"s_sub_i32 {sr(sT0)}, {sr(sT0)}, {r0 - 1}")
            a(f"s_max_i32 {sr(sT0)}, {sr(sT0)}, 0")
            a(f"s_mul_i32 {sr(sT0)}, {sr(sT0)}, {sr(sT0)}")
            a(f"s_lshr_b32 {sr(sT0)}, {sr(sT0)}, {rs[c] if isinstance(rs, tuple) else rs}")
            a(f"s_add_u32 {sr(sT0)}, {sr(sT0)}, {sr(sK0)}")
            a(f"s_min_u32 {sr(sT0)}, {sr(sT0)}, 32")
            a(f"s_bfm_b64 {sr(sT2,2)}, {sr(sT0)}, 0")
            a(f"s_mov_b32 {sr(sPAT)}, {sr(sT2)}")
        return f
    def x_stats():
        assert sum_done[0]
        a(f"s_mov_b32 {sr(sSPIN)}, {SPIN_MAX}")
        a(f"s_cmp_lg_u32 {sr(sU3)}, 0")
        a("s_cbranch_scc1 L_cwait")
        g.lab("L_sspin")
        a(f"ds_read_b32 v20, {vr(vZ)} offset:{C_STAT}")
        a(f"ds_read_b128 v[12:15], {vr(vZ)} offset:{L_ST}")
        a(f"ds_read_b128 v[16:19], {vr(vZ)} offset:{L_ST+16}")
        a("s_waitcnt lgkmcnt(0)")
        a("v_cmp_ne_u32 vcc, 4, v20")
        a("s_cbranch_vccnz L_sspin")
        a("v_max3_f32 v20, v12, v14, v16")
        a("v_max_f32 v20, v20, v18")
        for w in range(4): a(f"v_sub_f32 {vr(vF+w)}, {vr(12+2*w)}, v20")
        for w in range(4): a(f"v_exp_f32 {vr(vF+w)}, {vr(vF+w)}")
        a(f"s_lshl_b32 {sr(sT0)}, {sr(sW4)}, 24")
        a(f"v_mul_f32 v21, {vr(vF)}, v13")
        for w in range(1, 4): a(f"v_fmac_f32 v21, {vr(vF+w)}, {vr(13+2*w)}")
        a(f"v_mov_b32 v12, {sr(sT0)}")
        a("v_rcp_f32 v13, v21")
        a("s_mov_b64 exec, 1")
        a(f"s_cmp_eq_u32 {sr(sLOC)}, {LOCV}")
        a("s_cbranch_scc1 L_st_loc")
        a(f"buffer_store_dwordx2 v[20:21], v12, {sr(RWS,4)}, {sr(sSLOT)} offen offset:256 sc1")
        a("s_branch L_st_done")
        g.lab("L_st_loc")
        a(f"buffer_store_dwordx2 v[20:21], v12, {sr(RWS,4)}, {sr(sSLOT)} offen offset:256")
        g.lab("L_st_done")
        ops.append(('x', 'st'))
        a("s_mov_b64 exec, -1")
        for w in range(4): a(f"v_mul_f32 {vr(vF+w)}, {vr(vF+w)}, v13")
        stamp(4)
    def x_trig():
        a(f"ds_write_b32 {vr(vZ)}, {vr(vONE)} offset:{C_TRIG}")
    def x_trig2():
        a("s_mov_b64 exec, 1")
        a(f"ds_add_u32 {vr(vZ)}, {vr(vONE)} offset:{C_TRIG2}")
        a("s_mov_b64 exec, -1")
    lagx = max(D, DH) + 1
    nfl = (min(chk) if chk else NSTAT) - 1
    extra = {nfl - lagx: x_cls_load, nfl: x_flags, NSTAT: x_stats, NTRIG: x_trig, NT2: x_trig2}
    for c, n_ in enumerate(chk):
        assert n_ not in extra and n_ + lagx not in extra
        extra[n_] = x_arrive(c); extra[n_ + lagx] = x_rank(c)
    ci = [0]
    def run_chunks(bud, force=False):
        while ci[0] < len(chunks):
            needs, cost, fn, frees = chunks[ci[0]]
            if not force:
                if needs is not None and not has(needs): break
                if cost > bud: break
            fn(); bud -= cost; ci[0] += 1
            if frees is not None: done.add(frees)
    for n in range(N0):
        issue(n)
        if n in extra: extra[n]()
        if n == 1:
            srd(R1, sV, sT0, 1 << 20)
            common2()
            a(f"s_lshl_b32 {sr(sSLOT)}, {sr(sSLOT)}, 9")
            a(f"s_mov_b32 {sr(sC0)}, {LOG2E:#x}")
            a(f"s_mov_b32 {sr(sC1)}, {SCALE:#x}")
            if usepat:
                a(f"s_cmp_eq_u32 {sr(sCLS)}, {XF}")
                a(f"s_cselect_b32 {sr(sK0)}, {kX}, 0")
                a(f"s_cmp_eq_u32 {sr(sROLE)}, 1")
                a(f"s_cselect_b32 {sr(sT1)}, {kO}, 0")
                a(f"s_add_u32 {sr(sK0)}, {sr(sK0)}, {sr(sT1)}")
                a(f"s_cmp_eq_u32 {sr(sROLE)}, 2")
                a(f"s_cselect_b32 {sr(sK0)}, {kF}, {sr(sK0)}")
                a(f"s_bfm_b64 {sr(sT2,2)}, {sr(sK0)}, 0")
                a(f"s_mov_b32 {sr(sPAT)}, {sr(sT2)}")
            make_masks(False)
            a(f"v_lshlrev_b32 v9, 4, {vr(vI)}")
            a("v_lshrrev_b32 v11, 1, v8")
            a(f"s_lshl_b32 {sr(sT1)}, {sr(sW4)}, 9")
            a(f"v_add_u32 v10, {sr(sT1)}, v8")
            a(f"v_mov_b32 {vr(vMX)}, 0xff800000")
    g.lab("L_qspin")
    a(f"ds_read_b32 {vr(vT)}, {vr(vZ)} offset:{C_Q}")
    a(f"ds_read_b128 {vr(vQ,4)}, v9 offset:{L_Q}")
    a("s_waitcnt lgkmcnt(0)")
    a(f"v_cmp_ne_u32 vcc, 1, {vr(vT)}")
    a("s_cbranch_vccnz L_qspin")
    stamp(2)
    run_chunks(5)
    for n in range(N0, 128):
        issue(n)
        if n in extra: extra[n]()
        run_chunks(budget - (24 if n in extra else 0))
    run_chunks(0, force=True)
    a("s_mov_b32 exec_hi, 0")
    stamp(5)
    a(f"s_cmp_eq_u32 {sr(sLOC)}, {LOCV}")
    a(f"s_cselect_b32 {sr(sT1)}, 3, 7")
    a("s_nop 4")
    a(f"ds_write_b128 v10, {vr(vACC,4)} offset:{L_O}")
    a("s_mov_b32 exec_lo, 1")
    a(f"ds_add_rtn_u32 v25, {vr(vZ)}, {vr(vONE)} offset:{C_COMB}")
    a("s_mov_b32 exec_lo, -1")
    for w in range(4): a(f"ds_read_b128 {vr(48+4*w,4)}, v8 offset:{L_O + w*512}")
    a("s_waitcnt lgkmcnt(3)")
    a(f"v_readfirstlane_b32 {sr(sT0)}, v25")
    def sel(w): return "op_sel_hi:[1,0,1]" if w % 2 == 0 else "op_sel:[0,1,0]"
    for k in (0, 2): a(f"v_pk_mul_f32 {vr(48+k,2)}, {vr(48+k,2)}, {vr(vF,2)} op_sel_hi:[1,0]")
    for w in range(1, 4):
        a(f"s_waitcnt lgkmcnt({3-w})")
        for k in (0, 2): a(f"v_pk_fma_f32 {vr(48+k,2)}, {vr(48+4*w+k,2)}, {vr(vF+(w&2),2)}, {vr(48+k,2)} {sel(w)}")
    a(f"s_cmp_eq_u32 {sr(sT0)}, {sr(sT1)}")
    a("v_cvt_pk_bf16_f32 v48, v48, v49")
    a("v_cvt_pk_bf16_f32 v49, v50, v51")
    a("s_cbranch_scc0 L_pub_far")
    a(f"buffer_store_dwordx2 v[48:49], v11, {sr(RWS,4)}, {sr(sSLOT)} offen")
    stamp(6)
    g.lab("L_sdone")
    a(f"s_cmp_eq_u32 {sr(sROLE)}, 2")
    a("s_cbranch_scc0 L_fin")
    a("s_barrier")
    a("s_branch L_fin")
    g.lab("L_pub_far")
    a(f"s_cmp_eq_u32 {sr(sT0)}, 3")
    a("s_cbranch_scc0 L_sdone")
    a(f"buffer_store_dwordx2 v[48:49], v11, {sr(RWS,4)}, {sr(sSLOT)} offen sc1")
    stamp(6)
    a("s_branch L_sdone")
    g.lab("L_cwait")
    a(f"s_sub_u32 {sr(sSPIN)}, {sr(sSPIN)}, 4")
    a("s_cbranch_scc1 L_sspin")
    a("s_sleep 16")
    a("s_mov_b64 exec, 0xffff")
    a(f"global_load_dword v44, v46, {sr(sDBG,2)} sc1")
    a("s_mov_b64 exec, -1")
    a("s_waitcnt vmcnt(0)")
    flags_eval(44, 45)
    a("s_cbranch_scc1 L_cwait")
    a("s_branch L_sspin")

    g.lab("L_q2")
    a(f"s_cmp_eq_u32 {sr(sU3)}, 0")
    a("s_cbranch_scc0 L_tile")
    common2()
    make_masks(True)
    a(f"v_and_b32 v12, 31, {vr(vLANE)}")
    a("v_lshlrev_b32 v12, 4, v12")
    a(f"v_lshrrev_b32 v13, 5, {vr(vLANE)}")
    if qmode == 0:
        a("v_lshl_add_u32 v60, v13, 14, v12")
        a(f"s_lshl_b32 {sr(sU1)}, {sr(sH)}, 15")
        a(f"s_lshl_b32 {sr(sT0)}, {sr(sSUB)}, 9")
        a(f"s_add_u32 {sr(sU1)}, {sr(sU1)}, {sr(sT0)}")
        a(f"s_add_u32 {sr(sU1)}, {sr(sU1)}, {WS_IN}")
    else:
        a("v_lshl_add_u32 v60, v13, 10, v12")
        a(f"s_lshl_b32 {sr(sU1)}, {sr(sSLOT)}, 10")
        a(f"s_add_u32 {sr(sU1)}, {sr(sU1)}, {WS_QD}")
        a(f"s_lshl_b32 {sr(sT0)}, {sr(sH)}, 10")
        a(f"s_lshl2_add_u32 {sr(sT0)}, {sr(sSUB)}, {sr(sT0)}")
        a(f"s_add_u32 {sr(sT0)}, {sr(sT0)}, {WS_QF}")
        a(f"v_lshl_add_u32 v61, {vr(vLANE)}, 7, {sr(sT0)}")
        a(f"v_and_b32 v132, 7, {vr(vLANE)}")
        a("v_lshlrev_b32 v132, 2, v132")
        a(f"v_mov_b32 v133, {sr(sXCC)}")
    a(f"v_and_b32 v13, 1, {vr(vG)}")
    a("v_lshlrev_b32 v13, 3, v13")
    a(f"v_lshl_add_u32 v62, {vr(vI)}, 4, v13")
    for k in range(4): a(f"v_mov_b32 {vr(56+k)}, 0")
    a("s_waitcnt vmcnt(18)")
    for k in range(8):
        src = 20 + k if k < 4 else 124 + k
        a(f"v_and_b32 {vr(33+2*k)}, 0xffff0000, {vr(src)}")
        a(f"v_lshlrev_b32 {vr(32+2*k)}, 16, {vr(src)}")
    for k in range(4): a(f"v_pk_add_f32 {vr(48+2*k,2)}, {vr(32+4*k,2)}, {vr(34+4*k,2)}")
    a("v_pk_add_f32 v[48:49], v[48:49], v[50:51]")
    a("v_pk_add_f32 v[52:53], v[52:53], v[54:55]")
    a("v_pk_add_f32 v[48:49], v[48:49], v[52:53]")
    a("v_add_f32 v28, v48, v49")
    allred("v_add_f32", 28, 29, s32=False)
    a("v_mul_f32 v28, 0x3b000000, v28")
    for k in range(8): a(f"v_pk_add_f32 {vr(32+2*k,2)}, {vr(32+2*k,2)}, v[28:29] op_sel_hi:[1,0] neg_lo:[0,1] neg_hi:[0,1]")
    a("v_pk_mul_f32 v[30:31], v[32:33], v[32:33]")
    for k in range(1, 8): a(f"v_pk_fma_f32 v[30:31], {vr(32+2*k,2)}, {vr(32+2*k,2)}, v[30:31]")
    a("v_add_f32 v30, v30, v31")
    allred("v_add_f32", 30, 29, s32=False)
    a("v_mul_f32 v30, 0x3b000000, v30")
    ln_scale(28, 30)
    a("v_mov_b32 v29, v28")
    a("v_mov_b32 v31, v30")
    a("s_nop 1")
    a("v_permlane32_swap_b32 v28, v29")
    a("v_permlane32_swap_b32 v30, v31")
    g.lab("L_tile")
    a("s_waitcnt vmcnt(16)")
    a("v_lshlrev_b32 v14, 16, v14")
    a("v_lshlrev_b32 v15, 16, v15")
    a("v_sub_f32 v14, v14, v28")
    a("v_sub_f32 v15, v15, v29")
    rnd(14, 14); rnd(15, 15)
    a("v_mul_f32 v14, v14, v30")
    a("v_mul_f32 v15, v15, v31")
    a("v_cvt_pk_bf16_f32 v14, v14, v14")
    a("v_cvt_pk_bf16_f32 v15, v15, v15")
    a("s_nop 0")
    for t in range(16):
        a(f"v_mov_b32_dpp {vr(40+t)}, v14 row_newbcast:{t} row_mask:0xf bank_mask:0x3")
        a(f"v_mov_b32_dpp {vr(40+t)}, v15 row_newbcast:{t} row_mask:0xf bank_mask:0xc")
    for t in range(16):
        A = 32 + 4 * (t & 1)
        for k in range(4): a(f"v_and_b32 {vr(A+k)}, {vr(40+t)}, {vr(vMASK+k)}")
        a(f"s_waitcnt vmcnt({15-t})")
        a("s_nop 0")
        a(f"v_mfma_f32_16x16x32_bf16 v[56:59], {vr(A,4)}, {vr(hW+4*t,4)}, v[56:59]")
    a(f"s_cmp_eq_u32 {sr(sU3)}, 0")
    a(f"ds_write_b32 {vr(vZ)}, {vr(vONE)} offset:{C_QP}")
    a("s_nop 4")
    a("s_cbranch_scc0 L_qmore")
    stamp(3)
    if 'noxch' in dbg: a("s_branch L_qput")
    if qmode == 0:
        if not forcefb:
            for jj in range(4):
                a(f"buffer_store_dwordx4 v[56:59], v60, {sr(RWS,4)}, {sr(sU1)} offen")
                if jj < 3: a(f"s_add_u32 {sr(sU1)}, {sr(sU1)}, 4096")
        poll("L_pollQ", [f"buffer_load_dwordx4 {vr(32+4*u,4)}, v8, {sr(RWS,4)}, {sr(sU0)} offen offset:{u*1024} sc1" for u in range(4)],
             range(32, 48), 48, spin=QTRY, fail="L_qfail")
    else:
        a(f"buffer_store_dwordx4 v[56:59], v8, {sr(RWS,4)}, {sr(sU1)} offen")
        a(f"s_lshl_b32 {sr(sT0)}, {sr(sH)}, 13")
        a(f"s_lshl_b32 {sr(sT1)}, {sr(sB)}, 9")
        a(f"s_add_u32 {sr(sT0)}, {sr(sT0)}, {sr(sT1)}")
        a(f"s_add_u32 {sr(sT0)}, {sr(sT0)}, {WS_QD}")
        a(f"s_add_u32 {sr(sT1)}, {sr(sT0)}, 4096")
        a("s_mov_b64 exec, 0xff")
        a("s_waitcnt vmcnt(0)")
        if not forcefb: a(f"buffer_store_dword v133, v61, {sr(RWS,4)}, 0 offen")
        a("s_mov_b64 exec, -1")
        if qsleep: a(f"s_sleep {qsleep}")
        poll("L_pollQ", [f"buffer_load_dword v32, v132, {sr(RWS,4)}, {sr(sU0)} offen sc1"], [32], 33, spin=QTRY, fail="L_qfail")
        a("v_cmp_ne_u32 vcc, v32, v133")
        a("s_cbranch_vccnz L_qfail")
        for u in range(4):
            a(f"buffer_load_dwordx4 {vr(32+4*u,4)}, v60, {sr(RWS,4)}, {sr(sT0 if u < 2 else sT1)} offen offset:{(u&1)*2048} sc1")
        a("s_waitcnt vmcnt(0)")
    a("v_pk_add_f32 v[32:33], v[32:33], v[36:37]"); a("v_pk_add_f32 v[34:35], v[34:35], v[38:39]")
    a("v_pk_add_f32 v[40:41], v[40:41], v[44:45]"); a("v_pk_add_f32 v[42:43], v[42:43], v[46:47]")
    a("v_pk_add_f32 v[32:33], v[32:33], v[40:41]"); a("v_pk_add_f32 v[34:35], v[34:35], v[42:43]")
    for k in range(4): a(f"v_mov_b32 {vr(36+k)}, {vr(32+k)}")
    for k in range(4): a(f"v_permlane32_swap_b32 {vr(32+k)}, {vr(36+k)}")
    a("v_pk_add_f32 v[56:57], v[32:33], v[36:37]"); a("v_pk_add_f32 v[58:59], v[34:35], v[38:39]")
    g.lab("L_qput")
    a("v_cvt_pk_bf16_f32 v32, v56, v57")
    a("v_cvt_pk_bf16_f32 v33, v58, v59")
    a(f"ds_write_b64 v62, v[32:33] offset:{L_Q}")
    a(f"ds_write_b32 {vr(vZ)}, {vr(vONE)} offset:{C_Q}")
    a("s_mov_b64 exec, -1")
    stamp(2)
    a(f"s_cmp_eq_u32 {sr(sROLE)}, 0")
    a("s_cbranch_scc1 L_fin")
    a("s_branch L_role")
    g.lab("L_qfail")
    a(f"s_mov_b32 {sr(sU3)}, 8")
    g.lab("L_qmore")
    a(f"s_and_b32 {sr(sSO)}, {sr(sSO)}, 0x3fffff")
    a(f"s_sub_u32 {sr(sU3)}, {sr(sU3)}, 1")
    a(f"s_cmp_eq_u32 {sr(sU3)}, 0")
    a("s_cbranch_scc0 L_qload")
    a(f"s_lshl_b32 {sr(sT0)}, {sr(sB)}, 5")
    a(f"s_bfm_b64 exec, 32, {sr(sT0)}")
    a("s_branch L_qput")

    g.lab("L_other")
    common2()
    a(f"s_cmp_eq_u32 {sr(sROLE)}, 0")
    a("s_cbranch_scc1 L_fin")
    a(f"s_cmp_eq_u32 {sr(sW4)}, 3")
    a("s_cbranch_scc0 L_nocp")
    a(f"s_cmp_lt_u32 {sr(sY)}, 3")
    a("s_cbranch_scc0 L_nocp")
    a(f"s_getpc_b64 {sr(sT2,2)}")
    g.lab("L_pc")
    a(f"s_sub_u32 {sr(sT2)}, {sr(sT2)}, L_pc-{NAME}_kernel")
    a(f"s_subb_u32 {sr(sT3)}, {sr(sT3)}, 0")
    a(f"s_lshl_b32 {sr(sT0)}, {sr(sY)}, 13")
    a(f"v_lshl_add_u32 v28, {vr(vLANE)}, 7, {sr(sT0)}")
    a(f"v_min_u32 v28, L_end-{NAME}_kernel, v28")
    a(f"global_load_dword v248, v28, {sr(sT2,2)}")
    g.lab("L_nocp")
    srd(R0, sX, None, 2048)
    make_masks(True)
    a(f"s_cmp_eq_u32 {sr(sW4)}, 2")
    a("s_cbranch_scc0 L_role")
    a(f"s_cmp_eq_u32 {sr(sROLE)}, 1")
    a("s_cbranch_scc0 L_sign")
    for k in range(4): a(f"v_mov_b32 {vr(16+k)}, -1")
    a(f"s_lshr_b32 {sr(sT0)}, {sr(sY)}, 1")
    a(f"s_lshl3_add_u32 {sr(sT0)}, {sr(sT0)}, {sr(sCLS)}")
    a(f"s_and_b32 {sr(sT1)}, {sr(sY)}, 1")
    a(f"s_lshl1_add_u32 {sr(sT0)}, {sr(sT0)}, {sr(sT1)}")
    a(f"s_lshl_b32 {sr(sT0)}, {sr(sT0)}, 11")
    a(f"buffer_store_dwordx4 v[16:19], v8, {sr(RWS,4)}, {sr(sT0)} offen sc1")
    a(f"buffer_store_dwordx4 v[16:19], v8, {sr(RWS,4)}, {sr(sT0)} offen offset:1024 sc1")
    a(f"s_lshl4_add_u32 {sr(sT0)}, {sr(sCLS)}, {sr(sY)}")
    a(f"s_lshl_b32 {sr(sT0)}, {sr(sT0)}, 7")
    a(f"s_add_u32 {sr(sT0)}, {sr(sT0)}, {WS_A}")
    a("s_mov_b64 exec, 0xff")
    a(f"buffer_store_dwordx4 v[16:19], v8, {sr(RWS,4)}, {sr(sT0)} offen sc1")
    a(f"buffer_store_dwordx4 v[16:19], v8, {sr(RWS,4)}, {sr(sT0)} offen offset:1024 sc1")
    if chk:
        a(f"s_lshl_b32 {sr(sT0)}, s2, 8")
        a(f"s_add_u32 {sr(sT0)}, {sr(sT0)}, {WS_R}")
        a("s_mov_b64 exec, 0xffff")
        a(f"buffer_store_dwordx4 v[16:19], v8, {sr(RWS,4)}, {sr(sT0)} offen sc1")
    a(f"s_mul_i32 {sr(sT0)}, s2, {NF*64}")
    a(f"s_add_u32 {sr(sT0)}, {sr(sT0)}, {WS_Y}")
    a(f"s_mov_b64 exec, {(1 << (NF*4 - 64)) - 1:#x}")
    a(f"buffer_store_dwordx4 v[16:19], v8, {sr(RWS,4)}, {sr(sT0)} offen offset:1024 sc1")
    a("s_mov_b64 exec, -1")
    a(f"buffer_store_dwordx4 v[16:19], v8, {sr(RWS,4)}, {sr(sT0)} offen sc1")
    g.lab("L_sign")
    a(f"s_lshl_b32 {sr(sT0)}, {sr(sCLS)}, 5")
    a(f"s_add_u32 {sr(sT0)}, {sr(sT0)}, {sr(sY)}")
    a(f"v_mov_b32 v12, {sr(sT0)}")
    a(f"v_mov_b32 v13, {sr(sXCC)}")
    a("s_waitcnt vmcnt(0)")
    a("s_mov_b64 exec, 1")
    a(f"global_store_byte v12, v13, {sr(sDBG,2)} sc1")
    a("s_mov_b64 exec, -1")
    g.lab("L_role")
    if 'norole' in dbg: a("s_branch L_fin")
    a("s_setprio 1")
    lds_spin("L_ldw", C_QP, 12, 1, sleep=4)
    a(f"s_cmp_eq_u32 {sr(sROLE)}, 2")
    a("s_cbranch_scc1 L_roleF")
    def staged():
        a("s_waitcnt vmcnt(0)")
        a(f"ds_write_b32 {vr(vZ)}, {vr(vONE)} offset:{C_STG}")
        stamp(3)

    vB = 64
    a(f"s_lshl_b32 {sr(sU1)}, {sr(sY)}, 7")
    a(f"s_cmp_eq_u32 {sr(sW4)}, 1")
    a("s_cbranch_scc0 L_Oset")
    a(f"s_lshl_b32 {sr(sT0)}, {sr(sCLS)}, 17")
    a(f"s_add_u32 {sr(sT0)}, {sr(sT0)}, {sr(sU1)}")
    srd(R2, sWO, sT0, 3*(1 << 20) + 127*1024 + 128)
    a(f"v_lshrrev_b32 v12, 3, {vr(vLANE)}")
    a(f"v_and_b32 v13, 7, {vr(vLANE)}")
    a("v_lshlrev_b32 v12, 10, v12")
    a("v_lshl_add_u32 v12, v13, 4, v12")
    a(f"s_mov_b32 {sr(sSO)}, 0")
    a(f"s_mov_b32 {sr(sT3)}, {L_W}")
    g.lab("L_ldO")
    a(f"s_mov_b32 m0, {sr(sT3)}")
    a(f"s_waitcnt vmcnt({WO-1})")
    a(f"buffer_load_dwordx4 v12, {sr(R2,4)}, {sr(sSO)} offen nt lds")
    a(f"s_add_u32 {sr(sSO)}, {sr(sSO)}, 0x2000")
    a(f"s_bitcmp1_b32 {sr(sSO)}, 17")
    a(f"s_cselect_b32 {sr(sT0)}, {(1 << 20) - (1 << 17)}, 0")
    a(f"s_add_u32 {sr(sSO)}, {sr(sSO)}, {sr(sT0)}")
    a(f"s_add_u32 {sr(sT3)}, {sr(sT3)}, 1024")
    a(f"s_cmp_lt_u32 {sr(sT3)}, {L_W + 65536}")
    a("s_cbranch_scc1 L_ldO")
    staged()
    g.lab("L_Oset")
    a(f"s_lshl3_add_u32 {sr(sU0)}, {sr(sW4)}, {sr(sCLS)}")
    a(f"s_lshl_b32 {sr(sU0)}, {sr(sU0)}, 12")
    a(f"v_bfe_u32 v13, {vr(vLANE)}, 3, 1")
    a(f"v_bfe_u32 v12, {vr(vLANE)}, 2, 1")
    a("v_lshl_add_u32 v13, v13, 4, v12")
    a(f"v_lshrrev_b32 v23, 1, {vr(vG)}")
    a("v_lshl_add_u32 v13, v23, 5, v13")
    a(f"v_and_b32 v24, 1, {vr(vG)}")
    a("v_lshl_add_u32 v13, v24, 3, v13")
    a(f"v_and_b32 v12, 3, {vr(vLANE)}")
    a("v_lshlrev_b32 v12, 3, v12")
    a("v_lshl_add_u32 v13, v13, 7, v12")
    a(f"s_lshl_b32 {sr(sT3)}, {sr(sW4)}, 14")
    a(f"v_add_u32 v13, {sr(sT3)}, v13")
    lds_spin("L_stgO", C_STG, 12, 1, sleep=4)
    for nu in range(4):
        for u in range(2):
            for p in range(4):
                row = 64*(p >> 1) + 4*u + 2*(p & 1)
                a(f"ds_read_b64_tr_b16 {vr(vB+16*nu+8*u+2*p,2)}, v13 offset:{L_W + row*128 + nu*32}")
        a("s_waitcnt lgkmcnt(0)")
    a(f"v_lshrrev_b32 v10, 1, {vr(vI)}")
    a("v_lshlrev_b32 v10, 9, v10")
    a(f"v_and_b32 v11, 1, {vr(vI)}")
    a("v_lshl_add_u32 v10, v11, 4, v10")
    a(f"v_lshl_add_u32 v10, {vr(vG)}, 5, v10")
    a("v_mul_u32_u24 v22, 0xaaaa, v11")
    a("v_add_u32 v22, 0x4444, v22")
    a(f"s_lshl_b32 {sr(sT2)}, {sr(sW4)}, 10")
    a(f"v_add_u32 v11, {sr(sT2)}, v8")
    a("v_lshlrev_b32 v21, 10, v23")
    a(f"v_and_b32 v12, 31, {vr(vLANE)}")
    a("v_lshl_add_u32 v21, v12, 2, v21")
    a("v_lshlrev_b32 v23, 11, v23")
    a(f"s_lshl_b32 {sr(sT2)}, {sr(sCLS)}, 11")
    a(f"s_add_u32 {sr(sT2)}, {sr(sT2)}, {sr(sU1)}")
    a(f"s_add_u32 {sr(sC0)}, {sr(sT2)}, {WS_A}")
    lds_spin("L_waitst", C_STAT, 12, 4, sleep=8)
    wait_flags("L_cntO", 12)
    a(f"s_mov_b32 {sr(sU2)}, 3")
    a(f"s_cmp_eq_u32 {sr(sCLS)}, {XF}")
    a("s_cbranch_scc0 L_noR")
    vRX, vRB, vRO, vRA, vRY = 128, 129, 130, 131, 132
    a(f"v_and_b32 v14, 7, {vr(vLANE)}")
    a("v_lshlrev_b32 v13, 2, v14")
    a(f"global_load_dword v15, v13, {sr(sDBG,2)} offset:{XF*32} sc1")
    a(f"s_mov_b32 {sr(sT3)}, {sr(sT1)}")
    a(f"s_lshl2_add_u32 {sr(sT0)}, {sr(sY)}, {sr(sW4)}")
    a(f"s_lshl_b32 {sr(sT1)}, {sr(sT0)}, 7")
    a(f"s_add_u32 {sr(sT1)}, {sr(sT1)}, {WS_Y}")
    srd(R3, sWS, sT1, (NF-1)*4096 + 128)
    a(f"s_lshr_b32 {sr(sT0)}, {sr(sY)}, 1")
    a(f"s_lshl_b32 {sr(sT0)}, {sr(sT0)}, 8")
    a(f"s_and_b32 {sr(sC1)}, {sr(sY)}, 1")
    a(f"s_lshl_b32 {sr(sT1)}, {sr(sC1)}, 6")
    a(f"s_add_u32 {sr(sT1)}, {sr(sT1)}, {sr(sT0)}")
    a(f"s_lshl4_add_u32 {sr(sT1)}, {sr(sW4)}, {sr(sT1)}")
    a(f"v_bfe_u32 v12, {vr(vLANE)}, 4, 1")
    a("v_lshlrev_b32 v12, 7, v12")
    a("v_lshl_add_u32 v12, v14, 1, v12")
    a(f"v_add_u32 v12, {sr(sT1)}, v12")
    a(f"v_lshrrev_b32 v13, 5, {vr(vLANE)}")
    a(f"v_lshl_add_u32 {vr(vRO)}, v13, 10, v12")
    srd(R2, sB2, None, 1024)
    srd(R1, sOUT, None, 2048)
    a(f"buffer_load_ushort {vr(vRX)}, {vr(vRO)}, {sr(R0,4)}, 0 offen")
    a(f"buffer_load_ushort {vr(vRB)}, v12, {sr(R2,4)}, 0 offen")
    a(f"buffer_load_ushort v16, {vr(vRO)}, {sr(R1,4)}, 0 offen")
    a(f"v_lshrrev_b32 v12, 3, {vr(vLANE)}")
    a("v_lshlrev_b32 v13, 11, v12")
    a("v_lshl_add_u32 v13, v14, 2, v13")
    a(f"s_lshl_b32 {sr(sT2)}, {sr(sW4)}, 5")
    a(f"s_add_u32 {sr(sT0)}, {sr(sT0)}, {sr(sT2)}")
    a(f"s_add_u32 {sr(sT0)}, {sr(sT0)}, {WS_A}")
    a(f"v_add_u32 {vr(vRA)}, {sr(sT0)}, v13")
    a(f"s_lshl_b32 {sr(sC1)}, {sr(sC1)}, 4")
    a(f"s_sub_u32 {sr(sC1)}, 16, {sr(sC1)}")
    a("v_lshlrev_b32 v12, 12, v12")
    a(f"v_lshl_add_u32 {vr(vRY)}, v14, 4, v12")
    for u in range(1, 3): a(f"v_add_u32 {vr(vRY+u)}, {u*0x8000}, {vr(vRY)}")
    a("v_cmp_eq_u32 vcc, 7, v14")
    a("v_mov_b32 v13, 16")
    a("s_waitcnt vmcnt(0)")
    a("v_cndmask_b32 v13, 0, v13, vcc")
    a(f"v_xor_b32 v15, {sr(sT3)}, v15")
    a("v_lshlrev_b32 v15, v13, v15")
    a("v_cmp_ne_u32 vcc, 0, v15")
    a(f"v_lshlrev_b32 {vr(vRX)}, 16, {vr(vRX)}")
    a(f"v_lshlrev_b32 {vr(vRB)}, 16, {vr(vRB)}")
    a("s_cbranch_vccnz L_noR")
    if local: a(f"s_mov_b32 {sr(sU2)}, 7")
    g.lab("L_noR")
    poll("L_pollOs", [f"buffer_load_dwordx2 {vr(12+2*r,2)}, v23, {sr(RWS,4)}, {sr(sU0)} offen offset:{r*512+256} sc1" for r in range(4)],
         range(12, 20), 20, sleep=24)
    a("v_max3_f32 v20, v12, v14, v16")
    a("v_max_f32 v20, v20, v18")
    for r in range(4): a(f"v_sub_f32 {vr(28+r)}, {vr(12+2*r)}, v20")
    for r in range(4): a(f"v_exp_f32 {vr(28+r)}, {vr(28+r)}")
    a("v_cmp_eq_u32 vcc, 1, v24")
    for r in range(4): a(f"v_mul_f32 {vr(28+r)}, {vr(28+r)}, {vr(13+2*r)}")
    a("v_add_f32 v20, v28, v29")
    a("v_add_f32 v12, v30, v31")
    a("v_add_f32 v20, v20, v12")
    a("v_rcp_f32 v20, v20")
    for k in range(8): a(f"v_mov_b32 {vr(40+k)}, 0")
    a("v_cndmask_b32 v28, v28, v30, vcc")
    a("v_cndmask_b32 v29, v29, v31, vcc")
    for r in range(2): a(f"v_mul_f32 {vr(28+r)}, {vr(28+r)}, v20")
    stamp(4)
    lds_spin("L_trig", C_TRIG, 12, 1, sleep=2)
    stamp(5)
    def osm(nu, u): return f"v_smfmac_f32_16x16x64_bf16 {vr(32+4*nu,4)}, {vr(12+4*u,4)}, {vr(vB+16*nu+8*u,8)}, v22"
    poll("L_pollO", [f"buffer_load_dwordx4 {vr(12+4*u,4)}, v10, {sr(RWS,4)}, {sr(sU0)} offen offset:{u*128} sc1" for u in range(2)],
         range(12, 20), 20, pre=["s_nop 1"] + [f"v_mov_b32 {vr(32+k)}, 0" for k in range(8)] + ["s_nop 0"],
         spec=[osm(0, 0), osm(0, 1), osm(1, 0)], per=2, post=[osm(1, 1)])
    stamp(6)
    def oep(nu):
        return [f"v_pk_mul_f32 {vr(32+4*nu,2)}, {vr(32+4*nu,2)}, v[28:29] op_sel_hi:[1,0]",
                f"v_pk_fma_f32 {vr(32+4*nu,2)}, {vr(34+4*nu,2)}, v[28:29], {vr(32+4*nu,2)} op_sel:[0,1,0]",
                f"v_add_f32 {vr(48+nu)}, {vr(32+4*nu)}, {vr(33+4*nu)}"]
    e0, e1, e2, e3 = oep(0), oep(1), oep(2), oep(3)
    a(osm(2, 0)); a(osm(2, 1)); a(e0[0]); a(osm(3, 0)); a(e0[1]); a(osm(3, 1)); a(e0[2])
    for l in e1: a(l)
    a("s_nop 0")
    for l in e2: a(l)
    for l in e3: a(l)
    a(f"ds_write_b128 v11, v[48:51] offset:{L_RED}")
    a("s_mov_b64 exec, 1")
    a(f"ds_add_rtn_u32 v20, {vr(vZ)}, {vr(vONE)} offset:{C_ORED}")
    a("s_mov_b64 exec, -1")
    for w in range(4): a(f"ds_read_b128 {vr(32+4*w,4)}, v8 offset:{L_RED + w*1024}")
    a("s_waitcnt lgkmcnt(2)")
    a(f"v_readfirstlane_b32 {sr(sT0)}, v20")
    a("v_pk_add_f32 v[32:33], v[32:33], v[36:37]")
    a("v_pk_add_f32 v[34:35], v[34:35], v[38:39]")
    a("s_waitcnt lgkmcnt(1)")
    a("v_pk_add_f32 v[32:33], v[32:33], v[40:41]")
    a("v_pk_add_f32 v[34:35], v[34:35], v[42:43]")
    a("s_waitcnt lgkmcnt(0)")
    a("v_pk_add_f32 v[32:33], v[32:33], v[44:45]")
    a("v_pk_add_f32 v[34:35], v[34:35], v[46:47]")
    a(f"s_cmp_eq_u32 {sr(sT0)}, {sr(sU2)}")
    a("v_permlane16_swap_b32 v32, v33")
    a("v_permlane16_swap_b32 v34, v35")
    a("v_add_f32 v32, v32, v33")
    a("v_add_f32 v34, v34, v35")
    a("v_cvt_pk_bf16_f32 v32, v32, v34")
    a("s_cbranch_scc0 L_Onear")
    a(f"buffer_store_dword v32, v21, {sr(RWS,4)}, {sr(sC0)} offen sc1")
    stamp(7)
    a("s_branch L_Odone")
    g.lab("L_Onear")
    a(f"s_cmp_eq_u32 {sr(sT0)}, 3")
    a("s_cbranch_scc0 L_Odone")
    a(f"buffer_store_dword v32, v21, {sr(RWS,4)}, {sr(sC0)} offen")
    stamp(7)
    g.lab("L_Odone")
    a(f"s_cmp_eq_u32 {sr(sCLS)}, {XF}")
    a("s_cbranch_scc0 L_fin")
    def red8(b):
        a(f"v_permlane32_swap_b32 {vr(b)}, {vr(b+1)}")
        a(f"v_permlane32_swap_b32 {vr(b+2)}, {vr(b+3)}")
        a(f"v_add_f32 {vr(b)}, {vr(b)}, {vr(b+1)}")
        a(f"v_add_f32 {vr(b+2)}, {vr(b+2)}, {vr(b+3)}")
        a("s_nop 1")
        a(f"v_permlane16_swap_b32 {vr(b)}, {vr(b+2)}")
        a(f"v_add_f32 {vr(b)}, {vr(b)}, {vr(b+2)}")
        a("s_nop 1")
        a(f"v_add_f32_dpp {vr(b)}, {vr(b)}, {vr(b)} row_ror:8 {DPPF}")
    lds_spin("L_rw", C_ORED, 12, 4, sleep=1)
    poll("L_pollRa", [f"buffer_load_dword {vr(12+r)}, {vr(vRA)}, {sr(RWS,4)}, 0 offen offset:{(r&1)*1024 + (r>>1)*128} sc1" for r in range(4)],
         range(12, 16), 16, sleep=sleepR)
    for k in range(4): a(f"v_lshlrev_b32 {vr(12+k)}, {sr(sC1)}, {vr(12+k)}")
    for k in range(4): a(f"v_and_b32 {vr(12+k)}, 0xffff0000, {vr(12+k)}")
    a("s_nop 1")
    red8(12)
    if mimic: rnd(12, 12)
    a(f"v_add_f32 v136, {vr(vRX)}, v12")
    rnd(136, 136)
    if not mimic: a(f"v_add_f32 v136, v136, {vr(vRB)}")
    poll("L_pollRy", [f"buffer_load_dwordx4 {vr(32+4*u,4)}, {vr(vRY+u)}, {sr(R3,4)}, 0 offen sc1" for u in range(3)], range(32, 44), 16,
         post=["v_pk_add_f32 v[12:13], v[32:33], v[36:37]", "v_pk_add_f32 v[14:15], v[34:35], v[38:39]",
               "v_pk_add_f32 v[12:13], v[12:13], v[40:41]", "v_pk_add_f32 v[14:15], v[14:15], v[42:43]"], pipe=rpipe)
    stamp(8)
    red8(12)
    if mimic:
        rnd(12, 12)
        a(f"v_add_f32 v12, v12, {vr(vRB)}")
        rnd(12, 12)
    a("v_add_f32 v12, v12, v136")
    a("v_cvt_pk_bf16_f32 v12, v12, v12")
    a(f"buffer_store_short v12, {vr(vRO)}, {sr(R1,4)}, 0 offen")
    stamp(9)
    a("s_branch L_fin" if prof else "s_endpgm")

    g.lab("L_roleF")
    vW1 = 64
    vW2 = 128
    vA1 = 192
    vA2 = 224
    vAC = 240
    sF = sU0
    a(f"s_sub_u32 {sr(sF)}, {sr(sY)}, 8")
    a(f"s_lshl_b32 {sr(sU1)}, {sr(sF)}, 7")
    a(f"s_cmp_eq_u32 {sr(sW4)}, 1")
    a("s_cbranch_scc0 L_Fset")
    srd(R2, sW1, sU1, 0)
    a(f"s_sub_u32 {sr(R2+2)}, {512*2752}, {sr(sU1)}")
    a(f"v_lshrrev_b32 v12, 3, {vr(vLANE)}")
    a(f"v_and_b32 v13, 7, {vr(vLANE)}")
    a("v_mul_u32_u24 v12, 2752, v12")
    a("v_lshl_add_u32 v12, v13, 4, v12")
    a(f"s_mov_b32 {sr(sT3)}, {L_W}")
    g.lab("L_ldF")
    a(f"s_mov_b32 m0, {sr(sT3)}")
    a(f"s_waitcnt vmcnt({WF-1})")
    a(f"buffer_load_dwordx4 v12, {sr(R2,4)}, 0 offen {w1pol} lds")
    a(f"v_add_u32 v12, {8*2752}, v12")
    a(f"s_add_u32 {sr(sT3)}, {sr(sT3)}, 1024")
    a(f"s_cmp_lt_u32 {sr(sT3)}, {L_W + 65536}")
    a("s_cbranch_scc1 L_ldF")
    staged()
    g.lab("L_Fset")
    a(f"v_lshrrev_b32 v12, 1, {vr(vG)}")
    a("v_lshlrev_b32 v12, 7, v12")
    a(f"v_lshl_add_u32 v12, {vr(vI)}, 3, v12")
    a(f"v_and_b32 v15, 1, {vr(vG)}")
    a("v_lshl_add_u32 v12, v15, 2, v12")
    a("v_and_b32 v13, 0xc0, v12")
    a("v_and_b32 v14, 63, v12")
    a("v_lshl_add_u32 v13, v13, 1, v14")
    a(f"s_lshl_b32 {sr(sU2)}, {sr(sW4)}, 9")
    a(f"buffer_load_dword v40, v13, {sr(R0,4)}, {sr(sU2)} offen")
    a(f"buffer_load_dword v41, v13, {sr(R0,4)}, {sr(sU2)} offen offset:64")
    a(f"v_lshl_add_u32 v46, v12, 1, {sr(sU2)}")
    srd(R1, sB1, None, 2752)
    a(f"s_lshl_b32 {sr(sT0)}, {sr(sW4)}, 5")
    a(f"v_lshl_add_u32 v13, {vr(vI)}, 1, {sr(sT0)}")
    a(f"v_add_u32 v14, {sr(sU1)}, v13")
    a(f"buffer_load_ushort v44, v14, {sr(R1,4)}, 0 offen")
    a("v_lshl_add_u32 v47, v15, 7, v13")
    a(f"v_lshl_add_u32 v52, {vr(vG)}, 3, {sr(sT0)}")
    a("v_lshlrev_b32 v53, 6, v15")
    a(f"v_and_b32 v14, 1, {vr(vI)}")
    a(f"v_bfe_u32 v15, {vr(vI)}, 1, 1")
    a("v_lshlrev_b32 v13, 7, v14")
    a("v_lshl_add_u32 v13, v15, 6, v13")
    a(f"v_lshl_add_u32 v48, {vr(vG)}, 4, v13")
    a("v_mul_u32_u24 v51, 0xaaaa, v15")
    a("v_add_u32 v51, 0x4444, v51")
    a("v_mul_u32_u24 v50, 0xaaaa, v14")
    a("v_add_u32 v50, 0x4444, v50")
    a(f"v_bfe_u32 v13, {vr(vI)}, 2, 1")
    a("v_lshlrev_b32 v13, 10, v13")
    a("v_lshl_add_u32 v13, v14, 6, v13")
    a(f"v_lshl_add_u32 v49, {vr(vG)}, 4, v13")
    a("v_mov_b32 v38, 0x3f803f80")
    a(f"v_lshlrev_b32 v54, 11, {vr(vG)}")
    a(f"v_lshl_add_u32 v54, {vr(vI)}, 4, v54")
    a("v_add_u32 v55, 0x2000, v54")
    a(f"s_add_u32 {sr(sU2)}, {sr(sU2)}, {WS_A}")
    a(f"v_cmp_gt_u32 vcc, 8, {vr(vI)}")
    for k in range(4): a(f"v_and_b32 {vr(60+k)}, v38, {vr(vMASK+k)}")
    for k in range(4):
        a(f"v_cndmask_b32 {vr(56+k)}, 0, {vr(60+k)}, vcc")
        a(f"v_cndmask_b32 {vr(60+k)}, {vr(60+k)}, 0, vcc")
    for k in range(16): a(f"v_mov_b32 {vr(vA2+k)}, 0")
    a(f"s_lshl2_add_u32 {sr(sT0)}, {sr(sF)}, {sr(sW4)}")
    a(f"s_lshl_b32 {sr(sT0)}, {sr(sT0)}, 10")
    a(f"s_add_u32 {sr(sC0)}, {sr(sT0)}, {WS_Y}")
    a(f"s_mov_b32 {sr(sM0)}, 0x000f000f"); a(f"s_mov_b32 {sr(sM0+1)}, 0x000f000f")
    a(f"v_and_b32 v11, 3, {vr(vLANE)}")
    a("v_lshlrev_b32 v11, 3, v11")
    a(f"v_bfe_u32 v14, {vr(vLANE)}, 3, 1")
    a(f"v_bfe_u32 v13, {vr(vLANE)}, 2, 1")
    a("v_lshl_add_u32 v39, v14, 5, v13")
    a(f"v_lshl_add_u32 v39, {vr(vG)}, 2, v39")
    a(f"v_mul_u32_u24 v39, {W2P}, v39")
    a(f"s_lshl_b32 {sr(sT0)}, {sr(sW4)}, 8")
    a(f"s_add_u32 {sr(sT0)}, {sr(sT0)}, {L_W2}")
    a(f"v_add3_u32 v39, v39, v11, {sr(sT0)}")
    a("v_lshlrev_b32 v10, 5, v13")
    a("v_lshl_add_u32 v10, v14, 4, v10")
    a(f"v_lshl_add_u32 v10, {vr(vG)}, 1, v10")
    a("v_lshl_add_u32 v10, v10, 7, v11")
    a(f"s_lshl_b32 {sr(sT0)}, {sr(sW4)}, 5")
    a(f"s_add_u32 {sr(sT0)}, {sr(sT0)}, {L_W}")
    a(f"v_add_u32 v10, {sr(sT0)}, v10")
    lds_spin("L_stgF", C_STG, 12, 1, sleep=4)
    for s in range(8):
        for p in range(4):
            a(f"ds_read_b64_tr_b16 {vr(vW1+8*s+2*p,2)}, v10 offset:{(64*s + 8*(p>>1) + (p&1))*128}")
        if s & 1: a("s_waitcnt lgkmcnt(0)")
    wait_flags("L_cntF", 12)
    for k in range(4): a(f"v_mov_b32 {vr(vAC+k)}, 0"); a(f"v_mov_b32 {vr(16+k)}, v38")
    a("v_and_b32 v42, 0xffff0000, v40")
    a("v_and_b32 v43, 0xffff0000, v41")
    for s_ in range(8): a(f"v_smfmac_f32_16x16x64_bf16 {vr(vAC,4)}, v[16:19], {vr(vW1+8*s_,8)}, v50")
    a("v_lshlrev_b32 v40, 16, v40")
    a("v_lshlrev_b32 v41, 16, v41")
    a("v_lshlrev_b32 v44, 16, v44")
    a(f"s_lshl_b32 {sr(sT0)}, {sr(sF)}, 16")
    srd(R1, sW2, sT0, 0)
    a(f"s_sub_u32 {sr(R1+2)}, {1376*1024}, {sr(sT0)}")
    a(f"v_add_f32 v45, {vr(vAC)}, {vr(vAC+1)}")
    for k in range(12): a(f"v_mov_b32 {vr(vAC+k)}, 0")
    a(f"s_lshl_b32 {sr(sT0)}, {sr(sW4)}, 14")
    a(f"v_add_u32 v13, {sr(sT0)}, v8")
    a(f"s_mul_i32 {sr(sT2)}, {sr(sW4)}, {16*W2P}")
    stamp(4)
    lds_spin("L_tr2", C_TRIG2, 12, 4, sleep=1)
    for k in range(16):
        a(f"s_add_u32 m0, {sr(sT2)}, {L_W2 + k*W2P}")
        a(f"s_waitcnt vmcnt({W2W-1})")
        a(f"buffer_load_dwordx4 v13, {sr(R1,4)}, 0 offen nt lds")
        a("v_add_u32 v13, 0x400, v13")
    a("s_waitcnt vmcnt(0)")
    a("s_barrier")
    for nu in range(8):
        for p in range(4):
            a(f"ds_read_b64_tr_b16 {vr(vW2+8*nu+2*p,2)}, v39 offset:{(16*(p>>1) + 2*(p&1))*W2P + nu*32}")
    stamp(5)
    poll("L_pollF", [f"buffer_load_dwordx4 {vr(vA1+8*ch+4*u,4)}, {vr(54+u)}, {sr(RWS,4)}, {sr(sU2)} offen offset:{ch*256} sc1" for ch in range(2) for u in range(2)],
         range(vA1, vA1+16), 32,
         spec=[f"v_mfma_f32_16x16x32_bf16 v[28:31], v[56:59], {vr(vA1,4)}, {'0' if mimic else 'v[40:43]'}",
               f"v_mfma_f32_16x16x32_bf16 v[28:31], v[56:59], {vr(vA1+4,4)}, v[28:31]",
               f"v_mfma_f32_16x16x32_bf16 v[28:31], v[60:63], {vr(vA1+8,4)}, v[28:31]",
               f"v_mfma_f32_16x16x32_bf16 v[28:31], v[60:63], {vr(vA1+12,4)}, v[28:31]"], per=2,
         post=["s_nop 3"])
    stamp(6)
    if mimic:
        a("v_cvt_pk_bf16_f32 v28, v28, v29")
        a("v_cvt_pk_bf16_f32 v30, v30, v31")
        a("v_and_b32 v29, 0xffff0000, v28")
        a("v_and_b32 v31, 0xffff0000, v30")
        a("v_lshlrev_b32 v28, 16, v28")
        a("v_lshlrev_b32 v30, 16, v30")
        a("v_pk_add_f32 v[28:29], v[28:29], v[40:41]")
        a("v_pk_add_f32 v[30:31], v[30:31], v[42:43]")
    a("v_cvt_pk_bf16_f32 v28, v28, v29")
    a("v_cvt_pk_bf16_f32 v29, v30, v31")
    a(f"ds_write_b64 v46, v[28:29] offset:{L_HN}")
    a("v_dot2_f32_bf16 v32, v28, v38, 0")
    a("v_dot2_f32_bf16 v33, v28, v28, 0")
    a("v_dot2_f32_bf16 v32, v29, v38, v32")
    a("v_dot2_f32_bf16 v33, v29, v29, v33")
    a("s_nop 0")
    for st in ("quad_perm:[1,0,3,2]", "quad_perm:[2,3,0,1]", "row_ror:4", "row_ror:8"):
        a("s_nop 0")
        for r in (32, 33): a(f"v_add_f32_dpp {vr(r)}, {vr(r)}, {vr(r)} {st} {DPPF}")
    a(f"ds_write_b64 v52, v[32:33] offset:{L_FS}")
    a("s_waitcnt lgkmcnt(0)")
    a("s_barrier")
    order = [('a', 0), ('s', 0), ('s', 1), ('a', 1), ('s', 2), ('s', 3)] + [('a', k) for k in range(2, 8)]
    for kind, k in order:
        if kind == 'a': a(f"ds_read_b128 {vr(vA1+4*k,4)}, v49 offset:{L_HN + k*128}")
        else: a(f"ds_read_b128 {vr(12+4*k if k < 3 else 28,4)}, v53 offset:{L_FS + k*16}")
    keep = g.L; g.L = []
    a("v_pk_add_f32 v[12:13], v[12:13], v[14:15]"); a("v_pk_add_f32 v[16:17], v[16:17], v[18:19]")
    a("v_pk_add_f32 v[12:13], v[12:13], v[16:17]")
    a("v_pk_add_f32 v[20:21], v[20:21], v[22:23]"); a("v_pk_add_f32 v[28:29], v[28:29], v[30:31]")
    a("v_pk_add_f32 v[12:13], v[12:13], v[20:21]"); a("v_pk_add_f32 v[12:13], v[12:13], v[28:29]")
    a("v_mul_f32 v32, 0x3b000000, v12"); a("v_mul_f32 v33, 0x3b000000, v13")
    a("v_fma_f32 v33, -v32, v32, v33"); a("v_max_f32 v36, 0, v33")
    ln_scale(32, 36)
    work = [l.strip() for l in g.L]; g.L = keep
    plan = {1: 3, 2: 3, 3: 3, 4: 2, 5: 2, 6: 2}
    for k in range(8):
        a(f"s_waitcnt lgkmcnt({len(order) - 1 - order.index(('a', k))})")
        a(f"v_smfmac_f32_16x16x64_bf16 {vr(vAC,4)}, {vr(vA1+4*k,4)}, {vr(vW1+8*k,8)}, v50")
        for _ in range(plan.get(k, 0)): a(work.pop(0))
    stamp(7)
    nrest = len(work)
    for l in work: a(l)
    if nrest < 8: a(f"s_nop {7 - nrest}")
    a(f"v_add_f32 v28, {vr(vAC)}, {vr(vAC+1)}")
    a("v_fma_f32 v28, -v32, v45, v28")
    if mimic:
        a("v_mul_f32 v28, v28, v36")
        rnd(28, 28)
        a("v_add_f32 v28, v28, v44")
        rnd(28, 28)
    else:
        a("v_fma_f32 v28, v28, v36, v44")
    a("v_max_f32 v28, 0, v28")
    a("v_mul_f32 v28, v28, v28")
    a("v_cvt_pk_bf16_f32 v28, v28, v28")
    a(f"ds_write_b16 v47, v28 offset:{L_RR}")
    a(f"s_mov_b64 exec, {sr(sM0,2)}")
    a("s_waitcnt lgkmcnt(0)")
    a("s_barrier")
    for q in range(4):
        a(f"ds_read_b128 {vr(vA2+4*q,4)}, v48 offset:{L_RR}")
        if q < 3: a(f"s_lshl_b64 exec, {sr(sM0,2)}, {4*(q+1)}")
    a("s_mov_b64 exec, -1")
    a(f"s_cmp_eq_u32 {sr(sLOC)}, {LOCV}")
    for q in range(4):
        a(f"s_waitcnt lgkmcnt({3-q})")
        for aa in range(2):
            a(f"v_smfmac_f32_16x16x64_bf16 {vr(vAC+4+4*aa,4)}, {vr(vA2+4*q,4)}, {vr(vW2+8*(4*aa+q),8)}, v51")
    a("s_nop 5")
    a("s_cbranch_scc0 L_F2far")
    for pol in ("", "sc1"):
        if pol: g.lab("L_F2far")
        a(f"v_pk_add_f32 v[28:29], {vr(vAC+4,2)}, {vr(vAC+6,2)}")
        a(f"v_pk_add_f32 v[30:31], {vr(vAC+8,2)}, {vr(vAC+10,2)}")
        a(f"buffer_store_dwordx4 v[28:31], v8, {sr(RWS,4)}, {sr(sC0)} offen {pol}")
        stamp(8)
        if not pol: a("s_branch L_fin")

    g.lab("L_fin")
    if diag or agg or store_prof:
        import diagcode
        diagcode.emit(locals())
    g.lab("L_end")
    a("s_endpgm")

    nv = 252
    out = [HEADER.rstrip("\n"),
           f"; @launch grid=(256,1,1) block=(512,1,1) lds={L_END}",
           '.amdgcn_target "amdgcn-amd-amdhsa--gfx950"', ".text", f".globl {NAME}_kernel", ".p2align 8",
           f".type {NAME}_kernel,@function", f"{NAME}_kernel:"]
    out += g.L
    out += ['.section .rodata,"a"', ".p2align 6", f".amdhsa_kernel {NAME}_kernel",
            f"  .amdhsa_next_free_vgpr {nv}", "  .amdhsa_next_free_sgpr 100", f"  .amdhsa_accum_offset {nv}",
            "  .amdhsa_group_segment_fixed_size 0", "  .amdhsa_kernarg_size 104",
            "  .amdhsa_user_sgpr_count 2", "  .amdhsa_user_sgpr_kernarg_segment_ptr 1",
            "  .amdhsa_system_sgpr_workgroup_id_x 1", "  .amdhsa_float_denorm_mode_32 3",
            ".end_amdhsa_kernel"]
    return "\n".join(out) + "\n"

if __name__ == "__main__":
    kw = eval("dict(" + (sys.argv[2] if len(sys.argv) > 2 else "") + ")")
    open(sys.argv[1], "w").write(gen(**kw))
```

```python
import struct, sys
NAME = "sequential_preLN__mha_block_cached__dense_activation_squared_relu__decode"

def f2u(x): return struct.unpack("<I", struct.pack("<f", x))[0]
LOG2E = f2u(1.4426950408889634)
SCALE = f2u(128 ** -0.5)
EPS = f2u(1e-5)
NF = 22

WS_P = 0
WS_A = 0x20000
WS_Y = 0x30000
WS_R = 0x50000
WS_QF = 0x60000
WS_QD = 0x80000
WS_IN = 0x100000
WS_END = 0x200000
STAMP_OFF = 128 << 20

C_COMB, C_STAT, C_STG, C_ORED, C_Q, C_QP, C_TRIG, C_TRIG2 = [16*i for i in range(8)]
L_Q = 128
L_ST = L_Q + 256
L_FS = L_ST + 64
L_RR = L_FS + 128
L_O = 1024
L_HN = L_O + 2048
L_RED = L_HN + 2048
L_W = L_RED + 4096
W2P = 1056
L_W2 = L_W + 0x10000
L_END = L_W2 + 64 * W2P
SPIN_MAX = 400000

HEADER = open("cdna_kernels/" + NAME + ".s.ref").read().split("; Override launch")[0]

class G:
    def __init__(s): s.L = []
    def __call__(s, x): s.L.append("  " + x)
    def lab(s, x): s.L.append(x + ":")
    def c(s, x): s.L.append("  ; " + x)

def gen(prof=False, diag=None, agg=None, dbg='', local=True, forcefb=False,
        D=5, DH=6, DE=8, NE=8, N0=40, budget=40, ramp=(), XF=2, WO=5, WF=5, W2W=16, QTRY=32,
        NSTAT=92, NTRIG=126, NT2=127, chk=(60,), r0=10, rs=4, kF=16, kO=0, kX=0,
        lin='1 2 30 8 800 80 200 480 a0 53c 40 140 0 100 0 400 0 0', qmode=1, pfw2=True, sleepR=2, mimic=False, rpipe=False,
        w1pol='', qsleep=0, qprio=0, kvpol='nt', pfo='', pf1=''):
    g = G()
    a = g
    dbg = set(dbg.split())
    if agg: prof = True
    store_prof = prof
    if diag: prof = True
    lin = [int(t_, 16) & ~3 for t_ in lin.split()]
    def vr(r, n=1): return f"v{r}" if n == 1 else f"v[{r}:{r+n-1}]"
    def sr(r, n=1): return f"s{r}" if n == 1 else f"s[{r}:{r+n-1}]"
    DPPF = "row_mask:0xf bank_mask:0xf"
    sX, sK, sV, sWQ, sWO, sBX, sW1, sB1 = 4, 6, 8, 10, 12, 14, 16, 18
    sW2, sB2, sOUT, sDBG, sWS = 20, 22, 24, 26, 28
    sWAVE, sH, sB, sSUB, sW4 = 30, 31, 32, 34, 35
    sT0, sT1, sT2, sT3 = 36, 37, 38, 39
    R0, R1, R2, R3, RWS = 40, 44, 48, 52, 56
    sSO, sSPIN, sSLOT, sXCC = 60, 61, 62, 63
    sM0 = 64
    sC0, sC1 = 66, 67
    sCLS, sY, sLOC, sU3 = 68, 69, 70, 71
    sST = 72
    sU0, sU1, sU2, sROLE = 96, 97, 98, 99
    def stamp(i):
        if prof: a(f"s_memrealtime {sr(sST+2*i,2)}")
    def srd(R, base, off_sgpr, nrec):
        if off_sgpr is None:
            a(f"s_mov_b64 {sr(R,2)}, {sr(base,2)}")
        else:
            a(f"s_add_u32 {sr(R)}, {sr(base)}, {sr(off_sgpr)}"); a(f"s_addc_u32 {sr(R+1)}, {sr(base+1)}, 0")
        a(f"s_mov_b32 {sr(R+2)}, {nrec}"); a(f"s_mov_b32 {sr(R+3)}, 0x20000")
    def rnd(dst, src):
        a(f"v_cvt_pk_bf16_f32 {vr(dst)}, {vr(src)}, {vr(src)}")
        a(f"v_lshlrev_b32 {vr(dst)}, 16, {vr(dst)}")
    def allred(op, r, t, quad=True, s32=True):
        for st in (["quad_perm:[1,0,3,2]", "quad_perm:[2,3,0,1]"] if quad else []) + ["row_ror:4", "row_ror:8"]:
            a("s_nop 1")
            a(f"{op}_dpp {vr(r)}, {vr(r)}, {vr(r)} {st} {DPPF}")
        for sw in ("v_permlane16_swap_b32", "v_permlane32_swap_b32")[:2 if s32 else 1]:
            a(f"v_mov_b32 {vr(t)}, {vr(r)}")
            a("s_nop 1")
            a(f"{sw} {vr(r)}, {vr(t)}")
            a(f"{op} {vr(r)}, {vr(r)}, {vr(t)}")
    def sent_ops(regs, tmp):
        rs_ = list(regs); o = []
        if len(rs_) == 1: return [f"v_cmp_eq_u32 vcc, -1, {vr(rs_[0])}"]
        o.append(f"v_max3_u32 {vr(tmp)}, {vr(rs_[0])}, {vr(rs_[1])}, {vr(rs_[2])}"); rs_ = rs_[3:]
        while len(rs_) >= 2:
            o.append(f"v_max3_u32 {vr(tmp)}, {vr(tmp)}, {vr(rs_[0])}, {vr(rs_[1])}"); rs_ = rs_[2:]
        if rs_: o.append(f"v_max_u32 {vr(tmp)}, {vr(tmp)}, {vr(rs_[0])}")
        o.append(f"v_cmp_eq_u32 vcc, -1, {vr(tmp)}")
        return o
    def poll(label, loads, regs, tmp, spin=SPIN_MAX, fail=None, pre=(), spec=(), per=99, post=(), sleep=0, pipe=False):
        a(f"s_mov_b32 {sr(sSPIN)}, {spin}")
        if pipe:
            for l in loads: a(l)
        a(f"s_branch {label}")
        g.lab(label + "_r")
        a(f"s_sub_u32 {sr(sSPIN)}, {sr(sSPIN)}, 1")
        a(f"s_cbranch_scc1 {fail or label + '_x'}")
        if sleep: a(f"s_sleep {sleep}")
        a("s_mov_b64 exec, vcc")
        g.lab(label)
        for l in loads: a(l)
        a("s_mov_b64 exec, -1")
        for l in pre: a(l)
        a(f"s_waitcnt vmcnt({len(loads) if pipe else 0})")
        chk_ = sent_ops(regs, tmp); spec = list(spec)
        while spec:
            a(spec.pop(0))
            for _ in range(per):
                if chk_: a(chk_.pop(0))
        for l in chk_: a(l)
        for l in post: a(l)
        a(f"s_cbranch_vccnz {label}_r")
        g.lab(label + "_x")
    def flags_addr(v, t):
        a(f"v_lshrrev_b32 {vr(v)}, 1, {vr(vI)}")
        a(f"v_lshlrev_b32 {vr(v)}, 5, {vr(v)}")
        a(f"v_and_b32 {vr(t)}, 1, {vr(vI)}")
        a(f"v_lshl_add_u32 {vr(v)}, {vr(t)}, 2, {vr(v)}")
    def flags_eval(v, t):
        a(f"s_mov_b32 {sr(sT0)}, 0x80808080")
        a(f"s_mul_i32 {sr(sT1)}, {sr(sXCC)}, 0x01010101")
        a(f"v_and_b32 {vr(t)}, {sr(sT0)}, {vr(v)}")
        a(f"v_cmp_eq_u32 {sr(sT2,2)}, {sr(sT1)}, {vr(v)}")
        a(f"v_cmp_ne_u32 vcc, {sr(sT0)}, {vr(t)}")
        a(f"s_lshl_b32 {sr(sT0)}, {sr(sCLS)}, 1")
        a(f"s_lshr_b32 {sr(sLOC)}, {sr(sT2)}, {sr(sT0)}")
        a(f"s_and_b32 {sr(sLOC)}, {sr(sLOC)}, 3")
        a(f"s_and_b32 {sr(sU3)}, vcc_lo, 0xffff")
    def wait_flags(label, v):
        a(f"s_mov_b32 {sr(sSPIN)}, {SPIN_MAX}")
        flags_addr(v+1, v+2)
        g.lab(label)
        a(f"global_load_dword {vr(v)}, {vr(v+1)}, {sr(sDBG,2)} sc1")
        a("s_waitcnt vmcnt(0)")
        flags_eval(v, v+2)
        a(f"s_cbranch_scc0 {label}_x")
        a("s_sleep 16")
        a(f"s_sub_u32 {sr(sSPIN)}, {sr(sSPIN)}, 4")
        a(f"s_cbranch_scc0 {label}")
        g.lab(label + "_x")
    def lds_spin(label, off, vt, want, sleep=0):
        g.lab(label)
        a(f"ds_read_b32 {vr(vt)}, {vr(vZ)} offset:{off}")
        if sleep: a(f"s_sleep {sleep}")
        a("s_waitcnt lgkmcnt(0)")
        a(f"v_cmp_ne_u32 vcc, {want}, {vr(vt)}")
        a(f"s_cbranch_vccnz {label}")
    def make_masks(both):
        a(f"v_and_b32 v10, 1, {vr(vI)}")
        a("v_lshlrev_b32 v10, 4, v10")
        a("v_mov_b32 v9, 0xffff")
        a("v_lshlrev_b32 v10, v10, v9")
        if both: a(f"v_bfe_u32 v9, {vr(vI)}, 1, 2")
        else: a(f"v_lshrrev_b32 v9, 1, {vr(vI)}")
        for r in range(4):
            a(f"v_cmp_eq_u32 vcc, {r}, v9")
            a("s_nop 1")
            a(f"v_cndmask_b32 {vr(vMASK+r)}, 0, v10, vcc")
    def ln_scale(vmean, vvar):
        rnd(vvar, vvar)
        a(f"v_add_f32 {vr(vvar)}, {EPS:#x}, {vr(vvar)}")
        rnd(vvar, vvar)
        a(f"v_sqrt_f32 {vr(vvar)}, {vr(vvar)}")
        rnd(vmean, vmean)
        rnd(vvar, vvar)
        a(f"v_rcp_f32 {vr(vvar)}, {vr(vvar)}")
    LOCV = 3 if local else 99

    vLANE, vI, vG = 1, 2, 3
    vMASK = 4
    vZ, vONE = 26, 27
    a(f"s_load_dwordx16 {sr(4,16)}, s[0:1], 0")
    a(f"s_load_dwordx8 {sr(20,8)}, s[0:1], 64")
    a(f"s_load_dwordx2 {sr(28,2)}, s[0:1], 96")
    a(f"s_lshr_b32 {sr(sT0)}, s2, 8")
    a("s_cbranch_scc1 L_end")
    stamp(0)
    a(f"s_and_b32 {sr(sH)}, s2, 31")
    a(f"s_lshr_b32 {sr(sSUB)}, s2, 5")
    a(f"s_lshl3_add_u32 {sr(sSLOT)}, {sr(sH)}, {sr(sSUB)}")
    a(f"s_lshl_b32 {sr(sT0)}, {sr(sSLOT)}, 14")
    a("v_lshlrev_b32 v10, 4, v0")
    a(f"v_mov_b32 {vr(vZ)}, 0")
    a(f"ds_write_b32 v10, {vr(vZ)}")
    a(f"v_lshl_add_u32 v9, v0, 5, {sr(sT0)}")
    a(f"s_mul_i32 {sr(sT0)}, s2, 5504")
    a("v_min_u32 v11, 5488, v10")
    a(f"v_add_u32 v11, {sr(sT0)}, v11")
    a("s_waitcnt lgkmcnt(0)")
    npf = 0
    if 'nopf' not in dbg:
        a(f"global_load_dword v250, v9, {sr(sWO,2)} {pfo}")
        a(f"global_load_dword v251, v11, {sr(sW1,2)} {pf1}")
        if pfw2: a(f"global_load_dword v249, v11, {sr(sW2,2)}")
        npf = 3 if pfw2 else 2
    a("s_barrier")
    if prof:
        for i in range(1, 12): a(f"s_mov_b64 {sr(sST+2*i,2)}, 0")
    stamp(1)
    a(f"v_lshrrev_b32 {vr(vI)}, 6, v0")
    a(f"v_and_b32 {vr(vLANE)}, 63, v0")
    a(f"s_lshr_b32 {sr(sB)}, s2, 7")
    a(f"v_readfirstlane_b32 {sr(sWAVE)}, {vr(vI)}")
    a(f"v_and_b32 {vr(vI)}, 15, {vr(vLANE)}")
    a(f"v_lshrrev_b32 {vr(vG)}, 4, {vr(vLANE)}")
    a(f"v_lshlrev_b32 v8, 4, {vr(vLANE)}")
    a(f"s_and_b32 {sr(sW4)}, {sr(sWAVE)}, 3")
    srd(RWS, sWS, None, WS_END)
    a(f"s_cmp_lt_u32 {sr(sWAVE)}, 4")
    a("s_cbranch_scc1 L_stream")
    a(f"s_cmp_eq_u32 {sr(sWAVE)}, 4")
    a("s_cbranch_scc0 L_other")
    def common2():
        a(f"s_and_b32 {sr(sCLS)}, s2, 7")
        a(f"s_lshr_b32 {sr(sY)}, s2, 3")
        a(f"s_getreg_b32 {sr(sXCC)}, hwreg(HW_REG_XCC_ID, 0, 3)")
        a(f"s_or_b32 {sr(sXCC)}, {sr(sXCC)}, 0x80")
        a(f"v_mov_b32 {vr(vONE)}, 1")
        a(f"s_cmp_lt_u32 {sr(sY)}, {8+NF}")
        a(f"s_cselect_b32 {sr(sROLE)}, 2, 0")
        a(f"s_cmp_eq_u32 {sr(sCLS)}, {XF}")
        a(f"s_cselect_b32 {sr(sROLE)}, {sr(sROLE)}, 0")
        a(f"s_cmp_lt_u32 {sr(sY)}, 8")
        a(f"s_cselect_b32 {sr(sROLE)}, 1, {sr(sROLE)}")

    hW = 64
    if qprio: a(f"s_setprio {qprio}")
    for k in range(4): a(f"v_mov_b32 {vr(16+k)}, -1")
    if qmode == 0:
        a(f"s_lshl_b32 {sr(sU0)}, {sr(sSLOT)}, 12")
        a(f"s_add_u32 {sr(sU0)}, {sr(sU0)}, {WS_IN}")
        for u in range(4):
            a(f"buffer_store_dwordx4 v[16:19], v8, {sr(RWS,4)}, {sr(sU0)} offen offset:{u*1024}")
    else:
        a(f"s_lshl_b32 {sr(sU0)}, {sr(sSLOT)}, 7")
        a(f"s_add_u32 {sr(sU0)}, {sr(sU0)}, {WS_QF}")
        a("s_mov_b64 exec, 0xff")
        a(f"buffer_store_dwordx4 v[16:19], v8, {sr(RWS,4)}, {sr(sU0)} offen")
        a("s_mov_b64 exec, -1")
    a(f"v_lshlrev_b32 v12, 5, {vr(vLANE)}")
    srd(R0, sX, None, 2048)
    a(f"buffer_load_dwordx4 v[20:23], v12, {sr(R0,4)}, 0 offen")
    a(f"buffer_load_dwordx4 v[128:131], v12, {sr(R0,4)}, 0 offen offset:16")
    a(f"v_lshlrev_b32 v11, 13, {vr(vG)}")
    a(f"v_lshl_add_u32 v11, {vr(vI)}, 4, v11")
    a(f"v_lshl_add_u32 v63, {vr(vI)}, 2, {vr(vG)}")
    a("v_lshlrev_b32 v63, 1, v63")
    a(f"s_lshl_b32 {sr(sT0)}, {sr(sH)}, 8")
    a(f"s_lshl_b32 {sr(sSO)}, {sr(sSUB)}, 19")
    srd(R1, sWQ, sT0, 511*8192 + 256)
    a(f"s_mov_b32 {sr(sU3)}, 0")
    g.lab("L_qload")
    a(f"s_lshr_b32 {sr(sT2)}, {sr(sSO)}, 12")
    a(f"buffer_load_ushort v14, v63, {sr(R0,4)}, {sr(sT2)} offen")
    a(f"buffer_load_ushort v15, v63, {sr(R0,4)}, {sr(sT2)} offen offset:1024")
    for t in range(16):
        a(f"buffer_load_dwordx4 {vr(hW+4*t,4)}, v11, {sr(R1,4)}, {sr(sSO)} offen nt")
        a(f"s_add_u32 {sr(sSO)}, {sr(sSO)}, 0x8000")
    a("s_branch L_q2")

    g.lab("L_stream")
    vOFF = 8
    vQ, vP, vU = 12, 16, 20
    vMX, vL, vT = 22, 23, 24
    vACC, vA, vF, vS, vRING = 28, 32, 40, 48, 64
    NR = N0
    assert vRING + 4*NR <= 249
    sPAT, sJW, sK0 = sU0, sU1, sU2
    a(f"s_lshl_b32 {sr(sT0)}, {sr(sB)}, 5")
    a(f"s_add_u32 {sr(sT0)}, {sr(sT0)}, {sr(sH)}")
    a(f"s_lshl_b32 {sr(sT0)}, {sr(sT0)}, 20")
    srd(R0, sK, sT0, 1 << 20)
    first = True
    for (reg, bit), col in zip([(sW4, 0), (sW4, 1), (2, 5), (2, 6)] + [(2, k) for k in range(5)] + [(2, 7)], lin[8:18]):
        if col:
            a(f"s_bitcmp1_b32 {sr(reg)}, {bit}")
            a(f"s_cselect_b32 {sr(sJW if first else sT2)}, {col << 8:#x}, 0")
            if not first: a(f"s_xor_b32 {sr(sJW)}, {sr(sJW)}, {sr(sT2)}")
            first = False
    ops = [('pf', m) for m in range(npf)]
    landed = [-1]
    def wait_vm(n):
        a(f"s_waitcnt vmcnt({n})")
        landed[0] = max(landed[0], len(ops) - 1 - n)
    def slot(n): return vRING + (n % NR) * 4
    done = set()
    usepat = bool(chk) or kF or kO or kX
    def issue(n):
        assert n < NR or (n - NR) in done, n
        c_ = 0
        for k in range(6):
            if n >> k & 1: c_ ^= lin[2 + k]
        a(f"s_xor_b32 {sr(sSO)}, {sr(sJW)}, {c_ << 8:#x}")
        def cnt(d):
            k = c = 0
            for o in reversed(ops):
                if o[0] != 'x':
                    if k == d - 1: break
                    k += 1
                c += 1
            return c
        if n < len(ramp) or not usepat or n < 6 or n >= 128 - NE:
            d = ramp[n] if n < len(ramp) else (DE if n >= 128 - NE else D)
            if len(ops) >= d: wait_vm(cnt(d))
        else:
            a(f"s_bitcmp1_b32 {sr(sPAT)}, {n & 31}")
            lo = cnt(D)
            wait_vm(cnt(DH))
            a(f"s_cbranch_scc1 L_w{n}")
            a(f"s_waitcnt vmcnt({lo})")
            g.lab(f"L_w{n}")
        a(f"buffer_load_dwordx4 {vr(slot(n),4)}, {vr(vOFF)}, {sr(R0 if n < 64 else R1,4)}, {sr(sSO)} offen {kvpol}")
        ops.append(('ld', n))
    def has(key): return key in ops and ops.index(key) <= landed[0]
    chunks = []
    def k_item(n):
        def f():
            r = n & 3
            for k in range(4):
                a(f"v_dot2_f32_bf16 {vr(vP+r)}, {vr(slot(n)+k)}, {vr(vQ+k)}, {'0' if k == 0 else vr(vP+r)}")
        chunks.append((('ld', n), 5, f, n))
    def k_block(t):
        def f():
            s = vS + t
            a(f"v_add_f32_dpp {vr(vU)}, {vr(vP)}, {vr(vP)} row_ror:8 row_mask:0xf bank_mask:0x3")
            a(f"v_add_f32_dpp {vr(vU+1)}, {vr(vP+1)}, {vr(vP+1)} row_ror:8 row_mask:0xf bank_mask:0x3")
            a(f"v_add_f32_dpp {vr(vU)}, {vr(vP+2)}, {vr(vP+2)} row_ror:8 row_mask:0xf bank_mask:0xc")
            a(f"v_add_f32_dpp {vr(vU+1)}, {vr(vP+3)}, {vr(vP+3)} row_ror:8 row_mask:0xf bank_mask:0xc")
            a("s_nop 0")
            a(f"v_add_f32_dpp {vr(s)}, {vr(vU)}, {vr(vU)} row_shl:4 row_mask:0xf bank_mask:0x5")
            a(f"v_add_f32_dpp {vr(s)}, {vr(vU+1)}, {vr(vU+1)} row_shr:4 row_mask:0xf bank_mask:0xa")
            a("s_nop 1")
            a(f"v_add_f32_dpp {vr(s)}, {vr(s)}, {vr(s)} quad_perm:[1,0,3,2] {DPPF}")
            a("s_nop 1")
            a(f"v_add_f32_dpp {vr(s)}, {vr(s)}, {vr(s)} quad_perm:[2,3,0,1] {DPPF}")
            rnd(s, s)
            a(f"v_mul_f32 {vr(s)}, {sr(sC1)}, {vr(s)}")
            rnd(s, s)
            a(f"v_max_f32 {vr(vMX)}, {vr(vMX)}, {vr(s)}")
        chunks.append((None, 19, f, None))
    def v_item(n):
        def f():
            m = n - 64
            t, r = m >> 2, m & 3
            A = vA + 4 * (m & 1)
            for k in range(4):
                a(f"v_and_b32_dpp {vr(A+k)}, {vr(vS+t)}, {vr(vMASK+k)} row_newbcast:{4*r} {DPPF}")
            if has(('ld', n)):
                a("s_nop 1")
            else:
                a("s_nop 0")
                wait_vm(len(ops) - 1 - ops.index(('ld', n)))
            a(f"v_mfma_f32_16x16x32_bf16 {vr(vACC,4)}, {vr(A,4)}, {vr(slot(n),4)}, {'0' if m == 0 else vr(vACC,4)}")
        chunks.append((('ld', n), 8, f, n))
    for t in range(16):
        for r in range(4): k_item(4*t + r)
        k_block(t)
    def c_max():
        stamp(3)
        allred("v_max_f32", vMX, vT, quad=False)
        a(f"v_mul_f32 {vr(vMX)}, {sr(sC0)}, {vr(vMX)}")
        a(f"v_mov_b32 {vr(vL)}, 0")
    chunks.append((None, 24, c_max, None))
    for t0 in range(0, 16, 4):
        def f(t0=t0):
            rs_ = [vS + t for t in range(t0, t0 + 4)]
            for s in rs_: a(f"v_fma_f32 {vr(s)}, {vr(s)}, {sr(sC0)}, -{vr(vMX)}")
            for s in rs_: a(f"v_exp_f32 {vr(s)}, {vr(s)}")
            for s in rs_:
                a(f"v_add_f32 {vr(vL)}, {vr(vL)}, {vr(s)}")
                a(f"v_cvt_pk_bf16_f32 {vr(s)}, {vr(s)}, {vr(s)}")
        chunks.append((None, 20, f, None))
    sum_done = [False]
    def c_sum():
        allred("v_add_f32", vL, vT, quad=False)
        a(f"s_lshl_b32 {sr(sT0)}, {sr(sW4)}, 3")
        a(f"v_mov_b32 {vr(vT)}, {sr(sT0)}")
        a("s_mov_b64 exec, 1")
        a(f"ds_write_b64 {vr(vT)}, {vr(vMX,2)} offset:{L_ST}")
        a(f"ds_add_u32 {vr(vZ)}, {vr(vONE)} offset:{C_STAT}")
        a("s_mov_b64 exec, -1")
        sum_done[0] = True
    chunks.append((None, 28, c_sum, None))
    for n in range(64, 128): v_item(n)
    def x_cls_load():
        flags_addr(46, 45)
        a("s_mov_b64 exec, 0xffff")
        a(f"global_load_dword v44, v46, {sr(sDBG,2)} sc1")
        a("s_mov_b64 exec, -1")
        ops.append(('x', 'cls'))
    def x_flags():
        assert has(('x', 'cls'))
        flags_eval(44, 45)
        a(f"s_cselect_b32 {sr(sT0)}, {1 << 24}, 0")
        a(f"s_and_b32 {sr(sT1)}, {sr(sY)}, 7")
        a(f"s_lshl4_add_u32 {sr(sT1)}, {sr(sT1)}, {sr(sW4)}")
        a(f"s_lshl_b32 {sr(sT1)}, {sr(sT1)}, 7")
        a(f"s_add_u32 {sr(sT0)}, {sr(sT0)}, {sr(sT1)}")
        a(f"s_add_u32 {sr(sT0)}, {sr(sT0)}, {WS_R}")
        a(f"v_mov_b32 v47, {sr(sT0)}")
    def x_arrive(c):
        def f():
            a("v_mov_b32 v25, 1")
            a("s_mov_b64 exec, 1")
            a(f"buffer_atomic_add v25, v47, {sr(RWS,4)}, 0 offen offset:{c*512} sc0 sc1")
            a("s_mov_b64 exec, -1")
            ops.append(('x', f'arr{c}'))
        return f
    def x_rank(c):
        def f():
            assert has(('x', f'arr{c}'))
            a(f"v_readfirstlane_b32 {sr(sT0)}, v25")
            a(f"s_sub_i32 {sr(sT0)}, {sr(sT0)}, {r0 - 1}")
            a(f"s_max_i32 {sr(sT0)}, {sr(sT0)}, 0")
            a(f"s_mul_i32 {sr(sT0)}, {sr(sT0)}, {sr(sT0)}")
            a(f"s_lshr_b32 {sr(sT0)}, {sr(sT0)}, {rs[c] if isinstance(rs, tuple) else rs}")
            a(f"s_add_u32 {sr(sT0)}, {sr(sT0)}, {sr(sK0)}")
            a(f"s_min_u32 {sr(sT0)}, {sr(sT0)}, 32")
            a(f"s_bfm_b64 {sr(sT2,2)}, {sr(sT0)}, 0")
            a(f"s_mov_b32 {sr(sPAT)}, {sr(sT2)}")
        return f
    def x_stats():
        assert sum_done[0]
        a(f"s_mov_b32 {sr(sSPIN)}, {SPIN_MAX}")
        a(f"s_cmp_lg_u32 {sr(sU3)}, 0")
        a("s_cbranch_scc1 L_cwait")
        g.lab("L_sspin")
        a(f"ds_read_b32 v20, {vr(vZ)} offset:{C_STAT}")
        a(f"ds_read_b128 v[12:15], {vr(vZ)} offset:{L_ST}")
        a(f"ds_read_b128 v[16:19], {vr(vZ)} offset:{L_ST+16}")
        a("s_waitcnt lgkmcnt(0)")
        a("v_cmp_ne_u32 vcc, 4, v20")
        a("s_cbranch_vccnz L_sspin")
        a("v_max3_f32 v20, v12, v14, v16")
        a("v_max_f32 v20, v20, v18")
        for w in range(4): a(f"v_sub_f32 {vr(vF+w)}, {vr(12+2*w)}, v20")
        for w in range(4): a(f"v_exp_f32 {vr(vF+w)}, {vr(vF+w)}")
        a(f"s_lshl_b32 {sr(sT0)}, {sr(sW4)}, 24")
        a(f"v_mul_f32 v21, {vr(vF)}, v13")
        for w in range(1, 4): a(f"v_fmac_f32 v21, {vr(vF+w)}, {vr(13+2*w)}")
        a(f"v_mov_b32 v12, {sr(sT0)}")
        a("v_rcp_f32 v13, v21")
        a("s_mov_b64 exec, 1")
        a(f"s_cmp_eq_u32 {sr(sLOC)}, {LOCV}")
        a("s_cbranch_scc1 L_st_loc")
        a(f"buffer_store_dwordx2 v[20:21], v12, {sr(RWS,4)}, {sr(sSLOT)} offen offset:256 sc1")
        a("s_branch L_st_done")
        g.lab("L_st_loc")
        a(f"buffer_store_dwordx2 v[20:21], v12, {sr(RWS,4)}, {sr(sSLOT)} offen offset:256")
        g.lab("L_st_done")
        ops.append(('x', 'st'))
        a("s_mov_b64 exec, -1")
        for w in range(4): a(f"v_mul_f32 {vr(vF+w)}, {vr(vF+w)}, v13")
        stamp(4)
    def x_trig():
        a(f"ds_write_b32 {vr(vZ)}, {vr(vONE)} offset:{C_TRIG}")
    def x_trig2():
        a("s_mov_b64 exec, 1")
        a(f"ds_add_u32 {vr(vZ)}, {vr(vONE)} offset:{C_TRIG2}")
        a("s_mov_b64 exec, -1")
    lagx = max(D, DH) + 1
    nfl = (min(chk) if chk else NSTAT) - 1
    extra = {nfl - lagx: x_cls_load, nfl: x_flags, NSTAT: x_stats, NTRIG: x_trig, NT2: x_trig2}
    for c, n_ in enumerate(chk):
        assert n_ not in extra and n_ + lagx not in extra
        extra[n_] = x_arrive(c); extra[n_ + lagx] = x_rank(c)
    ci = [0]
    def run_chunks(bud, force=False):
        while ci[0] < len(chunks):
            needs, cost, fn, frees = chunks[ci[0]]
            if not force:
                if needs is not None and not has(needs): break
                if cost > bud: break
            fn(); bud -= cost; ci[0] += 1
            if frees is not None: done.add(frees)
    for n in range(N0):
        issue(n)
        if n in extra: extra[n]()
        if n == 1:
            srd(R1, sV, sT0, 1 << 20)
            common2()
            a(f"s_lshl_b32 {sr(sSLOT)}, {sr(sSLOT)}, 9")
            a(f"s_mov_b32 {sr(sC0)}, {LOG2E:#x}")
            a(f"s_mov_b32 {sr(sC1)}, {SCALE:#x}")
            if usepat:
                a(f"s_cmp_eq_u32 {sr(sCLS)}, {XF}")
                a(f"s_cselect_b32 {sr(sK0)}, {kX}, 0")
                a(f"s_cmp_eq_u32 {sr(sROLE)}, 1")
                a(f"s_cselect_b32 {sr(sT1)}, {kO}, 0")
                a(f"s_add_u32 {sr(sK0)}, {sr(sK0)}, {sr(sT1)}")
                a(f"s_cmp_eq_u32 {sr(sROLE)}, 2")
                a(f"s_cselect_b32 {sr(sK0)}, {kF}, {sr(sK0)}")
                a(f"s_bfm_b64 {sr(sT2,2)}, {sr(sK0)}, 0")
                a(f"s_mov_b32 {sr(sPAT)}, {sr(sT2)}")
            make_masks(False)
            a(f"v_lshlrev_b32 v9, 4, {vr(vI)}")
            a("v_lshrrev_b32 v11, 1, v8")
            a(f"s_lshl_b32 {sr(sT1)}, {sr(sW4)}, 9")
            a(f"v_add_u32 v10, {sr(sT1)}, v8")
            a(f"v_mov_b32 {vr(vMX)}, 0xff800000")
    g.lab("L_qspin")
    a(f"ds_read_b32 {vr(vT)}, {vr(vZ)} offset:{C_Q}")
    a(f"ds_read_b128 {vr(vQ,4)}, v9 offset:{L_Q}")
    a("s_waitcnt lgkmcnt(0)")
    a(f"v_cmp_ne_u32 vcc, 1, {vr(vT)}")
    a("s_cbranch_vccnz L_qspin")
    stamp(2)
    run_chunks(5)
    for n in range(N0, 128):
        issue(n)
        if n in extra: extra[n]()
        run_chunks(budget - (24 if n in extra else 0))
    run_chunks(0, force=True)
    a("s_mov_b32 exec_hi, 0")
    stamp(5)
    a(f"s_cmp_eq_u32 {sr(sLOC)}, {LOCV}")
    a(f"s_cselect_b32 {sr(sT1)}, 3, 7")
    a("s_nop 4")
    a(f"ds_write_b128 v10, {vr(vACC,4)} offset:{L_O}")
    a("s_mov_b32 exec_lo, 1")
    a(f"ds_add_rtn_u32 v25, {vr(vZ)}, {vr(vONE)} offset:{C_COMB}")
    a("s_mov_b32 exec_lo, -1")
    for w in range(4): a(f"ds_read_b128 {vr(48+4*w,4)}, v8 offset:{L_O + w*512}")
    a("s_waitcnt lgkmcnt(3)")
    a(f"v_readfirstlane_b32 {sr(sT0)}, v25")
    def sel(w): return "op_sel_hi:[1,0,1]" if w % 2 == 0 else "op_sel:[0,1,0]"
    for k in (0, 2): a(f"v_pk_mul_f32 {vr(48+k,2)}, {vr(48+k,2)}, {vr(vF,2)} op_sel_hi:[1,0]")
    for w in range(1, 4):
        a(f"s_waitcnt lgkmcnt({3-w})")
        for k in (0, 2): a(f"v_pk_fma_f32 {vr(48+k,2)}, {vr(48+4*w+k,2)}, {vr(vF+(w&2),2)}, {vr(48+k,2)} {sel(w)}")
    a(f"s_cmp_eq_u32 {sr(sT0)}, {sr(sT1)}")
    a("v_cvt_pk_bf16_f32 v48, v48, v49")
    a("v_cvt_pk_bf16_f32 v49, v50, v51")
    a("s_cbranch_scc0 L_pub_far")
    a(f"buffer_store_dwordx2 v[48:49], v11, {sr(RWS,4)}, {sr(sSLOT)} offen")
    stamp(6)
    g.lab("L_sdone")
    a(f"s_cmp_eq_u32 {sr(sROLE)}, 2")
    a("s_cbranch_scc0 L_fin")
    a("s_barrier")
    a("s_branch L_fin")
    g.lab("L_pub_far")
    a(f"s_cmp_eq_u32 {sr(sT0)}, 3")
    a("s_cbranch_scc0 L_sdone")
    a(f"buffer_store_dwordx2 v[48:49], v11, {sr(RWS,4)}, {sr(sSLOT)} offen sc1")
    stamp(6)
    a("s_branch L_sdone")
    g.lab("L_cwait")
    a(f"s_sub_u32 {sr(sSPIN)}, {sr(sSPIN)}, 4")
    a("s_cbranch_scc1 L_sspin")
    a("s_sleep 16")
    a("s_mov_b64 exec, 0xffff")
    a(f"global_load_dword v44, v46, {sr(sDBG,2)} sc1")
    a("s_mov_b64 exec, -1")
    a("s_waitcnt vmcnt(0)")
    flags_eval(44, 45)
    a("s_cbranch_scc1 L_cwait")
    a("s_branch L_sspin")

    g.lab("L_q2")
    a(f"s_cmp_eq_u32 {sr(sU3)}, 0")
    a("s_cbranch_scc0 L_tile")
    common2()
    make_masks(True)
    a(f"v_and_b32 v12, 31, {vr(vLANE)}")
    a("v_lshlrev_b32 v12, 4, v12")
    a(f"v_lshrrev_b32 v13, 5, {vr(vLANE)}")
    if qmode == 0:
        a("v_lshl_add_u32 v60, v13, 14, v12")
        a(f"s_lshl_b32 {sr(sU1)}, {sr(sH)}, 15")
        a(f"s_lshl_b32 {sr(sT0)}, {sr(sSUB)}, 9")
        a(f"s_add_u32 {sr(sU1)}, {sr(sU1)}, {sr(sT0)}")
        a(f"s_add_u32 {sr(sU1)}, {sr(sU1)}, {WS_IN}")
    else:
        a("v_lshl_add_u32 v60, v13, 10, v12")
        a(f"s_lshl_b32 {sr(sU1)}, {sr(sSLOT)}, 10")
        a(f"s_add_u32 {sr(sU1)}, {sr(sU1)}, {WS_QD}")
        a(f"s_lshl_b32 {sr(sT0)}, {sr(sH)}, 10")
        a(f"s_lshl2_add_u32 {sr(sT0)}, {sr(sSUB)}, {sr(sT0)}")
        a(f"s_add_u32 {sr(sT0)}, {sr(sT0)}, {WS_QF}")
        a(f"v_lshl_add_u32 v61, {vr(vLANE)}, 7, {sr(sT0)}")
        a(f"v_and_b32 v132, 7, {vr(vLANE)}")
        a("v_lshlrev_b32 v132, 2, v132")
        a(f"v_mov_b32 v133, {sr(sXCC)}")
    a(f"v_and_b32 v13, 1, {vr(vG)}")
    a("v_lshlrev_b32 v13, 3, v13")
    a(f"v_lshl_add_u32 v62, {vr(vI)}, 4, v13")
    for k in range(4): a(f"v_mov_b32 {vr(56+k)}, 0")
    a("s_waitcnt vmcnt(18)")
    for k in range(8):
        src = 20 + k if k < 4 else 124 + k
        a(f"v_and_b32 {vr(33+2*k)}, 0xffff0000, {vr(src)}")
        a(f"v_lshlrev_b32 {vr(32+2*k)}, 16, {vr(src)}")
    for k in range(4): a(f"v_pk_add_f32 {vr(48+2*k,2)}, {vr(32+4*k,2)}, {vr(34+4*k,2)}")
    a("v_pk_add_f32 v[48:49], v[48:49], v[50:51]")
    a("v_pk_add_f32 v[52:53], v[52:53], v[54:55]")
    a("v_pk_add_f32 v[48:49], v[48:49], v[52:53]")
    a("v_add_f32 v28, v48, v49")
    allred("v_add_f32", 28, 29, s32=False)
    a("v_mul_f32 v28, 0x3b000000, v28")
    for k in range(8): a(f"v_pk_add_f32 {vr(32+2*k,2)}, {vr(32+2*k,2)}, v[28:29] op_sel_hi:[1,0] neg_lo:[0,1] neg_hi:[0,1]")
    a("v_pk_mul_f32 v[30:31], v[32:33], v[32:33]")
    for k in range(1, 8): a(f"v_pk_fma_f32 v[30:31], {vr(32+2*k,2)}, {vr(32+2*k,2)}, v[30:31]")
    a("v_add_f32 v30, v30, v31")
    allred("v_add_f32", 30, 29, s32=False)
    a("v_mul_f32 v30, 0x3b000000, v30")
    ln_scale(28, 30)
    a("v_mov_b32 v29, v28")
    a("v_mov_b32 v31, v30")
    a("s_nop 1")
    a("v_permlane32_swap_b32 v28, v29")
    a("v_permlane32_swap_b32 v30, v31")
    g.lab("L_tile")
    a("s_waitcnt vmcnt(16)")
    a("v_lshlrev_b32 v14, 16, v14")
    a("v_lshlrev_b32 v15, 16, v15")
    a("v_sub_f32 v14, v14, v28")
    a("v_sub_f32 v15, v15, v29")
    rnd(14, 14); rnd(15, 15)
    a("v_mul_f32 v14, v14, v30")
    a("v_mul_f32 v15, v15, v31")
    a("v_cvt_pk_bf16_f32 v14, v14, v14")
    a("v_cvt_pk_bf16_f32 v15, v15, v15")
    a("s_nop 0")
    for t in range(16):
        a(f"v_mov_b32_dpp {vr(40+t)}, v14 row_newbcast:{t} row_mask:0xf bank_mask:0x3")
        a(f"v_mov_b32_dpp {vr(40+t)}, v15 row_newbcast:{t} row_mask:0xf bank_mask:0xc")
    for t in range(16):
        A = 32 + 4 * (t & 1)
        for k in range(4): a(f"v_and_b32 {vr(A+k)}, {vr(40+t)}, {vr(vMASK+k)}")
        a(f"s_waitcnt vmcnt({15-t})")
        a("s_nop 0")
        a(f"v_mfma_f32_16x16x32_bf16 v[56:59], {vr(A,4)}, {vr(hW+4*t,4)}, v[56:59]")
    a(f"s_cmp_eq_u32 {sr(sU3)}, 0")
    a(f"ds_write_b32 {vr(vZ)}, {vr(vONE)} offset:{C_QP}")
    a("s_nop 4")
    a("s_cbranch_scc0 L_qmore")
    stamp(3)
    if 'noxch' in dbg: a("s_branch L_qput")
    if qmode == 0:
        if not forcefb:
            for jj in range(4):
                a(f"buffer_store_dwordx4 v[56:59], v60, {sr(RWS,4)}, {sr(sU1)} offen")
                if jj < 3: a(f"s_add_u32 {sr(sU1)}, {sr(sU1)}, 4096")
        poll("L_pollQ", [f"buffer_load_dwordx4 {vr(32+4*u,4)}, v8, {sr(RWS,4)}, {sr(sU0)} offen offset:{u*1024} sc1" for u in range(4)],
             range(32, 48), 48, spin=QTRY, fail="L_qfail")
    else:
        a(f"buffer_store_dwordx4 v[56:59], v8, {sr(RWS,4)}, {sr(sU1)} offen")
        a(f"s_lshl_b32 {sr(sT0)}, {sr(sH)}, 13")
        a(f"s_lshl_b32 {sr(sT1)}, {sr(sB)}, 9")
        a(f"s_add_u32 {sr(sT0)}, {sr(sT0)}, {sr(sT1)}")
        a(f"s_add_u32 {sr(sT0)}, {sr(sT0)}, {WS_QD}")
        a(f"s_add_u32 {sr(sT1)}, {sr(sT0)}, 4096")
        a("s_mov_b64 exec, 0xff")
        a("s_waitcnt vmcnt(0)")
        if not forcefb: a(f"buffer_store_dword v133, v61, {sr(RWS,4)}, 0 offen")
        a("s_mov_b64 exec, -1")
        if qsleep: a(f"s_sleep {qsleep}")
        poll("L_pollQ", [f"buffer_load_dword v32, v132, {sr(RWS,4)}, {sr(sU0)} offen sc1"], [32], 33, spin=QTRY, fail="L_qfail")
        a("v_cmp_ne_u32 vcc, v32, v133")
        a("s_cbranch_vccnz L_qfail")
        for u in range(4):
            a(f"buffer_load_dwordx4 {vr(32+4*u,4)}, v60, {sr(RWS,4)}, {sr(sT0 if u < 2 else sT1)} offen offset:{(u&1)*2048} sc1")
        a("s_waitcnt vmcnt(0)")
    a("v_pk_add_f32 v[32:33], v[32:33], v[36:37]"); a("v_pk_add_f32 v[34:35], v[34:35], v[38:39]")
    a("v_pk_add_f32 v[40:41], v[40:41], v[44:45]"); a("v_pk_add_f32 v[42:43], v[42:43], v[46:47]")
    a("v_pk_add_f32 v[32:33], v[32:33], v[40:41]"); a("v_pk_add_f32 v[34:35], v[34:35], v[42:43]")
    for k in range(4): a(f"v_mov_b32 {vr(36+k)}, {vr(32+k)}")
    for k in range(4): a(f"v_permlane32_swap_b32 {vr(32+k)}, {vr(36+k)}")
    a("v_pk_add_f32 v[56:57], v[32:33], v[36:37]"); a("v_pk_add_f32 v[58:59], v[34:35], v[38:39]")
    g.lab("L_qput")
    a("v_cvt_pk_bf16_f32 v32, v56, v57")
    a("v_cvt_pk_bf16_f32 v33, v58, v59")
    a(f"ds_write_b64 v62, v[32:33] offset:{L_Q}")
    a(f"ds_write_b32 {vr(vZ)}, {vr(vONE)} offset:{C_Q}")
    a("s_mov_b64 exec, -1")
    stamp(2)
    a(f"s_cmp_eq_u32 {sr(sROLE)}, 0")
    a("s_cbranch_scc1 L_fin")
    a("s_branch L_role")
    g.lab("L_qfail")
    a(f"s_mov_b32 {sr(sU3)}, 8")
    g.lab("L_qmore")
    a(f"s_and_b32 {sr(sSO)}, {sr(sSO)}, 0x3fffff")
    a(f"s_sub_u32 {sr(sU3)}, {sr(sU3)}, 1")
    a(f"s_cmp_eq_u32 {sr(sU3)}, 0")
    a("s_cbranch_scc0 L_qload")
    a(f"s_lshl_b32 {sr(sT0)}, {sr(sB)}, 5")
    a(f"s_bfm_b64 exec, 32, {sr(sT0)}")
    a("s_branch L_qput")

    g.lab("L_other")
    common2()
    a(f"s_cmp_eq_u32 {sr(sROLE)}, 0")
    a("s_cbranch_scc1 L_fin")
    a(f"s_cmp_eq_u32 {sr(sW4)}, 3")
    a("s_cbranch_scc0 L_nocp")
    a(f"s_cmp_lt_u32 {sr(sY)}, 3")
    a("s_cbranch_scc0 L_nocp")
    a(f"s_getpc_b64 {sr(sT2,2)}")
    g.lab("L_pc")
    a(f"s_sub_u32 {sr(sT2)}, {sr(sT2)}, L_pc-{NAME}_kernel")
    a(f"s_subb_u32 {sr(sT3)}, {sr(sT3)}, 0")
    a(f"s_lshl_b32 {sr(sT0)}, {sr(sY)}, 13")
    a(f"v_lshl_add_u32 v28, {vr(vLANE)}, 7, {sr(sT0)}")
    a(f"v_min_u32 v28, L_end-{NAME}_kernel, v28")
    a(f"global_load_dword v248, v28, {sr(sT2,2)}")
    g.lab("L_nocp")
    srd(R0, sX, None, 2048)
    make_masks(True)
    a(f"s_cmp_eq_u32 {sr(sW4)}, 2")
    a("s_cbranch_scc0 L_role")
    a(f"s_cmp_eq_u32 {sr(sROLE)}, 1")
    a("s_cbranch_scc0 L_sign")
    for k in range(4): a(f"v_mov_b32 {vr(16+k)}, -1")
    a(f"s_lshr_b32 {sr(sT0)}, {sr(sY)}, 1")
    a(f"s_lshl3_add_u32 {sr(sT0)}, {sr(sT0)}, {sr(sCLS)}")
    a(f"s_and_b32 {sr(sT1)}, {sr(sY)}, 1")
    a(f"s_lshl1_add_u32 {sr(sT0)}, {sr(sT0)}, {sr(sT1)}")
    a(f"s_lshl_b32 {sr(sT0)}, {sr(sT0)}, 11")
    a(f"buffer_store_dwordx4 v[16:19], v8, {sr(RWS,4)}, {sr(sT0)} offen sc1")
    a(f"buffer_store_dwordx4 v[16:19], v8, {sr(RWS,4)}, {sr(sT0)} offen offset:1024 sc1")
    a(f"s_lshl4_add_u32 {sr(sT0)}, {sr(sCLS)}, {sr(sY)}")
    a(f"s_lshl_b32 {sr(sT0)}, {sr(sT0)}, 7")
    a(f"s_add_u32 {sr(sT0)}, {sr(sT0)}, {WS_A}")
    a("s_mov_b64 exec, 0xff")
    a(f"buffer_store_dwordx4 v[16:19], v8, {sr(RWS,4)}, {sr(sT0)} offen sc1")
    a(f"buffer_store_dwordx4 v[16:19], v8, {sr(RWS,4)}, {sr(sT0)} offen offset:1024 sc1")
    if chk:
        a(f"s_lshl_b32 {sr(sT0)}, s2, 8")
        a(f"s_add_u32 {sr(sT0)}, {sr(sT0)}, {WS_R}")
        a("s_mov_b64 exec, 0xffff")
        a(f"buffer_store_dwordx4 v[16:19], v8, {sr(RWS,4)}, {sr(sT0)} offen sc1")
    a(f"s_mul_i32 {sr(sT0)}, s2, {NF*64}")
    a(f"s_add_u32 {sr(sT0)}, {sr(sT0)}, {WS_Y}")
    a(f"s_mov_b64 exec, {(1 << (NF*4 - 64)) - 1:#x}")
    a(f"buffer_store_dwordx4 v[16:19], v8, {sr(RWS,4)}, {sr(sT0)} offen offset:1024 sc1")
    a("s_mov_b64 exec, -1")
    a(f"buffer_store_dwordx4 v[16:19], v8, {sr(RWS,4)}, {sr(sT0)} offen sc1")
    g.lab("L_sign")
    a(f"s_lshl_b32 {sr(sT0)}, {sr(sCLS)}, 5")
    a(f"s_add_u32 {sr(sT0)}, {sr(sT0)}, {sr(sY)}")
    a(f"v_mov_b32 v12, {sr(sT0)}")
    a(f"v_mov_b32 v13, {sr(sXCC)}")
    a("s_waitcnt vmcnt(0)")
    a("s_mov_b64 exec, 1")
    a(f"global_store_byte v12, v13, {sr(sDBG,2)} sc1")
    a("s_mov_b64 exec, -1")
    g.lab("L_role")
    if 'norole' in dbg: a("s_branch L_fin")
    a("s_setprio 1")
    lds_spin("L_ldw", C_QP, 12, 1, sleep=4)
    a(f"s_cmp_eq_u32 {sr(sROLE)}, 2")
    a("s_cbranch_scc1 L_roleF")
    def staged():
        a("s_waitcnt vmcnt(0)")
        a(f"ds_write_b32 {vr(vZ)}, {vr(vONE)} offset:{C_STG}")
        stamp(3)

    vB = 64
    a(f"s_lshl_b32 {sr(sU1)}, {sr(sY)}, 7")
    a(f"s_cmp_eq_u32 {sr(sW4)}, 1")
    a("s_cbranch_scc0 L_Oset")
    a(f"s_lshl_b32 {sr(sT0)}, {sr(sCLS)}, 17")
    a(f"s_add_u32 {sr(sT0)}, {sr(sT0)}, {sr(sU1)}")
    srd(R2, sWO, sT0, 3*(1 << 20) + 127*1024 + 128)
    a(f"v_lshrrev_b32 v12, 3, {vr(vLANE)}")
    a(f"v_and_b32 v13, 7, {vr(vLANE)}")
    a("v_lshlrev_b32 v12, 10, v12")
    a("v_lshl_add_u32 v12, v13, 4, v12")
    a(f"s_mov_b32 {sr(sSO)}, 0")
    a(f"s_mov_b32 {sr(sT3)}, {L_W}")
    g.lab("L_ldO")
    a(f"s_mov_b32 m0, {sr(sT3)}")
    a(f"s_waitcnt vmcnt({WO-1})")
    a(f"buffer_load_dwordx4 v12, {sr(R2,4)}, {sr(sSO)} offen nt lds")
    a(f"s_add_u32 {sr(sSO)}, {sr(sSO)}, 0x2000")
    a(f"s_bitcmp1_b32 {sr(sSO)}, 17")
    a(f"s_cselect_b32 {sr(sT0)}, {(1 << 20) - (1 << 17)}, 0")
    a(f"s_add_u32 {sr(sSO)}, {sr(sSO)}, {sr(sT0)}")
    a(f"s_add_u32 {sr(sT3)}, {sr(sT3)}, 1024")
    a(f"s_cmp_lt_u32 {sr(sT3)}, {L_W + 65536}")
    a("s_cbranch_scc1 L_ldO")
    staged()
    g.lab("L_Oset")
    a(f"s_lshl3_add_u32 {sr(sU0)}, {sr(sW4)}, {sr(sCLS)}")
    a(f"s_lshl_b32 {sr(sU0)}, {sr(sU0)}, 12")
    a(f"v_bfe_u32 v13, {vr(vLANE)}, 3, 1")
    a(f"v_bfe_u32 v12, {vr(vLANE)}, 2, 1")
    a("v_lshl_add_u32 v13, v13, 4, v12")
    a(f"v_lshrrev_b32 v23, 1, {vr(vG)}")
    a("v_lshl_add_u32 v13, v23, 5, v13")
    a(f"v_and_b32 v24, 1, {vr(vG)}")
    a("v_lshl_add_u32 v13, v24, 3, v13")
    a(f"v_and_b32 v12, 3, {vr(vLANE)}")
    a("v_lshlrev_b32 v12, 3, v12")
    a("v_lshl_add_u32 v13, v13, 7, v12")
    a(f"s_lshl_b32 {sr(sT3)}, {sr(sW4)}, 14")
    a(f"v_add_u32 v13, {sr(sT3)}, v13")
    lds_spin("L_stgO", C_STG, 12, 1, sleep=4)
    for nu in range(4):
        for u in range(2):
            for p in range(4):
                row = 64*(p >> 1) + 4*u + 2*(p & 1)
                a(f"ds_read_b64_tr_b16 {vr(vB+16*nu+8*u+2*p,2)}, v13 offset:{L_W + row*128 + nu*32}")
        a("s_waitcnt lgkmcnt(0)")
    a(f"v_lshrrev_b32 v10, 1, {vr(vI)}")
    a("v_lshlrev_b32 v10, 9, v10")
    a(f"v_and_b32 v11, 1, {vr(vI)}")
    a("v_lshl_add_u32 v10, v11, 4, v10")
    a(f"v_lshl_add_u32 v10, {vr(vG)}, 5, v10")
    a("v_mul_u32_u24 v22, 0xaaaa, v11")
    a("v_add_u32 v22, 0x4444, v22")
    a(f"s_lshl_b32 {sr(sT2)}, {sr(sW4)}, 10")
    a(f"v_add_u32 v11, {sr(sT2)}, v8")
    a("v_lshlrev_b32 v21, 10, v23")
    a(f"v_and_b32 v12, 31, {vr(vLANE)}")
    a("v_lshl_add_u32 v21, v12, 2, v21")
    a("v_lshlrev_b32 v23, 11, v23")
    a(f"s_lshl_b32 {sr(sT2)}, {sr(sCLS)}, 11")
    a(f"s_add_u32 {sr(sT2)}, {sr(sT2)}, {sr(sU1)}")
    a(f"s_add_u32 {sr(sC0)}, {sr(sT2)}, {WS_A}")
    lds_spin("L_waitst", C_STAT, 12, 4, sleep=8)
    wait_flags("L_cntO", 12)
    a(f"s_mov_b32 {sr(sU2)}, 3")
    a(f"s_cmp_eq_u32 {sr(sCLS)}, {XF}")
    a("s_cbranch_scc0 L_noR")
    vRX, vRB, vRO, vRA, vRY = 128, 129, 130, 131, 132
    a(f"v_and_b32 v14, 7, {vr(vLANE)}")
    a("v_lshlrev_b32 v13, 2, v14")
    a(f"global_load_dword v15, v13, {sr(sDBG,2)} offset:{XF*32} sc1")
    a(f"s_mov_b32 {sr(sT3)}, {sr(sT1)}")
    a(f"s_lshl2_add_u32 {sr(sT0)}, {sr(sY)}, {sr(sW4)}")
    a(f"s_lshl_b32 {sr(sT1)}, {sr(sT0)}, 7")
    a(f"s_add_u32 {sr(sT1)}, {sr(sT1)}, {WS_Y}")
    srd(R3, sWS, sT1, (NF-1)*4096 + 128)
    a(f"s_lshr_b32 {sr(sT0)}, {sr(sY)}, 1")
    a(f"s_lshl_b32 {sr(sT0)}, {sr(sT0)}, 8")
    a(f"s_and_b32 {sr(sC1)}, {sr(sY)}, 1")
    a(f"s_lshl_b32 {sr(sT1)}, {sr(sC1)}, 6")
    a(f"s_add_u32 {sr(sT1)}, {sr(sT1)}, {sr(sT0)}")
    a(f"s_lshl4_add_u32 {sr(sT1)}, {sr(sW4)}, {sr(sT1)}")
    a(f"v_bfe_u32 v12, {vr(vLANE)}, 4, 1")
    a("v_lshlrev_b32 v12, 7, v12")
    a("v_lshl_add_u32 v12, v14, 1, v12")
    a(f"v_add_u32 v12, {sr(sT1)}, v12")
    a(f"v_lshrrev_b32 v13, 5, {vr(vLANE)}")
    a(f"v_lshl_add_u32 {vr(vRO)}, v13, 10, v12")
    srd(R2, sB2, None, 1024)
    srd(R1, sOUT, None, 2048)
    a(f"buffer_load_ushort {vr(vRX)}, {vr(vRO)}, {sr(R0,4)}, 0 offen")
    a(f"buffer_load_ushort {vr(vRB)}, v12, {sr(R2,4)}, 0 offen")
    a(f"buffer_load_ushort v16, {vr(vRO)}, {sr(R1,4)}, 0 offen")
    a(f"v_lshrrev_b32 v12, 3, {vr(vLANE)}")
    a("v_lshlrev_b32 v13, 11, v12")
    a("v_lshl_add_u32 v13, v14, 2, v13")
    a(f"s_lshl_b32 {sr(sT2)}, {sr(sW4)}, 5")
    a(f"s_add_u32 {sr(sT0)}, {sr(sT0)}, {sr(sT2)}")
    a(f"s_add_u32 {sr(sT0)}, {sr(sT0)}, {WS_A}")
    a(f"v_add_u32 {vr(vRA)}, {sr(sT0)}, v13")
    a(f"s_lshl_b32 {sr(sC1)}, {sr(sC1)}, 4")
    a(f"s_sub_u32 {sr(sC1)}, 16, {sr(sC1)}")
    a("v_lshlrev_b32 v12, 12, v12")
    a(f"v_lshl_add_u32 {vr(vRY)}, v14, 4, v12")
    for u in range(1, 3): a(f"v_add_u32 {vr(vRY+u)}, {u*0x8000}, {vr(vRY)}")
    a("v_cmp_eq_u32 vcc, 7, v14")
    a("v_mov_b32 v13, 16")
    a("s_waitcnt vmcnt(0)")
    a("v_cndmask_b32 v13, 0, v13, vcc")
    a(f"v_xor_b32 v15, {sr(sT3)}, v15")
    a("v_lshlrev_b32 v15, v13, v15")
    a("v_cmp_ne_u32 vcc, 0, v15")
    a(f"v_lshlrev_b32 {vr(vRX)}, 16, {vr(vRX)}")
    a(f"v_lshlrev_b32 {vr(vRB)}, 16, {vr(vRB)}")
    a("s_cbranch_vccnz L_noR")
    if local: a(f"s_mov_b32 {sr(sU2)}, 7")
    g.lab("L_noR")
    poll("L_pollOs", [f"buffer_load_dwordx2 {vr(12+2*r,2)}, v23, {sr(RWS,4)}, {sr(sU0)} offen offset:{r*512+256} sc1" for r in range(4)],
         range(12, 20), 20, sleep=24)
    a("v_max3_f32 v20, v12, v14, v16")
    a("v_max_f32 v20, v20, v18")
    for r in range(4): a(f"v_sub_f32 {vr(28+r)}, {vr(12+2*r)}, v20")
    for r in range(4): a(f"v_exp_f32 {vr(28+r)}, {vr(28+r)}")
    a("v_cmp_eq_u32 vcc, 1, v24")
    for r in range(4): a(f"v_mul_f32 {vr(28+r)}, {vr(28+r)}, {vr(13+2*r)}")
    a("v_add_f32 v20, v28, v29")
    a("v_add_f32 v12, v30, v31")
    a("v_add_f32 v20, v20, v12")
    a("v_rcp_f32 v20, v20")
    for k in range(8): a(f"v_mov_b32 {vr(40+k)}, 0")
    a("v_cndmask_b32 v28, v28, v30, vcc")
    a("v_cndmask_b32 v29, v29, v31, vcc")
    for r in range(2): a(f"v_mul_f32 {vr(28+r)}, {vr(28+r)}, v20")
    stamp(4)
    lds_spin("L_trig", C_TRIG, 12, 1, sleep=2)
    stamp(5)
    def osm(nu, u): return f"v_smfmac_f32_16x16x64_bf16 {vr(32+4*nu,4)}, {vr(12+4*u,4)}, {vr(vB+16*nu+8*u,8)}, v22"
    poll("L_pollO", [f"buffer_load_dwordx4 {vr(12+4*u,4)}, v10, {sr(RWS,4)}, {sr(sU0)} offen offset:{u*128} sc1" for u in range(2)],
         range(12, 20), 20, pre=["s_nop 1"] + [f"v_mov_b32 {vr(32+k)}, 0" for k in range(8)] + ["s_nop 0"],
         spec=[osm(0, 0), osm(0, 1), osm(1, 0)], per=2, post=[osm(1, 1)])
    stamp(6)
    def oep(nu):
        return [f"v_pk_mul_f32 {vr(32+4*nu,2)}, {vr(32+4*nu,2)}, v[28:29] op_sel_hi:[1,0]",
                f"v_pk_fma_f32 {vr(32+4*nu,2)}, {vr(34+4*nu,2)}, v[28:29], {vr(32+4*nu,2)} op_sel:[0,1,0]",
                f"v_add_f32 {vr(48+nu)}, {vr(32+4*nu)}, {vr(33+4*nu)}"]
    e0, e1, e2, e3 = oep(0), oep(1), oep(2), oep(3)
    a(osm(2, 0)); a(osm(2, 1)); a(e0[0]); a(osm(3, 0)); a(e0[1]); a(osm(3, 1)); a(e0[2])
    for l in e1: a(l)
    a("s_nop 0")
    for l in e2: a(l)
    for l in e3: a(l)
    a(f"ds_write_b128 v11, v[48:51] offset:{L_RED}")
    a("s_mov_b64 exec, 1")
    a(f"ds_add_rtn_u32 v20, {vr(vZ)}, {vr(vONE)} offset:{C_ORED}")
    a("s_mov_b64 exec, -1")
    for w in range(4): a(f"ds_read_b128 {vr(32+4*w,4)}, v8 offset:{L_RED + w*1024}")
    a("s_waitcnt lgkmcnt(2)")
    a(f"v_readfirstlane_b32 {sr(sT0)}, v20")
    a("v_pk_add_f32 v[32:33], v[32:33], v[36:37]")
    a("v_pk_add_f32 v[34:35], v[34:35], v[38:39]")
    a("s_waitcnt lgkmcnt(1)")
    a("v_pk_add_f32 v[32:33], v[32:33], v[40:41]")
    a("v_pk_add_f32 v[34:35], v[34:35], v[42:43]")
    a("s_waitcnt lgkmcnt(0)")
    a("v_pk_add_f32 v[32:33], v[32:33], v[44:45]")
    a("v_pk_add_f32 v[34:35], v[34:35], v[46:47]")
    a(f"s_cmp_eq_u32 {sr(sT0)}, {sr(sU2)}")
    a("v_permlane16_swap_b32 v32, v33")
    a("v_permlane16_swap_b32 v34, v35")
    a("v_add_f32 v32, v32, v33")
    a("v_add_f32 v34, v34, v35")
    a("v_cvt_pk_bf16_f32 v32, v32, v34")
    a("s_cbranch_scc0 L_Onear")
    a(f"buffer_store_dword v32, v21, {sr(RWS,4)}, {sr(sC0)} offen sc1")
    stamp(7)
    a("s_branch L_Odone")
    g.lab("L_Onear")
    a(f"s_cmp_eq_u32 {sr(sT0)}, 3")
    a("s_cbranch_scc0 L_Odone")
    a(f"buffer_store_dword v32, v21, {sr(RWS,4)}, {sr(sC0)} offen")
    stamp(7)
    g.lab("L_Odone")
    a(f"s_cmp_eq_u32 {sr(sCLS)}, {XF}")
    a("s_cbranch_scc0 L_fin")
    def red8(b):
        a(f"v_permlane32_swap_b32 {vr(b)}, {vr(b+1)}")
        a(f"v_permlane32_swap_b32 {vr(b+2)}, {vr(b+3)}")
        a(f"v_add_f32 {vr(b)}, {vr(b)}, {vr(b+1)}")
        a(f"v_add_f32 {vr(b+2)}, {vr(b+2)}, {vr(b+3)}")
        a("s_nop 1")
        a(f"v_permlane16_swap_b32 {vr(b)}, {vr(b+2)}")
        a(f"v_add_f32 {vr(b)}, {vr(b)}, {vr(b+2)}")
        a("s_nop 1")
        a(f"v_add_f32_dpp {vr(b)}, {vr(b)}, {vr(b)} row_ror:8 {DPPF}")
    lds_spin("L_rw", C_ORED, 12, 4, sleep=1)
    poll("L_pollRa", [f"buffer_load_dword {vr(12+r)}, {vr(vRA)}, {sr(RWS,4)}, 0 offen offset:{(r&1)*1024 + (r>>1)*128} sc1" for r in range(4)],
         range(12, 16), 16, sleep=sleepR)
    for k in range(4): a(f"v_lshlrev_b32 {vr(12+k)}, {sr(sC1)}, {vr(12+k)}")
    for k in range(4): a(f"v_and_b32 {vr(12+k)}, 0xffff0000, {vr(12+k)}")
    a("s_nop 1")
    red8(12)
    if mimic: rnd(12, 12)
    a(f"v_add_f32 v136, {vr(vRX)}, v12")
    rnd(136, 136)
    if not mimic: a(f"v_add_f32 v136, v136, {vr(vRB)}")
    poll("L_pollRy", [f"buffer_load_dwordx4 {vr(32+4*u,4)}, {vr(vRY+u)}, {sr(R3,4)}, 0 offen sc1" for u in range(3)], range(32, 44), 16,
         post=["v_pk_add_f32 v[12:13], v[32:33], v[36:37]", "v_pk_add_f32 v[14:15], v[34:35], v[38:39]",
               "v_pk_add_f32 v[12:13], v[12:13], v[40:41]", "v_pk_add_f32 v[14:15], v[14:15], v[42:43]"], pipe=rpipe)
    stamp(8)
    red8(12)
    if mimic:
        rnd(12, 12)
        a(f"v_add_f32 v12, v12, {vr(vRB)}")
        rnd(12, 12)
    a("v_add_f32 v12, v12, v136")
    a("v_cvt_pk_bf16_f32 v12, v12, v12")
    a(f"buffer_store_short v12, {vr(vRO)}, {sr(R1,4)}, 0 offen")
    stamp(9)
    a("s_branch L_fin" if prof else "s_endpgm")

    g.lab("L_roleF")
    vW1 = 64
    vW2 = 128
    vA1 = 192
    vA2 = 224
    vAC = 240
    sF = sU0
    a(f"s_sub_u32 {sr(sF)}, {sr(sY)}, 8")
    a(f"s_lshl_b32 {sr(sU1)}, {sr(sF)}, 7")
    a(f"s_cmp_eq_u32 {sr(sW4)}, 1")
    a("s_cbranch_scc0 L_Fset")
    srd(R2, sW1, sU1, 0)
    a(f"s_sub_u32 {sr(R2+2)}, {512*2752}, {sr(sU1)}")
    a(f"v_lshrrev_b32 v12, 3, {vr(vLANE)}")
    a(f"v_and_b32 v13, 7, {vr(vLANE)}")
    a("v_mul_u32_u24 v12, 2752, v12")
    a("v_lshl_add_u32 v12, v13, 4, v12")
    a(f"s_mov_b32 {sr(sT3)}, {L_W}")
    g.lab("L_ldF")
    a(f"s_mov_b32 m0, {sr(sT3)}")
    a(f"s_waitcnt vmcnt({WF-1})")
    a(f"buffer_load_dwordx4 v12, {sr(R2,4)}, 0 offen {w1pol} lds")
    a(f"v_add_u32 v12, {8*2752}, v12")
    a(f"s_add_u32 {sr(sT3)}, {sr(sT3)}, 1024")
    a(f"s_cmp_lt_u32 {sr(sT3)}, {L_W + 65536}")
    a("s_cbranch_scc1 L_ldF")
    staged()
    g.lab("L_Fset")
    a(f"v_lshrrev_b32 v12, 1, {vr(vG)}")
    a("v_lshlrev_b32 v12, 7, v12")
    a(f"v_lshl_add_u32 v12, {vr(vI)}, 3, v12")
    a(f"v_and_b32 v15, 1, {vr(vG)}")
    a("v_lshl_add_u32 v12, v15, 2, v12")
    a("v_and_b32 v13, 0xc0, v12")
    a("v_and_b32 v14, 63, v12")
    a("v_lshl_add_u32 v13, v13, 1, v14")
    a(f"s_lshl_b32 {sr(sU2)}, {sr(sW4)}, 9")
    a(f"buffer_load_dword v40, v13, {sr(R0,4)}, {sr(sU2)} offen")
    a(f"buffer_load_dword v41, v13, {sr(R0,4)}, {sr(sU2)} offen offset:64")
    a(f"v_lshl_add_u32 v46, v12, 1, {sr(sU2)}")
    srd(R1, sB1, None, 2752)
    a(f"s_lshl_b32 {sr(sT0)}, {sr(sW4)}, 5")
    a(f"v_lshl_add_u32 v13, {vr(vI)}, 1, {sr(sT0)}")
    a(f"v_add_u32 v14, {sr(sU1)}, v13")
    a(f"buffer_load_ushort v44, v14, {sr(R1,4)}, 0 offen")
    a("v_lshl_add_u32 v47, v15, 7, v13")
    a(f"v_lshl_add_u32 v52, {vr(vG)}, 3, {sr(sT0)}")
    a("v_lshlrev_b32 v53, 6, v15")
    a(f"v_and_b32 v14, 1, {vr(vI)}")
    a(f"v_bfe_u32 v15, {vr(vI)}, 1, 1")
    a("v_lshlrev_b32 v13, 7, v14")
    a("v_lshl_add_u32 v13, v15, 6, v13")
    a(f"v_lshl_add_u32 v48, {vr(vG)}, 4, v13")
    a("v_mul_u32_u24 v51, 0xaaaa, v15")
    a("v_add_u32 v51, 0x4444, v51")
    a("v_mul_u32_u24 v50, 0xaaaa, v14")
    a("v_add_u32 v50, 0x4444, v50")
    a(f"v_bfe_u32 v13, {vr(vI)}, 2, 1")
    a("v_lshlrev_b32 v13, 10, v13")
    a("v_lshl_add_u32 v13, v14, 6, v13")
    a(f"v_lshl_add_u32 v49, {vr(vG)}, 4, v13")
    a("v_mov_b32 v38, 0x3f803f80")
    a(f"v_lshlrev_b32 v54, 11, {vr(vG)}")
    a(f"v_lshl_add_u32 v54, {vr(vI)}, 4, v54")
    a("v_add_u32 v55, 0x2000, v54")
    a(f"s_add_u32 {sr(sU2)}, {sr(sU2)}, {WS_A}")
    a(f"v_cmp_gt_u32 vcc, 8, {vr(vI)}")
    for k in range(4): a(f"v_and_b32 {vr(60+k)}, v38, {vr(vMASK+k)}")
    for k in range(4):
        a(f"v_cndmask_b32 {vr(56+k)}, 0, {vr(60+k)}, vcc")
        a(f"v_cndmask_b32 {vr(60+k)}, {vr(60+k)}, 0, vcc")
    for k in range(16): a(f"v_mov_b32 {vr(vA2+k)}, 0")
    a(f"s_lshl2_add_u32 {sr(sT0)}, {sr(sF)}, {sr(sW4)}")
    a(f"s_lshl_b32 {sr(sT0)}, {sr(sT0)}, 10")
    a(f"s_add_u32 {sr(sC0)}, {sr(sT0)}, {WS_Y}")
    a(f"s_mov_b32 {sr(sM0)}, 0x000f000f"); a(f"s_mov_b32 {sr(sM0+1)}, 0x000f000f")
    a(f"v_and_b32 v11, 3, {vr(vLANE)}")
    a("v_lshlrev_b32 v11, 3, v11")
    a(f"v_bfe_u32 v14, {vr(vLANE)}, 3, 1")
    a(f"v_bfe_u32 v13, {vr(vLANE)}, 2, 1")
    a("v_lshl_add_u32 v39, v14, 5, v13")
    a(f"v_lshl_add_u32 v39, {vr(vG)}, 2, v39")
    a(f"v_mul_u32_u24 v39, {W2P}, v39")
    a(f"s_lshl_b32 {sr(sT0)}, {sr(sW4)}, 8")
    a(f"s_add_u32 {sr(sT0)}, {sr(sT0)}, {L_W2}")
    a(f"v_add3_u32 v39, v39, v11, {sr(sT0)}")
    a("v_lshlrev_b32 v10, 5, v13")
    a("v_lshl_add_u32 v10, v14, 4, v10")
    a(f"v_lshl_add_u32 v10, {vr(vG)}, 1, v10")
    a("v_lshl_add_u32 v10, v10, 7, v11")
    a(f"s_lshl_b32 {sr(sT0)}, {sr(sW4)}, 5")
    a(f"s_add_u32 {sr(sT0)}, {sr(sT0)}, {L_W}")
    a(f"v_add_u32 v10, {sr(sT0)}, v10")
    lds_spin("L_stgF", C_STG, 12, 1, sleep=4)
    for s in range(8):
        for p in range(4):
            a(f"ds_read_b64_tr_b16 {vr(vW1+8*s+2*p,2)}, v10 offset:{(64*s + 8*(p>>1) + (p&1))*128}")
        if s & 1: a("s_waitcnt lgkmcnt(0)")
    wait_flags("L_cntF", 12)
    for k in range(4): a(f"v_mov_b32 {vr(vAC+k)}, 0"); a(f"v_mov_b32 {vr(16+k)}, v38")
    a("v_and_b32 v42, 0xffff0000, v40")
    a("v_and_b32 v43, 0xffff0000, v41")
    for s_ in range(8): a(f"v_smfmac_f32_16x16x64_bf16 {vr(vAC,4)}, v[16:19], {vr(vW1+8*s_,8)}, v50")
    a("v_lshlrev_b32 v40, 16, v40")
    a("v_lshlrev_b32 v41, 16, v41")
    a("v_lshlrev_b32 v44, 16, v44")
    a(f"s_lshl_b32 {sr(sT0)}, {sr(sF)}, 16")
    srd(R1, sW2, sT0, 0)
    a(f"s_sub_u32 {sr(R1+2)}, {1376*1024}, {sr(sT0)}")
    a(f"v_add_f32 v45, {vr(vAC)}, {vr(vAC+1)}")
    for k in range(12): a(f"v_mov_b32 {vr(vAC+k)}, 0")
    a(f"s_lshl_b32 {sr(sT0)}, {sr(sW4)}, 14")
    a(f"v_add_u32 v13, {sr(sT0)}, v8")
    a(f"s_mul_i32 {sr(sT2)}, {sr(sW4)}, {16*W2P}")
    stamp(4)
    lds_spin("L_tr2", C_TRIG2, 12, 4, sleep=1)
    for k in range(16):
        a(f"s_add_u32 m0, {sr(sT2)}, {L_W2 + k*W2P}")
        a(f"s_waitcnt vmcnt({W2W-1})")
        a(f"buffer_load_dwordx4 v13, {sr(R1,4)}, 0 offen nt lds")
        a("v_add_u32 v13, 0x400, v13")
    a("s_waitcnt vmcnt(0)")
    a("s_barrier")
    for nu in range(8):
        for p in range(4):
            a(f"ds_read_b64_tr_b16 {vr(vW2+8*nu+2*p,2)}, v39 offset:{(16*(p>>1) + 2*(p&1))*W2P + nu*32}")
    stamp(5)
    poll("L_pollF", [f"buffer_load_dwordx4 {vr(vA1+8*ch+4*u,4)}, {vr(54+u)}, {sr(RWS,4)}, {sr(sU2)} offen offset:{ch*256} sc1" for ch in range(2) for u in range(2)],
         range(vA1, vA1+16), 32,
         spec=[f"v_mfma_f32_16x16x32_bf16 v[28:31], v[56:59], {vr(vA1,4)}, {'0' if mimic else 'v[40:43]'}",
               f"v_mfma_f32_16x16x32_bf16 v[28:31], v[56:59], {vr(vA1+4,4)}, v[28:31]",
               f"v_mfma_f32_16x16x32_bf16 v[28:31], v[60:63], {vr(vA1+8,4)}, v[28:31]",
               f"v_mfma_f32_16x16x32_bf16 v[28:31], v[60:63], {vr(vA1+12,4)}, v[28:31]"], per=2,
         post=["s_nop 3"])
    stamp(6)
    if mimic:
        a("v_cvt_pk_bf16_f32 v28, v28, v29")
        a("v_cvt_pk_bf16_f32 v30, v30, v31")
        a("v_and_b32 v29, 0xffff0000, v28")
        a("v_and_b32 v31, 0xffff0000, v30")
        a("v_lshlrev_b32 v28, 16, v28")
        a("v_lshlrev_b32 v30, 16, v30")
        a("v_pk_add_f32 v[28:29], v[28:29], v[40:41]")
        a("v_pk_add_f32 v[30:31], v[30:31], v[42:43]")
    a("v_cvt_pk_bf16_f32 v28, v28, v29")
    a("v_cvt_pk_bf16_f32 v29, v30, v31")
    a(f"ds_write_b64 v46, v[28:29] offset:{L_HN}")
    a("v_dot2_f32_bf16 v32, v28, v38, 0")
    a("v_dot2_f32_bf16 v33, v28, v28, 0")
    a("v_dot2_f32_bf16 v32, v29, v38, v32")
    a("v_dot2_f32_bf16 v33, v29, v29, v33")
    a("s_nop 0")
    for st in ("quad_perm:[1,0,3,2]", "quad_perm:[2,3,0,1]", "row_ror:4", "row_ror:8"):
        a("s_nop 0")
        for r in (32, 33): a(f"v_add_f32_dpp {vr(r)}, {vr(r)}, {vr(r)} {st} {DPPF}")
    a(f"ds_write_b64 v52, v[32:33] offset:{L_FS}")
    a("s_waitcnt lgkmcnt(0)")
    a("s_barrier")
    order = [('a', 0), ('s', 0), ('s', 1), ('a', 1), ('s', 2), ('s', 3)] + [('a', k) for k in range(2, 8)]
    for kind, k in order:
        if kind == 'a': a(f"ds_read_b128 {vr(vA1+4*k,4)}, v49 offset:{L_HN + k*128}")
        else: a(f"ds_read_b128 {vr(12+4*k if k < 3 else 28,4)}, v53 offset:{L_FS + k*16}")
    keep = g.L; g.L = []
    a("v_pk_add_f32 v[12:13], v[12:13], v[14:15]"); a("v_pk_add_f32 v[16:17], v[16:17], v[18:19]")
    a("v_pk_add_f32 v[12:13], v[12:13], v[16:17]")
    a("v_pk_add_f32 v[20:21], v[20:21], v[22:23]"); a("v_pk_add_f32 v[28:29], v[28:29], v[30:31]")
    a("v_pk_add_f32 v[12:13], v[12:13], v[20:21]"); a("v_pk_add_f32 v[12:13], v[12:13], v[28:29]")
    a("v_mul_f32 v32, 0x3b000000, v12"); a("v_mul_f32 v33, 0x3b000000, v13")
    a("v_fma_f32 v33, -v32, v32, v33"); a("v_max_f32 v36, 0, v33")
    ln_scale(32, 36)
    work = [l.strip() for l in g.L]; g.L = keep
    plan = {1: 3, 2: 3, 3: 3, 4: 2, 5: 2, 6: 2}
    for k in range(8):
        a(f"s_waitcnt lgkmcnt({len(order) - 1 - order.index(('a', k))})")
        a(f"v_smfmac_f32_16x16x64_bf16 {vr(vAC,4)}, {vr(vA1+4*k,4)}, {vr(vW1+8*k,8)}, v50")
        for _ in range(plan.get(k, 0)): a(work.pop(0))
    stamp(7)
    nrest = len(work)
    for l in work: a(l)
    if nrest < 8: a(f"s_nop {7 - nrest}")
    a(f"v_add_f32 v28, {vr(vAC)}, {vr(vAC+1)}")
    a("v_fma_f32 v28, -v32, v45, v28")
    if mimic:
        a("v_mul_f32 v28, v28, v36")
        rnd(28, 28)
        a("v_add_f32 v28, v28, v44")
        rnd(28, 28)
    else:
        a("v_fma_f32 v28, v28, v36, v44")
    a("v_max_f32 v28, 0, v28")
    a("v_mul_f32 v28, v28, v28")
    a("v_cvt_pk_bf16_f32 v28, v28, v28")
    a(f"ds_write_b16 v47, v28 offset:{L_RR}")
    a(f"s_mov_b64 exec, {sr(sM0,2)}")
    a("s_waitcnt lgkmcnt(0)")
    a("s_barrier")
    for q in range(4):
        a(f"ds_read_b128 {vr(vA2+4*q,4)}, v48 offset:{L_RR}")
        if q < 3: a(f"s_lshl_b64 exec, {sr(sM0,2)}, {4*(q+1)}")
    a("s_mov_b64 exec, -1")
    a(f"s_cmp_eq_u32 {sr(sLOC)}, {LOCV}")
    for q in range(4):
        a(f"s_waitcnt lgkmcnt({3-q})")
        for aa in range(2):
            a(f"v_smfmac_f32_16x16x64_bf16 {vr(vAC+4+4*aa,4)}, {vr(vA2+4*q,4)}, {vr(vW2+8*(4*aa+q),8)}, v51")
    a("s_nop 5")
    a("s_cbranch_scc0 L_F2far")
    for pol in ("", "sc1"):
        if pol: g.lab("L_F2far")
        a(f"v_pk_add_f32 v[28:29], {vr(vAC+4,2)}, {vr(vAC+6,2)}")
        a(f"v_pk_add_f32 v[30:31], {vr(vAC+8,2)}, {vr(vAC+10,2)}")
        a(f"buffer_store_dwordx4 v[28:31], v8, {sr(RWS,4)}, {sr(sC0)} offen {pol}")
        stamp(8)
        if not pol: a("s_branch L_fin")

    g.lab("L_fin")
    if diag or agg or store_prof:
        import diagcode
        diagcode.emit(locals())
    g.lab("L_end")
    a("s_endpgm")

    nv = 252
    out = [HEADER.rstrip("\n"),
           f"; @launch grid=(256,1,1) block=(512,1,1) lds={L_END}",
           '.amdgcn_target "amdgcn-amd-amdhsa--gfx950"', ".text", f".globl {NAME}_kernel", ".p2align 8",
           f".type {NAME}_kernel,@function", f"{NAME}_kernel:"]
    out += g.L
    out += ['.section .rodata,"a"', ".p2align 6", f".amdhsa_kernel {NAME}_kernel",
            f"  .amdhsa_next_free_vgpr {nv}", "  .amdhsa_next_free_sgpr 100", f"  .amdhsa_accum_offset {nv}",
            "  .amdhsa_group_segment_fixed_size 0", "  .amdhsa_kernarg_size 104",
            "  .amdhsa_user_sgpr_count 2", "  .amdhsa_user_sgpr_kernarg_segment_ptr 1",
            "  .amdhsa_system_sgpr_workgroup_id_x 1", "  .amdhsa_float_denorm_mode_32 3",
            ".end_amdhsa_kernel"]
    return "\n".join(out) + "\n"

if __name__ == "__main__":
    kw = eval("dict(" + (sys.argv[2] if len(sys.argv) > 2 else "") + ")")
    open(sys.argv[1], "w").write(gen(**kw))
```

```python
import struct, sys
NAME = "sequential_preLN__mha_block_cached__dense_activation_squared_relu__decode"

def f2u(x): return struct.unpack("<I", struct.pack("<f", x))[0]
LOG2E = f2u(1.4426950408889634)
SCALE = f2u(128 ** -0.5)
EPS = f2u(1e-5)
NF = 22

WS_P = 0
WS_A = 0x20000
WS_Y = 0x24000
WS_R = 0x50000
WS_QF = 0x60000
WS_QD = 0x80000
WS_IN = 0x100000
WS_END = 0x200000
STAMP_OFF = 128 << 20

C_COMB, C_STAT, C_STG, C_ORED, C_Q, C_QP, C_TRIG, C_TRIG2 = [16*i for i in range(8)]
C_FW = 128
L_FW = 144
L_Q = 160
L_ST = L_Q + 256
L_FS = L_ST + 64
L_RR = L_FS + 128
L_O = 1024
L_HN = L_O + 2048
L_RED = L_HN + 2048
L_W = L_RED + 4096
W2P = 1056
L_W2 = L_W + 0x10000
L_END = L_W2 + 64 * W2P
SPIN_MAX = 400000

HEADER = open("cdna_kernels/" + NAME + ".s.ref").read().split("; Override launch")[0]

class G:
    def __init__(s): s.L = []
    def __call__(s, x): s.L.append("  " + x)
    def lab(s, x): s.L.append(x + ":")
    def c(s, x): s.L.append("  ; " + x)

def gen(prof=False, diag=None, agg=None, dbg='', local=True, forcefb=False,
        D=5, DH=6, DE=8, NE=8, N0=46, budget=30, ramp=(), XF=2, WO=4, WF=4, W2W=16, QTRY=32,
        NSTAT=112, NTRIG=126, NT2=127, kF=20, kO=5, kX=3,
        lin='1 2 30 8 800 80 200 480 a0 53c 40 140 0 100 0 400 0 0', qmode=1, pfw2=False, sleepR=2, mimic=False, rpipe=False,
        w1pol='', qsleep=0, qprio=2, kvpol='nt', pfo='', pf1='', kN=0, ldq=False, flagop='or', eclr=True):
    g = G()
    a = g
    dbg = set(dbg.split())
    if agg: prof = True
    store_prof = prof
    if diag: prof = True
    lin = [int(t_, 16) & ~3 for t_ in lin.split()]
    def vr(r, n=1): return f"v{r}" if n == 1 else f"v[{r}:{r+n-1}]"
    def sr(r, n=1): return f"s{r}" if n == 1 else f"s[{r}:{r+n-1}]"
    DPPF = "row_mask:0xf bank_mask:0xf"
    sX, sK, sV, sWQ, sWO, sBX, sW1, sB1 = 4, 6, 8, 10, 12, 14, 16, 18
    sW2, sB2, sOUT, sDBG, sWS = 20, 22, 24, 26, 28
    sWAVE, sH, sB, sSUB, sW4 = 30, 31, 32, 34, 35
    sT0, sT1, sT2, sT3 = 36, 37, 38, 39
    R0, R1, R2, R3, RWS = 40, 44, 48, 52, 56
    sSO, sSPIN, sSLOT, sXCC = 60, 61, 62, 63
    sM0 = 64
    sC0, sC1 = 66, 67
    sCLS, sY, sLOC, sU3 = 68, 69, 70, 71
    sST = 72
    sU0, sU1, sU2, sROLE = 96, 97, 98, 99
    def stamp(i):
        if prof: a(f"s_memrealtime {sr(sST+2*i,2)}")
    def srd(R, base, off_sgpr, nrec):
        if off_sgpr is None:
            a(f"s_mov_b64 {sr(R,2)}, {sr(base,2)}")
        else:
            a(f"s_add_u32 {sr(R)}, {sr(base)}, {sr(off_sgpr)}"); a(f"s_addc_u32 {sr(R+1)}, {sr(base+1)}, 0")
        a(f"s_mov_b32 {sr(R+2)}, {nrec}"); a(f"s_mov_b32 {sr(R+3)}, 0x20000")
    def rnd(dst, src):
        a(f"v_cvt_pk_bf16_f32 {vr(dst)}, {vr(src)}, {vr(src)}")
        a(f"v_lshlrev_b32 {vr(dst)}, 16, {vr(dst)}")
    def allred(op, r, t, quad=True, s32=True):
        for st in (["quad_perm:[1,0,3,2]", "quad_perm:[2,3,0,1]"] if quad else []) + ["row_ror:4", "row_ror:8"]:
            a("s_nop 1")
            a(f"{op}_dpp {vr(r)}, {vr(r)}, {vr(r)} {st} {DPPF}")
        for sw in ("v_permlane16_swap_b32", "v_permlane32_swap_b32")[:2 if s32 else 1]:
            a(f"v_mov_b32 {vr(t)}, {vr(r)}")
            a("s_nop 1")
            a(f"{sw} {vr(r)}, {vr(t)}")
            a(f"{op} {vr(r)}, {vr(r)}, {vr(t)}")
    def sent_ops(regs, tmp):
        rs_ = list(regs); o = []
        if len(rs_) == 1: return [f"v_cmp_eq_u32 vcc, -1, {vr(rs_[0])}"]
        o.append(f"v_max3_u32 {vr(tmp)}, {vr(rs_[0])}, {vr(rs_[1])}, {vr(rs_[2])}"); rs_ = rs_[3:]
        while len(rs_) >= 2:
            o.append(f"v_max3_u32 {vr(tmp)}, {vr(tmp)}, {vr(rs_[0])}, {vr(rs_[1])}"); rs_ = rs_[2:]
        if rs_: o.append(f"v_max_u32 {vr(tmp)}, {vr(tmp)}, {vr(rs_[0])}")
        o.append(f"v_cmp_eq_u32 vcc, -1, {vr(tmp)}")
        return o
    def poll(label, loads, regs, tmp, spin=SPIN_MAX, fail=None, pre=(), spec=(), per=99, post=(), sleep=0, pipe=False):
        a(f"s_mov_b32 {sr(sSPIN)}, {spin}")
        if pipe:
            for l in loads: a(l)
        a(f"s_branch {label}")
        g.lab(label + "_r")
        a(f"s_sub_u32 {sr(sSPIN)}, {sr(sSPIN)}, 1")
        a(f"s_cbranch_scc1 {fail or label + '_x'}")
        if sleep: a(f"s_sleep {sleep}")
        a("s_mov_b64 exec, vcc")
        g.lab(label)
        for l in loads: a(l)
        a("s_mov_b64 exec, -1")
        for l in pre: a(l)
        a(f"s_waitcnt vmcnt({len(loads) if pipe else 0})")
        chk_ = sent_ops(regs, tmp); spec = list(spec)
        while spec:
            a(spec.pop(0))
            for _ in range(per):
                if chk_: a(chk_.pop(0))
        for l in chk_: a(l)
        for l in post: a(l)
        a(f"s_cbranch_vccnz {label}_r")
        g.lab(label + "_x")
    def flags_addr(v, t):
        a(f"v_lshrrev_b32 {vr(v)}, 1, {vr(vI)}")
        a(f"v_lshlrev_b32 {vr(v)}, 5, {vr(v)}")
        a(f"v_and_b32 {vr(t)}, 1, {vr(vI)}")
        a(f"v_lshl_add_u32 {vr(v)}, {vr(t)}, 2, {vr(v)}")
    def flags_eval(v, t):
        a(f"s_mov_b32 {sr(sT0)}, 0x80808080")
        a(f"s_mul_i32 {sr(sT1)}, {sr(sXCC)}, 0x01010101")
        a(f"v_and_b32 {vr(t)}, {sr(sT0)}, {vr(v)}")
        a(f"v_cmp_eq_u32 {sr(sT2,2)}, {sr(sT1)}, {vr(v)}")
        a(f"v_cmp_ne_u32 vcc, {sr(sT0)}, {vr(t)}")
        a(f"s_lshl_b32 {sr(sT0)}, {sr(sCLS)}, 1")
        a(f"s_lshr_b32 {sr(sLOC)}, {sr(sT2)}, {sr(sT0)}")
        a(f"s_and_b32 {sr(sLOC)}, {sr(sLOC)}, 3")
        a(f"s_or_b32 {sr(sLOC)}, {sr(sLOC)}, 4")
        a(f"s_and_b32 {sr(sU3)}, vcc_lo, 0xffff")
    def wait_flags(label, v):
        a(f"s_mov_b32 {sr(sSPIN)}, {SPIN_MAX}")
        flags_addr(v+1, v+2)
        g.lab(label)
        a(f"global_load_dword {vr(v)}, {vr(v+1)}, {sr(sDBG,2)} sc1")
        a("s_waitcnt vmcnt(0)")
        flags_eval(v, v+2)
        a(f"s_cbranch_scc0 {label}_x")
        a("s_sleep 16")
        a(f"s_sub_u32 {sr(sSPIN)}, {sr(sSPIN)}, 4")
        a(f"s_cbranch_scc0 {label}")
        g.lab(label + "_x")
    def lds_spin(label, off, vt, want, sleep=0):
        g.lab(label)
        a(f"ds_read_b32 {vr(vt)}, {vr(vZ)} offset:{off}")
        if sleep: a(f"s_sleep {sleep}")
        a("s_waitcnt lgkmcnt(0)")
        a(f"v_cmp_ne_u32 vcc, {want}, {vr(vt)}")
        a(f"s_cbranch_vccnz {label}")
    def get_loc(label):
        g.lab(label)
        a(f"ds_read_b32 v12, {vr(vZ)} offset:{C_FW}")
        a("s_sleep 4")
        a("s_waitcnt vmcnt(0) lgkmcnt(0)")
        a(f"v_readfirstlane_b32 {sr(sLOC)}, v12")
        a(f"s_cmp_eq_u32 {sr(sLOC)}, 0")
        a(f"s_cbranch_scc1 {label}")
    def make_masks(both):
        a(f"v_and_b32 v10, 1, {vr(vI)}")
        a("v_lshlrev_b32 v10, 4, v10")
        a("v_mov_b32 v9, 0xffff")
        a("v_lshlrev_b32 v10, v10, v9")
        if both: a(f"v_bfe_u32 v9, {vr(vI)}, 1, 2")
        else: a(f"v_lshrrev_b32 v9, 1, {vr(vI)}")
        for r in range(4):
            a(f"v_cmp_eq_u32 vcc, {r}, v9")
            a("s_nop 1")
            a(f"v_cndmask_b32 {vr(vMASK+r)}, 0, v10, vcc")
    def ln_scale(vmean, vvar):
        rnd(vvar, vvar)
        a(f"v_add_f32 {vr(vvar)}, {EPS:#x}, {vr(vvar)}")
        rnd(vvar, vvar)
        a(f"v_sqrt_f32 {vr(vvar)}, {vr(vvar)}")
        rnd(vmean, vmean)
        rnd(vvar, vvar)
        a(f"v_rcp_f32 {vr(vvar)}, {vr(vvar)}")
    LOCV = 7 if local else 99

    vLANE, vI, vG = 1, 2, 3
    vMASK = 4
    vZ, vONE = 26, 27
    a(f"s_load_dwordx16 {sr(4,16)}, s[0:1], 0")
    a(f"s_load_dwordx8 {sr(20,8)}, s[0:1], 64")
    a(f"s_load_dwordx2 {sr(28,2)}, s[0:1], 96")
    a(f"s_lshr_b32 {sr(sT0)}, s2, 8")
    a("s_cbranch_scc1 L_end")
    stamp(0)
    a(f"s_and_b32 {sr(sH)}, s2, 31")
    a(f"s_lshr_b32 {sr(sSUB)}, s2, 5")
    a(f"s_lshl3_add_u32 {sr(sSLOT)}, {sr(sH)}, {sr(sSUB)}")
    a(f"s_lshl_b32 {sr(sT0)}, {sr(sSLOT)}, 14")
    a("v_lshlrev_b32 v10, 4, v0")
    a(f"v_mov_b32 {vr(vZ)}, 0")
    a(f"ds_write_b32 v10, {vr(vZ)}")
    a(f"v_lshl_add_u32 v9, v0, 5, {sr(sT0)}")
    a(f"s_mul_i32 {sr(sT0)}, s2, 5504")
    a("v_min_u32 v11, 5488, v10")
    a(f"v_add_u32 v11, {sr(sT0)}, v11")
    a("s_waitcnt lgkmcnt(0)")
    npf = 0
    if 'nopf' not in dbg:
        a(f"global_load_dword v250, v9, {sr(sWO,2)} {pfo}")
        a(f"global_load_dword v251, v11, {sr(sW1,2)} {pf1}")
        if pfw2: a(f"global_load_dword v249, v11, {sr(sW2,2)}")
        npf = 3 if pfw2 else 2
    a("s_barrier")
    if prof:
        for i in range(1, 12): a(f"s_mov_b64 {sr(sST+2*i,2)}, 0")
    stamp(1)
    a(f"v_lshrrev_b32 {vr(vI)}, 6, v0")
    a(f"v_and_b32 {vr(vLANE)}, 63, v0")
    a(f"s_lshr_b32 {sr(sB)}, s2, 7")
    a(f"v_readfirstlane_b32 {sr(sWAVE)}, {vr(vI)}")
    a(f"v_and_b32 {vr(vI)}, 15, {vr(vLANE)}")
    a(f"v_lshrrev_b32 {vr(vG)}, 4, {vr(vLANE)}")
    a(f"v_lshlrev_b32 v8, 4, {vr(vLANE)}")
    a(f"s_and_b32 {sr(sW4)}, {sr(sWAVE)}, 3")
    srd(RWS, sWS, None, WS_END)
    a(f"s_cmp_lt_u32 {sr(sWAVE)}, 4")
    a("s_cbranch_scc1 L_stream")
    a(f"s_cmp_eq_u32 {sr(sWAVE)}, 4")
    if eclr:
        a("s_cbranch_scc1 L_q1")
        a(f"s_cmp_eq_u32 {sr(sWAVE)}, 6")
        a(f"s_cselect_b32 {sr(sT0)}, s2, 64")
        a(f"s_cmp_lt_u32 {sr(sT0)}, 64")
        a("s_cbranch_scc0 L_other")
        for k in range(4): a(f"v_mov_b32 {vr(16+k)}, -1")
        a(f"s_mul_i32 {sr(sT0)}, s2, 3712")
        for k in range(3): a(f"buffer_store_dwordx4 v[16:19], v8, {sr(RWS,4)}, {sr(sT0)} offen offset:{k*1024} sc1")
        a("s_mov_b32 exec_hi, 0xff")
        a(f"buffer_store_dwordx4 v[16:19], v8, {sr(RWS,4)}, {sr(sT0)} offen offset:3072 sc1")
        a("s_mov_b32 exec_hi, -1")
        a("s_branch L_other")
        g.lab("L_q1")
    else:
        a("s_cbranch_scc0 L_other")
    def common2():
        a(f"s_and_b32 {sr(sCLS)}, s2, 7")
        a(f"s_lshr_b32 {sr(sY)}, s2, 3")
        a(f"s_getreg_b32 {sr(sXCC)}, hwreg(HW_REG_XCC_ID, 0, 3)")
        a(f"s_or_b32 {sr(sXCC)}, {sr(sXCC)}, 0x80")
        a(f"v_mov_b32 {vr(vONE)}, 1")
        a(f"s_cmp_lt_u32 {sr(sY)}, {8+NF}")
        a(f"s_cselect_b32 {sr(sROLE)}, 2, 0")
        a(f"s_cmp_eq_u32 {sr(sCLS)}, {XF}")
        a(f"s_cselect_b32 {sr(sROLE)}, {sr(sROLE)}, 0")
        a(f"s_cmp_lt_u32 {sr(sY)}, 8")
        a(f"s_cselect_b32 {sr(sROLE)}, 1, {sr(sROLE)}")

    hW = 64
    if qprio: a(f"s_setprio {qprio}")
    if 'noq' in dbg:
        a("v_mov_b32 v34, 1")
        a(f"ds_write_b32 {vr(vZ)}, v34 offset:{C_Q}")
        a(f"ds_write_b32 {vr(vZ)}, v34 offset:{C_QP}")
        a("s_branch L_end")
    for k in range(4): a(f"v_mov_b32 {vr(16+k)}, -1")
    if qmode == 0:
        a(f"s_lshl_b32 {sr(sU0)}, {sr(sSLOT)}, 12")
        a(f"s_add_u32 {sr(sU0)}, {sr(sU0)}, {WS_IN}")
        for u in range(4):
            a(f"buffer_store_dwordx4 v[16:19], v8, {sr(RWS,4)}, {sr(sU0)} offen offset:{u*1024}")
    else:
        a(f"s_lshl_b32 {sr(sU0)}, {sr(sSLOT)}, 7")
        a(f"s_add_u32 {sr(sU0)}, {sr(sU0)}, {WS_QF}")
        a("s_mov_b64 exec, 0xff")
        a(f"buffer_store_dwordx4 v[16:19], v8, {sr(RWS,4)}, {sr(sU0)} offen")
        a("s_mov_b64 exec, -1")
    a(f"v_lshlrev_b32 v12, 5, {vr(vLANE)}")
    srd(R0, sX, None, 2048)
    a(f"buffer_load_dwordx4 v[20:23], v12, {sr(R0,4)}, 0 offen")
    a(f"buffer_load_dwordx4 v[128:131], v12, {sr(R0,4)}, 0 offen offset:16")
    a(f"v_lshlrev_b32 v11, 13, {vr(vG)}")
    a(f"v_lshl_add_u32 v11, {vr(vI)}, 4, v11")
    a(f"v_lshl_add_u32 v63, {vr(vI)}, 2, {vr(vG)}")
    a("v_lshlrev_b32 v63, 1, v63")
    a(f"s_lshl_b32 {sr(sT0)}, {sr(sH)}, 8")
    a(f"s_lshl_b32 {sr(sSO)}, {sr(sSUB)}, 19")
    srd(R1, sWQ, sT0, 511*8192 + 256)
    a(f"s_mov_b32 {sr(sU3)}, 0")
    g.lab("L_qload")
    a(f"s_lshr_b32 {sr(sT2)}, {sr(sSO)}, 12")
    a(f"buffer_load_ushort v14, v63, {sr(R0,4)}, {sr(sT2)} offen")
    a(f"buffer_load_ushort v15, v63, {sr(R0,4)}, {sr(sT2)} offen offset:1024")
    for t in range(16):
        a(f"buffer_load_dwordx4 {vr(hW+4*t,4)}, v11, {sr(R1,4)}, {sr(sSO)} offen nt")
        a(f"s_add_u32 {sr(sSO)}, {sr(sSO)}, 0x8000")
    a("s_branch L_q2")

    g.lab("L_stream")
    vOFF = 8
    vQ, vP, vU = 12, 16, 20
    vMX, vL, vT = 22, 23, 24
    vACC, vA, vF, vS, vRING = 28, 32, 40, 48, 64
    NR = N0
    assert vRING + 4*NR <= 249
    sPAT, sJW, sK0 = sU0, sU1, sU2
    a(f"s_lshl_b32 {sr(sT0)}, {sr(sB)}, 5")
    a(f"s_add_u32 {sr(sT0)}, {sr(sT0)}, {sr(sH)}")
    a(f"s_lshl_b32 {sr(sT0)}, {sr(sT0)}, 20")
    srd(R0, sK, sT0, 1 << 20)
    first = True
    for (reg, bit), col in zip([(sW4, 0), (sW4, 1), (2, 5), (2, 6)] + [(2, k) for k in range(5)] + [(2, 7)], lin[8:18]):
        if col:
            a(f"s_bitcmp1_b32 {sr(reg)}, {bit}")
            a(f"s_cselect_b32 {sr(sJW if first else sT2)}, {col << 8:#x}, 0")
            if not first: a(f"s_xor_b32 {sr(sJW)}, {sr(sJW)}, {sr(sT2)}")
            first = False
    ops = [('pf', m) for m in range(npf)]
    landed = [-1]
    def wait_vm(n):
        a(f"s_waitcnt vmcnt({n})")
        landed[0] = max(landed[0], len(ops) - 1 - n)
    def slot(n): return vRING + (n % NR) * 4
    done = set()
    usepat = kF or kO or kX or kN
    kmax = max(kF, kX + kO, kN + kO)
    kmin = min(kF, kX, kN)
    def issue(n):
        assert n < NR or (n - NR) in done, n
        c_ = 0
        for k in range(6):
            if n >> k & 1: c_ ^= lin[2 + k]
        a(f"s_xor_b32 {sr(sSO)}, {sr(sJW)}, {c_ << 8:#x}")
        def cnt(d):
            k = c = 0
            for o in reversed(ops):
                if o[0] != 'x':
                    if k == d - 1: break
                    k += 1
                c += 1
            return c
        if n < len(ramp) or not usepat or n < 6 or n >= 128 - NE or not kmin <= (n & 31) < kmax:
            d = ramp[n] if n < len(ramp) else (DE if n >= 128 - NE else (DH if n >= 6 and (n & 31) < kmin else D))
            if len(ops) >= d: wait_vm(cnt(d))
        else:
            a(f"s_bitcmp1_b32 {sr(sPAT)}, {n & 31}")
            lo = cnt(D)
            wait_vm(cnt(DH))
            a(f"s_cbranch_scc1 L_w{n}")
            a(f"s_waitcnt vmcnt({lo})")
            g.lab(f"L_w{n}")
        a(f"buffer_load_dwordx4 {vr(slot(n),4)}, {vr(vOFF)}, {sr(R0 if n < 64 else R1,4)}, {sr(sSO)} offen {kvpol}")
        ops.append(('ld', n))
    def has(key): return key in ops and ops.index(key) <= landed[0]
    chunks = []
    def k_item(n):
        def f():
            r = n & 3
            for k in range(4):
                a(f"v_dot2_f32_bf16 {vr(vP+r)}, {vr(slot(n)+k)}, {vr(vQ+k)}, {'0' if k == 0 else vr(vP+r)}")
        chunks.append((('ld', n), 5, f, n))
    def k_block(t):
        def f():
            s = vS + t
            a(f"v_add_f32_dpp {vr(vU)}, {vr(vP)}, {vr(vP)} row_ror:8 row_mask:0xf bank_mask:0x3")
            a(f"v_add_f32_dpp {vr(vU+1)}, {vr(vP+1)}, {vr(vP+1)} row_ror:8 row_mask:0xf bank_mask:0x3")
            a(f"v_add_f32_dpp {vr(vU)}, {vr(vP+2)}, {vr(vP+2)} row_ror:8 row_mask:0xf bank_mask:0xc")
            a(f"v_add_f32_dpp {vr(vU+1)}, {vr(vP+3)}, {vr(vP+3)} row_ror:8 row_mask:0xf bank_mask:0xc")
            a("s_nop 0")
            a(f"v_add_f32_dpp {vr(s)}, {vr(vU)}, {vr(vU)} row_shl:4 row_mask:0xf bank_mask:0x5")
            a(f"v_add_f32_dpp {vr(s)}, {vr(vU+1)}, {vr(vU+1)} row_shr:4 row_mask:0xf bank_mask:0xa")
            a("s_nop 1")
            a(f"v_add_f32_dpp {vr(s)}, {vr(s)}, {vr(s)} quad_perm:[1,0,3,2] {DPPF}")
            a("s_nop 1")
            a(f"v_add_f32_dpp {vr(s)}, {vr(s)}, {vr(s)} quad_perm:[2,3,0,1] {DPPF}")
            rnd(s, s)
            a(f"v_mul_f32 {vr(s)}, {sr(sC1)}, {vr(s)}")
            rnd(s, s)
            a(f"v_max_f32 {vr(vMX)}, {vr(vMX)}, {vr(s)}")
        chunks.append((None, 19, f, None))
    def v_item(n):
        def f():
            m = n - 64
            t, r = m >> 2, m & 3
            A = vA + 4 * (m & 1)
            for k in range(4):
                a(f"v_and_b32_dpp {vr(A+k)}, {vr(vS+t)}, {vr(vMASK+k)} row_newbcast:{4*r} {DPPF}")
            if has(('ld', n)):
                a("s_nop 1")
            else:
                a("s_nop 0")
                wait_vm(len(ops) - 1 - ops.index(('ld', n)))
            a(f"v_mfma_f32_16x16x32_bf16 {vr(vACC,4)}, {vr(A,4)}, {vr(slot(n),4)}, {'0' if m == 0 else vr(vACC,4)}")
        chunks.append((('ld', n), 8, f, n))
    for t in range(16):
        for r in range(4): k_item(4*t + r)
        k_block(t)
    def c_max():
        stamp(3)
        allred("v_max_f32", vMX, vT, quad=False)
        a(f"v_mul_f32 {vr(vMX)}, {sr(sC0)}, {vr(vMX)}")
        a(f"v_mov_b32 {vr(vL)}, 0")
    chunks.append((None, 24, c_max, None))
    for t0 in range(0, 16, 4):
        def f(t0=t0):
            rs_ = [vS + t for t in range(t0, t0 + 4)]
            for s in rs_: a(f"v_fma_f32 {vr(s)}, {vr(s)}, {sr(sC0)}, -{vr(vMX)}")
            for s in rs_: a(f"v_exp_f32 {vr(s)}, {vr(s)}")
            for s in rs_:
                a(f"v_add_f32 {vr(vL)}, {vr(vL)}, {vr(s)}")
                a(f"v_cvt_pk_bf16_f32 {vr(s)}, {vr(s)}, {vr(s)}")
        chunks.append((None, 20, f, None))
    sum_done = [False]
    def c_sum():
        allred("v_add_f32", vL, vT, quad=False)
        a(f"s_lshl_b32 {sr(sT0)}, {sr(sW4)}, 3")
        a(f"v_mov_b32 {vr(vT)}, {sr(sT0)}")
        a("s_mov_b64 exec, 1")
        a(f"ds_write_b64 {vr(vT)}, {vr(vMX,2)} offset:{L_ST}")
        a(f"ds_add_u32 {vr(vZ)}, {vr(vONE)} offset:{C_STAT}")
        a("s_mov_b64 exec, -1")
        sum_done[0] = True
    chunks.append((None, 28, c_sum, None))
    for n in range(64, 128): v_item(n)
    def x_fw():
        assert sum_done[0]
        g.lab("L_fw")
        a(f"ds_read_b32 v20, {vr(vZ)} offset:{C_FW}")
        a(f"ds_read_b128 {vr(vF,4)}, {vr(vZ)} offset:{L_FW}")
        a("s_waitcnt lgkmcnt(0)")
        a(f"v_readfirstlane_b32 {sr(sLOC)}, v20")
        a(f"s_cmp_eq_u32 {sr(sLOC)}, 0")
        a("s_cbranch_scc1 L_fw")
        stamp(4)
    def x_trig():
        a(f"ds_write_b32 {vr(vZ)}, {vr(vONE)} offset:{C_TRIG}")
    def x_trig2():
        a("s_mov_b64 exec, 1")
        a(f"ds_add_u32 {vr(vZ)}, {vr(vONE)} offset:{C_TRIG2}")
        a("s_mov_b64 exec, -1")
    extra = {NSTAT: x_fw, NTRIG: x_trig, NT2: x_trig2}
    if 'nox' in dbg: extra = {}
    ci = [0]
    def run_chunks(bud, force=False):
        while ci[0] < len(chunks):
            needs, cost, fn, frees = chunks[ci[0]]
            if not force:
                if needs is not None and not has(needs): break
                if cost > bud: break
            if 'nocomp' not in dbg or force or fn is c_sum: fn()
            bud -= cost; ci[0] += 1
            if frees is not None: done.add(frees)
    for n in range(N0):
        issue(n)
        if n in extra: extra[n]()
        if n == 1:
            srd(R1, sV, sT0, 1 << 20)
            common2()
            a(f"s_lshl_b32 {sr(sSLOT)}, {sr(sSLOT)}, 9")
            a(f"s_mov_b32 {sr(sC0)}, {LOG2E:#x}")
            a(f"s_mov_b32 {sr(sC1)}, {SCALE:#x}")
            if usepat:
                a(f"s_cmp_eq_u32 {sr(sCLS)}, {XF}")
                a(f"s_cselect_b32 {sr(sK0)}, {kX}, {kN}")
                a(f"s_cmp_eq_u32 {sr(sROLE)}, 1")
                a(f"s_cselect_b32 {sr(sT1)}, {kO}, 0")
                a(f"s_add_u32 {sr(sK0)}, {sr(sK0)}, {sr(sT1)}")
                a(f"s_cmp_eq_u32 {sr(sROLE)}, 2")
                a(f"s_cselect_b32 {sr(sK0)}, {kF}, {sr(sK0)}")
                a(f"s_bfm_b64 {sr(sT2,2)}, {sr(sK0)}, 0")
                a(f"s_mov_b32 {sr(sPAT)}, {sr(sT2)}")
            make_masks(False)
            a(f"v_lshlrev_b32 v9, 4, {vr(vI)}")
            a("v_lshrrev_b32 v11, 1, v8")
            a(f"s_lshl_b32 {sr(sT1)}, {sr(sW4)}, 9")
            a(f"v_add_u32 v10, {sr(sT1)}, v8")
            a(f"v_mov_b32 {vr(vMX)}, 0xff800000")
    g.lab("L_qspin")
    a(f"ds_read_b32 {vr(vT)}, {vr(vZ)} offset:{C_Q}")
    a(f"ds_read_b128 {vr(vQ,4)}, v9 offset:{L_Q}")
    a("s_waitcnt lgkmcnt(0)")
    a(f"v_cmp_ne_u32 vcc, 1, {vr(vT)}")
    a("s_cbranch_vccnz L_qspin")
    stamp(2)
    run_chunks(5)
    for n in range(N0, 128):
        issue(n)
        if n in extra: extra[n]()
        run_chunks(budget - (24 if n in extra else 0))
    run_chunks(0, force=True)
    a("s_mov_b32 exec_hi, 0")
    stamp(5)
    a(f"s_cmp_eq_u32 {sr(sLOC)}, {LOCV}")
    a(f"s_cselect_b32 {sr(sT1)}, 3, 7")
    a("s_nop 4")
    a(f"ds_write_b128 v10, {vr(vACC,4)} offset:{L_O}")
    a("s_mov_b32 exec_lo, 1")
    a(f"ds_add_rtn_u32 v25, {vr(vZ)}, {vr(vONE)} offset:{C_COMB}")
    a("s_mov_b32 exec_lo, -1")
    for w in range(4): a(f"ds_read_b128 {vr(48+4*w,4)}, v8 offset:{L_O + w*512}")
    a("s_waitcnt lgkmcnt(3)")
    a(f"v_readfirstlane_b32 {sr(sT0)}, v25")
    def sel(w): return "op_sel_hi:[1,0,1]" if w % 2 == 0 else "op_sel:[0,1,0]"
    for k in (0, 2): a(f"v_pk_mul_f32 {vr(48+k,2)}, {vr(48+k,2)}, {vr(vF,2)} op_sel_hi:[1,0]")
    for w in range(1, 4):
        a(f"s_waitcnt lgkmcnt({3-w})")
        for k in (0, 2): a(f"v_pk_fma_f32 {vr(48+k,2)}, {vr(48+4*w+k,2)}, {vr(vF+(w&2),2)}, {vr(48+k,2)} {sel(w)}")
    a(f"s_cmp_eq_u32 {sr(sT0)}, {sr(sT1)}")
    a("v_cvt_pk_bf16_f32 v48, v48, v49")
    a("v_cvt_pk_bf16_f32 v49, v50, v51")
    a("s_cbranch_scc0 L_pub_far")
    a(f"buffer_store_dwordx2 v[48:49], v11, {sr(RWS,4)}, {sr(sSLOT)} offen")
    stamp(6)
    g.lab("L_sdone")
    a(f"s_cmp_eq_u32 {sr(sROLE)}, 2")
    a("s_cbranch_scc0 L_fin")
    a("s_barrier")
    a("s_branch L_fin")
    g.lab("L_pub_far")
    a(f"s_cmp_eq_u32 {sr(sT0)}, 3")
    a("s_cbranch_scc0 L_sdone")
    a(f"buffer_store_dwordx2 v[48:49], v11, {sr(RWS,4)}, {sr(sSLOT)} offen sc1")
    stamp(6)
    a("s_branch L_sdone")

    g.lab("L_q2")
    a(f"s_cmp_eq_u32 {sr(sU3)}, 0")
    a("s_cbranch_scc0 L_tile")
    common2()
    make_masks(True)
    a(f"v_and_b32 v12, 31, {vr(vLANE)}")
    a("v_lshlrev_b32 v12, 4, v12")
    a(f"v_lshrrev_b32 v13, 5, {vr(vLANE)}")
    if qmode == 0:
        a("v_lshl_add_u32 v60, v13, 14, v12")
        a(f"s_lshl_b32 {sr(sU1)}, {sr(sH)}, 15")
        a(f"s_lshl_b32 {sr(sT0)}, {sr(sSUB)}, 9")
        a(f"s_add_u32 {sr(sU1)}, {sr(sU1)}, {sr(sT0)}")
        a(f"s_add_u32 {sr(sU1)}, {sr(sU1)}, {WS_IN}")
    else:
        a("v_lshl_add_u32 v60, v13, 10, v12")
        a(f"s_lshl_b32 {sr(sU1)}, {sr(sSLOT)}, 10")
        a(f"s_add_u32 {sr(sU1)}, {sr(sU1)}, {WS_QD}")
        a(f"s_lshl_b32 {sr(sT0)}, {sr(sH)}, 10")
        a(f"s_lshl2_add_u32 {sr(sT0)}, {sr(sSUB)}, {sr(sT0)}")
        a(f"s_add_u32 {sr(sT0)}, {sr(sT0)}, {WS_QF}")
        a(f"v_lshl_add_u32 v61, {vr(vLANE)}, 7, {sr(sT0)}")
        a(f"v_and_b32 v132, 7, {vr(vLANE)}")
        a("v_lshlrev_b32 v132, 2, v132")
        a(f"v_mov_b32 v133, {sr(sXCC)}")
    a(f"v_and_b32 v13, 1, {vr(vG)}")
    a("v_lshlrev_b32 v13, 3, v13")
    a(f"v_lshl_add_u32 v62, {vr(vI)}, 4, v13")
    for k in range(4): a(f"v_mov_b32 {vr(56+k)}, 0")
    a("s_waitcnt vmcnt(18)")
    for k in range(8):
        src = 20 + k if k < 4 else 124 + k
        a(f"v_and_b32 {vr(33+2*k)}, 0xffff0000, {vr(src)}")
        a(f"v_lshlrev_b32 {vr(32+2*k)}, 16, {vr(src)}")
    for k in range(4): a(f"v_pk_add_f32 {vr(48+2*k,2)}, {vr(32+4*k,2)}, {vr(34+4*k,2)}")
    a("v_pk_add_f32 v[48:49], v[48:49], v[50:51]")
    a("v_pk_add_f32 v[52:53], v[52:53], v[54:55]")
    a("v_pk_add_f32 v[48:49], v[48:49], v[52:53]")
    a("v_add_f32 v28, v48, v49")
    allred("v_add_f32", 28, 29, s32=False)
    a("v_mul_f32 v28, 0x3b000000, v28")
    for k in range(8): a(f"v_pk_add_f32 {vr(32+2*k,2)}, {vr(32+2*k,2)}, v[28:29] op_sel_hi:[1,0] neg_lo:[0,1] neg_hi:[0,1]")
    a("v_pk_mul_f32 v[30:31], v[32:33], v[32:33]")
    for k in range(1, 8): a(f"v_pk_fma_f32 v[30:31], {vr(32+2*k,2)}, {vr(32+2*k,2)}, v[30:31]")
    a("v_add_f32 v30, v30, v31")
    allred("v_add_f32", 30, 29, s32=False)
    a("v_mul_f32 v30, 0x3b000000, v30")
    ln_scale(28, 30)
    a("v_mov_b32 v29, v28")
    a("v_mov_b32 v31, v30")
    a("s_nop 1")
    a("v_permlane32_swap_b32 v28, v29")
    a("v_permlane32_swap_b32 v30, v31")
    g.lab("L_tile")
    a("s_waitcnt vmcnt(16)")
    a("v_lshlrev_b32 v14, 16, v14")
    a("v_lshlrev_b32 v15, 16, v15")
    a("v_sub_f32 v14, v14, v28")
    a("v_sub_f32 v15, v15, v29")
    rnd(14, 14); rnd(15, 15)
    a("v_mul_f32 v14, v14, v30")
    a("v_mul_f32 v15, v15, v31")
    a("v_cvt_pk_bf16_f32 v14, v14, v14")
    a("v_cvt_pk_bf16_f32 v15, v15, v15")
    a("s_nop 0")
    for t in range(16):
        a(f"v_mov_b32_dpp {vr(40+t)}, v14 row_newbcast:{t} row_mask:0xf bank_mask:0x3")
        a(f"v_mov_b32_dpp {vr(40+t)}, v15 row_newbcast:{t} row_mask:0xf bank_mask:0xc")
    for t in range(16):
        A = 32 + 4 * (t & 1)
        for k in range(4): a(f"v_and_b32 {vr(A+k)}, {vr(40+t)}, {vr(vMASK+k)}")
        a(f"s_waitcnt vmcnt({15-t})")
        a("s_nop 0")
        a(f"v_mfma_f32_16x16x32_bf16 v[56:59], {vr(A,4)}, {vr(hW+4*t,4)}, v[56:59]")
    a(f"s_cmp_eq_u32 {sr(sU3)}, 0")
    a(f"ds_write_b32 {vr(vZ)}, {vr(vONE)} offset:{C_QP}")
    a("s_nop 4")
    a("s_cbranch_scc0 L_qmore")
    stamp(3)
    if 'noxch' in dbg: a("s_branch L_qput")
    if qmode == 0:
        if not forcefb:
            for jj in range(4):
                a(f"buffer_store_dwordx4 v[56:59], v60, {sr(RWS,4)}, {sr(sU1)} offen")
                if jj < 3: a(f"s_add_u32 {sr(sU1)}, {sr(sU1)}, 4096")
        poll("L_pollQ", [f"buffer_load_dwordx4 {vr(32+4*u,4)}, v8, {sr(RWS,4)}, {sr(sU0)} offen offset:{u*1024} sc1" for u in range(4)],
             range(32, 48), 48, spin=QTRY, fail="L_qfail")
    else:
        a(f"buffer_store_dwordx4 v[56:59], v8, {sr(RWS,4)}, {sr(sU1)} offen")
        a(f"s_lshl_b32 {sr(sT0)}, {sr(sH)}, 13")
        a(f"s_lshl_b32 {sr(sT1)}, {sr(sB)}, 9")
        a(f"s_add_u32 {sr(sT0)}, {sr(sT0)}, {sr(sT1)}")
        a(f"s_add_u32 {sr(sT0)}, {sr(sT0)}, {WS_QD}")
        a(f"s_add_u32 {sr(sT1)}, {sr(sT0)}, 4096")
        a("s_mov_b64 exec, 0xff")
        a("s_waitcnt vmcnt(0)")
        if not forcefb: a(f"buffer_store_dword v133, v61, {sr(RWS,4)}, 0 offen")
        a("s_mov_b64 exec, -1")
        if qsleep: a(f"s_sleep {qsleep}")
        poll("L_pollQ", [f"buffer_load_dword v32, v132, {sr(RWS,4)}, {sr(sU0)} offen sc1"], [32], 33, spin=QTRY, fail="L_qfail")
        a("v_cmp_ne_u32 vcc, v32, v133")
        a("s_cbranch_vccnz L_qfail")
        for u in range(4):
            a(f"buffer_load_dwordx4 {vr(32+4*u,4)}, v60, {sr(RWS,4)}, {sr(sT0 if u < 2 else sT1)} offen offset:{(u&1)*2048} sc1")
        a("s_waitcnt vmcnt(0)")
    a("v_pk_add_f32 v[32:33], v[32:33], v[36:37]"); a("v_pk_add_f32 v[34:35], v[34:35], v[38:39]")
    a("v_pk_add_f32 v[40:41], v[40:41], v[44:45]"); a("v_pk_add_f32 v[42:43], v[42:43], v[46:47]")
    a("v_pk_add_f32 v[32:33], v[32:33], v[40:41]"); a("v_pk_add_f32 v[34:35], v[34:35], v[42:43]")
    for k in range(4): a(f"v_mov_b32 {vr(36+k)}, {vr(32+k)}")
    for k in range(4): a(f"v_permlane32_swap_b32 {vr(32+k)}, {vr(36+k)}")
    a("v_pk_add_f32 v[56:57], v[32:33], v[36:37]"); a("v_pk_add_f32 v[58:59], v[34:35], v[38:39]")
    g.lab("L_qput")
    a("v_cvt_pk_bf16_f32 v32, v56, v57")
    a("v_cvt_pk_bf16_f32 v33, v58, v59")
    a(f"ds_write_b64 v62, v[32:33] offset:{L_Q}")
    a(f"ds_write_b32 {vr(vZ)}, {vr(vONE)} offset:{C_Q}")
    a("s_mov_b64 exec, -1")
    stamp(2)
    a("s_setprio 0")
    a(f"s_lshl_b32 {sr(sSLOT)}, {sr(sSLOT)}, 9")
    lds_spin("L_waitst", C_STAT, 12, 4, sleep=8)
    wait_flags("L_cnt", 12)
    a(f"ds_read_b128 v[12:15], {vr(vZ)} offset:{L_ST}")
    a(f"ds_read_b128 v[16:19], {vr(vZ)} offset:{L_ST+16}")
    a("s_waitcnt lgkmcnt(0)")
    a("v_max3_f32 v20, v12, v14, v16")
    a("v_max_f32 v20, v20, v18")
    for w in range(4): a(f"v_sub_f32 {vr(28+w)}, {vr(12+2*w)}, v20")
    for w in range(4): a(f"v_exp_f32 {vr(28+w)}, {vr(28+w)}")
    a(f"v_mov_b32 v12, {sr(sLOC)}")
    a("v_mul_f32 v21, v28, v13")
    for w in range(1, 4): a(f"v_fmac_f32 v21, {vr(28+w)}, {vr(13+2*w)}")
    a("v_rcp_f32 v13, v21")
    a("s_mov_b64 exec, 1")
    a(f"s_cmp_eq_u32 {sr(sLOC)}, {LOCV}")
    a("s_cbranch_scc1 L_st_loc")
    a(f"buffer_store_dwordx2 v[20:21], {vr(vZ)}, {sr(RWS,4)}, {sr(sSLOT)} offen offset:256 sc1")
    a("s_branch L_st_done")
    g.lab("L_st_loc")
    a(f"buffer_store_dwordx2 v[20:21], {vr(vZ)}, {sr(RWS,4)}, {sr(sSLOT)} offen offset:256")
    g.lab("L_st_done")
    for w in range(4): a(f"v_mul_f32 {vr(28+w)}, {vr(28+w)}, v13")
    a(f"ds_write_b128 {vr(vZ)}, v[28:31] offset:{L_FW}")
    a(f"ds_write_b32 {vr(vZ)}, v12 offset:{C_FW}")
    a("s_mov_b64 exec, -1")
    a(f"s_cmp_eq_u32 {sr(sROLE)}, 0")
    a("s_cbranch_scc1 L_fin")
    a("s_branch L_role")
    g.lab("L_qfail")
    a(f"s_mov_b32 {sr(sU3)}, 8")
    g.lab("L_qmore")
    a(f"s_and_b32 {sr(sSO)}, {sr(sSO)}, 0x3fffff")
    a(f"s_sub_u32 {sr(sU3)}, {sr(sU3)}, 1")
    a(f"s_cmp_eq_u32 {sr(sU3)}, 0")
    a("s_cbranch_scc0 L_qload")
    a(f"s_lshl_b32 {sr(sT0)}, {sr(sB)}, 5")
    a(f"s_bfm_b64 exec, 32, {sr(sT0)}")
    a("s_branch L_qput")

    g.lab("L_other")
    common2()
    a(f"s_cmp_eq_u32 {sr(sROLE)}, 0")
    a("s_cbranch_scc1 L_fin")
    a(f"s_cmp_eq_u32 {sr(sW4)}, 3")
    a("s_cbranch_scc0 L_nocp")
    a(f"s_cmp_lt_u32 {sr(sY)}, 3")
    a("s_cbranch_scc0 L_nocp")
    a(f"s_getpc_b64 {sr(sT2,2)}")
    g.lab("L_pc")
    a(f"s_sub_u32 {sr(sT2)}, {sr(sT2)}, L_pc-{NAME}_kernel")
    a(f"s_subb_u32 {sr(sT3)}, {sr(sT3)}, 0")
    a(f"s_lshl_b32 {sr(sT0)}, {sr(sY)}, 13")
    a(f"v_lshl_add_u32 v28, {vr(vLANE)}, 7, {sr(sT0)}")
    a(f"v_min_u32 v28, L_end-{NAME}_kernel, v28")
    a(f"global_load_dword v248, v28, {sr(sT2,2)}")
    g.lab("L_nocp")
    srd(R0, sX, None, 2048)
    make_masks(True)
    if 'noclear' in dbg: a("s_branch L_role")
    a(f"s_cmp_eq_u32 {sr(sW4)}, 2")
    a("s_cbranch_scc0 L_role")
    g.lab("L_sign")
    a(f"s_lshl_b32 {sr(sT0)}, {sr(sCLS)}, 5")
    a(f"s_add_u32 {sr(sT0)}, {sr(sT0)}, {sr(sY)}")
    a(f"v_mov_b32 v12, {sr(sT0)}")
    a(f"v_mov_b32 v13, {sr(sXCC)}")
    a("s_waitcnt vmcnt(0)")
    a("s_mov_b64 exec, 1")
    if 'noflag' not in dbg:
        if flagop == 'byte': a(f"global_store_byte v12, v13, {sr(sDBG,2)} sc1")
        else:
            a("v_and_b32 v14, 3, v12")
            a("v_lshlrev_b32 v14, 3, v14")
            a("v_lshlrev_b32 v13, v14, v13")
            a("v_and_b32 v12, -4, v12")
            a(f"global_atomic_or v12, v13, {sr(sDBG,2)} sc1")
    a("s_mov_b64 exec, -1")
    g.lab("L_role")
    if 'norole' in dbg: a("s_branch L_fin")
    a("s_setprio 1")
    lds_spin("L_ldw", C_Q if ldq else C_QP, 12, 1, sleep=4)
    a(f"s_cmp_eq_u32 {sr(sROLE)}, 2")
    a("s_cbranch_scc1 L_roleF")
    def staged():
        a("s_waitcnt vmcnt(0)")
        a(f"ds_write_b32 {vr(vZ)}, {vr(vONE)} offset:{C_STG}")
        stamp(3)

    vB = 64
    a(f"s_lshl_b32 {sr(sU1)}, {sr(sY)}, 7")
    a(f"s_cmp_eq_u32 {sr(sW4)}, 1")
    a("s_cbranch_scc0 L_Oset")
    a(f"s_lshl_b32 {sr(sT0)}, {sr(sCLS)}, 17")
    a(f"s_add_u32 {sr(sT0)}, {sr(sT0)}, {sr(sU1)}")
    srd(R2, sWO, sT0, 3*(1 << 20) + 127*1024 + 128)
    a(f"v_lshrrev_b32 v12, 3, {vr(vLANE)}")
    a(f"v_and_b32 v13, 7, {vr(vLANE)}")
    a("v_lshlrev_b32 v12, 10, v12")
    a("v_lshl_add_u32 v12, v13, 4, v12")
    a(f"s_mov_b32 {sr(sSO)}, 0")
    a(f"s_mov_b32 {sr(sT3)}, {L_W}")
    g.lab("L_ldO")
    a(f"s_mov_b32 m0, {sr(sT3)}")
    a(f"s_waitcnt vmcnt({WO-1})")
    if 'noO' not in dbg: a(f"buffer_load_dwordx4 v12, {sr(R2,4)}, {sr(sSO)} offen nt lds")
    a(f"s_add_u32 {sr(sSO)}, {sr(sSO)}, 0x2000")
    a(f"s_bitcmp1_b32 {sr(sSO)}, 17")
    a(f"s_cselect_b32 {sr(sT0)}, {(1 << 20) - (1 << 17)}, 0")
    a(f"s_add_u32 {sr(sSO)}, {sr(sSO)}, {sr(sT0)}")
    a(f"s_add_u32 {sr(sT3)}, {sr(sT3)}, 1024")
    a(f"s_cmp_lt_u32 {sr(sT3)}, {L_W + 65536}")
    a("s_cbranch_scc1 L_ldO")
    staged()
    g.lab("L_Oset")
    if 'ldonly' in dbg: a("s_branch L_fin")
    a(f"s_lshl3_add_u32 {sr(sU0)}, {sr(sW4)}, {sr(sCLS)}")
    a(f"s_lshl_b32 {sr(sU0)}, {sr(sU0)}, 12")
    a(f"v_bfe_u32 v13, {vr(vLANE)}, 3, 1")
    a(f"v_bfe_u32 v12, {vr(vLANE)}, 2, 1")
    a("v_lshl_add_u32 v13, v13, 4, v12")
    a(f"v_lshrrev_b32 v23, 1, {vr(vG)}")
    a("v_lshl_add_u32 v13, v23, 5, v13")
    a(f"v_and_b32 v24, 1, {vr(vG)}")
    a("v_lshl_add_u32 v13, v24, 3, v13")
    a(f"v_and_b32 v12, 3, {vr(vLANE)}")
    a("v_lshlrev_b32 v12, 3, v12")
    a("v_lshl_add_u32 v13, v13, 7, v12")
    a(f"s_lshl_b32 {sr(sT3)}, {sr(sW4)}, 14")
    a(f"v_add_u32 v13, {sr(sT3)}, v13")
    lds_spin("L_stgO", C_STG, 12, 1, sleep=4)
    for nu in range(4):
        for u in range(2):
            for p in range(4):
                row = 64*(p >> 1) + 4*u + 2*(p & 1)
                a(f"ds_read_b64_tr_b16 {vr(vB+16*nu+8*u+2*p,2)}, v13 offset:{L_W + row*128 + nu*32}")
        a("s_waitcnt lgkmcnt(0)")
    a(f"v_lshrrev_b32 v10, 1, {vr(vI)}")
    a("v_lshlrev_b32 v10, 9, v10")
    a(f"v_and_b32 v11, 1, {vr(vI)}")
    a("v_lshl_add_u32 v10, v11, 4, v10")
    a(f"v_lshl_add_u32 v10, {vr(vG)}, 5, v10")
    a("v_mul_u32_u24 v22, 0xaaaa, v11")
    a("v_add_u32 v22, 0x4444, v22")
    a(f"s_lshl_b32 {sr(sT2)}, {sr(sW4)}, 10")
    a(f"v_add_u32 v11, {sr(sT2)}, v8")
    a("v_lshlrev_b32 v21, 10, v23")
    a(f"v_and_b32 v12, 31, {vr(vLANE)}")
    a("v_lshl_add_u32 v21, v12, 2, v21")
    a("v_lshlrev_b32 v23, 11, v23")
    a(f"s_lshl_b32 {sr(sT2)}, {sr(sCLS)}, 11")
    a(f"s_add_u32 {sr(sT2)}, {sr(sT2)}, {sr(sU1)}")
    a(f"s_add_u32 {sr(sC0)}, {sr(sT2)}, {WS_A}")
    get_loc("L_locO")
    a(f"s_mov_b32 {sr(sU2)}, 3")
    a(f"s_cmp_eq_u32 {sr(sCLS)}, {XF}")
    a("s_cbranch_scc0 L_noR")
    vRX, vRB, vRO, vRA, vRY = 128, 129, 130, 131, 132
    a(f"v_and_b32 v14, 7, {vr(vLANE)}")
    a("v_lshlrev_b32 v13, 2, v14")
    a(f"global_load_dword v15, v13, {sr(sDBG,2)} offset:{XF*32} sc1")
    a(f"s_mul_i32 {sr(sT3)}, {sr(sXCC)}, 0x01010101")
    a(f"s_lshl2_add_u32 {sr(sT0)}, {sr(sY)}, {sr(sW4)}")
    a(f"s_lshl_b32 {sr(sT1)}, {sr(sT0)}, 7")
    a(f"s_add_u32 {sr(sT1)}, {sr(sT1)}, {WS_Y}")
    srd(R3, sWS, sT1, (NF-1)*4096 + 128)
    a(f"s_lshr_b32 {sr(sT0)}, {sr(sY)}, 1")
    a(f"s_lshl_b32 {sr(sT0)}, {sr(sT0)}, 8")
    a(f"s_and_b32 {sr(sC1)}, {sr(sY)}, 1")
    a(f"s_lshl_b32 {sr(sT1)}, {sr(sC1)}, 6")
    a(f"s_add_u32 {sr(sT1)}, {sr(sT1)}, {sr(sT0)}")
    a(f"s_lshl4_add_u32 {sr(sT1)}, {sr(sW4)}, {sr(sT1)}")
    a(f"v_bfe_u32 v12, {vr(vLANE)}, 4, 1")
    a("v_lshlrev_b32 v12, 7, v12")
    a("v_lshl_add_u32 v12, v14, 1, v12")
    a(f"v_add_u32 v12, {sr(sT1)}, v12")
    a(f"v_lshrrev_b32 v13, 5, {vr(vLANE)}")
    a(f"v_lshl_add_u32 {vr(vRO)}, v13, 10, v12")
    srd(R2, sB2, None, 1024)
    srd(R1, sOUT, None, 2048)
    a(f"buffer_load_ushort {vr(vRX)}, {vr(vRO)}, {sr(R0,4)}, 0 offen")
    a(f"buffer_load_ushort {vr(vRB)}, v12, {sr(R2,4)}, 0 offen")
    a(f"buffer_load_ushort v16, {vr(vRO)}, {sr(R1,4)}, 0 offen")
    a(f"v_lshrrev_b32 v12, 3, {vr(vLANE)}")
    a("v_lshlrev_b32 v13, 11, v12")
    a("v_lshl_add_u32 v13, v14, 2, v13")
    a(f"s_lshl_b32 {sr(sT2)}, {sr(sW4)}, 5")
    a(f"s_add_u32 {sr(sT0)}, {sr(sT0)}, {sr(sT2)}")
    a(f"s_add_u32 {sr(sT0)}, {sr(sT0)}, {WS_A}")
    a(f"v_add_u32 {vr(vRA)}, {sr(sT0)}, v13")
    a(f"s_lshl_b32 {sr(sC1)}, {sr(sC1)}, 4")
    a(f"s_sub_u32 {sr(sC1)}, 16, {sr(sC1)}")
    a("v_lshlrev_b32 v12, 12, v12")
    a(f"v_lshl_add_u32 {vr(vRY)}, v14, 4, v12")
    for u in range(1, 3): a(f"v_add_u32 {vr(vRY+u)}, {u*0x8000}, {vr(vRY)}")
    a("v_cmp_eq_u32 vcc, 7, v14")
    a("v_mov_b32 v13, 16")
    a("s_waitcnt vmcnt(0)")
    a("v_cndmask_b32 v13, 0, v13, vcc")
    a(f"v_xor_b32 v15, {sr(sT3)}, v15")
    a("v_lshlrev_b32 v15, v13, v15")
    a("v_cmp_ne_u32 vcc, 0, v15")
    a(f"v_lshlrev_b32 {vr(vRX)}, 16, {vr(vRX)}")
    a(f"v_lshlrev_b32 {vr(vRB)}, 16, {vr(vRB)}")
    a("s_cbranch_vccnz L_noR")
    if local: a(f"s_mov_b32 {sr(sU2)}, 7")
    g.lab("L_noR")
    poll("L_pollOs", [f"buffer_load_dwordx2 {vr(12+2*r,2)}, v23, {sr(RWS,4)}, {sr(sU0)} offen offset:{r*512+256} sc1" for r in range(4)],
         range(12, 20), 20, sleep=24)
    a("v_max3_f32 v20, v12, v14, v16")
    a("v_max_f32 v20, v20, v18")
    for r in range(4): a(f"v_sub_f32 {vr(28+r)}, {vr(12+2*r)}, v20")
    for r in range(4): a(f"v_exp_f32 {vr(28+r)}, {vr(28+r)}")
    a("v_cmp_eq_u32 vcc, 1, v24")
    for r in range(4): a(f"v_mul_f32 {vr(28+r)}, {vr(28+r)}, {vr(13+2*r)}")
    a("v_add_f32 v20, v28, v29")
    a("v_add_f32 v12, v30, v31")
    a("v_add_f32 v20, v20, v12")
    a("v_rcp_f32 v20, v20")
    for k in range(8): a(f"v_mov_b32 {vr(40+k)}, 0")
    a("v_cndmask_b32 v28, v28, v30, vcc")
    a("v_cndmask_b32 v29, v29, v31, vcc")
    for r in range(2): a(f"v_mul_f32 {vr(28+r)}, {vr(28+r)}, v20")
    stamp(4)
    lds_spin("L_trig", C_TRIG, 12, 1, sleep=2)
    stamp(5)
    def osm(nu, u): return f"v_smfmac_f32_16x16x64_bf16 {vr(32+4*nu,4)}, {vr(12+4*u,4)}, {vr(vB+16*nu+8*u,8)}, v22"
    poll("L_pollO", [f"buffer_load_dwordx4 {vr(12+4*u,4)}, v10, {sr(RWS,4)}, {sr(sU0)} offen offset:{u*128} sc1" for u in range(2)],
         range(12, 20), 20, pre=["s_nop 1"] + [f"v_mov_b32 {vr(32+k)}, 0" for k in range(8)] + ["s_nop 0"],
         spec=[osm(0, 0), osm(0, 1), osm(1, 0)], per=2, post=[osm(1, 1)])
    stamp(6)
    def oep(nu):
        return [f"v_pk_mul_f32 {vr(32+4*nu,2)}, {vr(32+4*nu,2)}, v[28:29] op_sel_hi:[1,0]",
                f"v_pk_fma_f32 {vr(32+4*nu,2)}, {vr(34+4*nu,2)}, v[28:29], {vr(32+4*nu,2)} op_sel:[0,1,0]",
                f"v_add_f32 {vr(48+nu)}, {vr(32+4*nu)}, {vr(33+4*nu)}"]
    e0, e1, e2, e3 = oep(0), oep(1), oep(2), oep(3)
    a(osm(2, 0)); a(osm(2, 1)); a(e0[0]); a(osm(3, 0)); a(e0[1]); a(osm(3, 1)); a(e0[2])
    for l in e1: a(l)
    a("s_nop 0")
    for l in e2: a(l)
    for l in e3: a(l)
    a(f"ds_write_b128 v11, v[48:51] offset:{L_RED}")
    a("s_mov_b64 exec, 1")
    a(f"ds_add_rtn_u32 v20, {vr(vZ)}, {vr(vONE)} offset:{C_ORED}")
    a("s_mov_b64 exec, -1")
    for w in range(4): a(f"ds_read_b128 {vr(32+4*w,4)}, v8 offset:{L_RED + w*1024}")
    a("s_waitcnt lgkmcnt(2)")
    a(f"v_readfirstlane_b32 {sr(sT0)}, v20")
    a("v_pk_add_f32 v[32:33], v[32:33], v[36:37]")
    a("v_pk_add_f32 v[34:35], v[34:35], v[38:39]")
    a("s_waitcnt lgkmcnt(1)")
    a("v_pk_add_f32 v[32:33], v[32:33], v[40:41]")
    a("v_pk_add_f32 v[34:35], v[34:35], v[42:43]")
    a("s_waitcnt lgkmcnt(0)")
    a("v_pk_add_f32 v[32:33], v[32:33], v[44:45]")
    a("v_pk_add_f32 v[34:35], v[34:35], v[46:47]")
    a(f"s_cmp_eq_u32 {sr(sT0)}, {sr(sU2)}")
    a("v_permlane16_swap_b32 v32, v33")
    a("v_permlane16_swap_b32 v34, v35")
    a("v_add_f32 v32, v32, v33")
    a("v_add_f32 v34, v34, v35")
    a("v_cvt_pk_bf16_f32 v32, v32, v34")
    a("s_cbranch_scc0 L_Onear")
    a(f"buffer_store_dword v32, v21, {sr(RWS,4)}, {sr(sC0)} offen sc1")
    stamp(7)
    a("s_branch L_Odone")
    g.lab("L_Onear")
    a(f"s_cmp_eq_u32 {sr(sT0)}, 3")
    a("s_cbranch_scc0 L_Odone")
    a(f"buffer_store_dword v32, v21, {sr(RWS,4)}, {sr(sC0)} offen")
    stamp(7)
    g.lab("L_Odone")
    a(f"s_cmp_eq_u32 {sr(sCLS)}, {XF}")
    a("s_cbranch_scc0 L_fin")
    def red8(b):
        a(f"v_permlane32_swap_b32 {vr(b)}, {vr(b+1)}")
        a(f"v_permlane32_swap_b32 {vr(b+2)}, {vr(b+3)}")
        a(f"v_add_f32 {vr(b)}, {vr(b)}, {vr(b+1)}")
        a(f"v_add_f32 {vr(b+2)}, {vr(b+2)}, {vr(b+3)}")
        a("s_nop 1")
        a(f"v_permlane16_swap_b32 {vr(b)}, {vr(b+2)}")
        a(f"v_add_f32 {vr(b)}, {vr(b)}, {vr(b+2)}")
        a("s_nop 1")
        a(f"v_add_f32_dpp {vr(b)}, {vr(b)}, {vr(b)} row_ror:8 {DPPF}")
    lds_spin("L_rw", C_ORED, 12, 4, sleep=1)
    poll("L_pollRa", [f"buffer_load_dword {vr(12+r)}, {vr(vRA)}, {sr(RWS,4)}, 0 offen offset:{(r&1)*1024 + (r>>1)*128} sc1" for r in range(4)],
         range(12, 16), 16, sleep=sleepR)
    for k in range(4): a(f"v_lshlrev_b32 {vr(12+k)}, {sr(sC1)}, {vr(12+k)}")
    for k in range(4): a(f"v_and_b32 {vr(12+k)}, 0xffff0000, {vr(12+k)}")
    a("s_nop 1")
    red8(12)
    if mimic: rnd(12, 12)
    a(f"v_add_f32 v136, {vr(vRX)}, v12")
    rnd(136, 136)
    if not mimic: a(f"v_add_f32 v136, v136, {vr(vRB)}")
    poll("L_pollRy", [f"buffer_load_dwordx4 {vr(32+4*u,4)}, {vr(vRY+u)}, {sr(R3,4)}, 0 offen sc1" for u in range(3)], range(32, 44), 16,
         post=["v_pk_add_f32 v[12:13], v[32:33], v[36:37]", "v_pk_add_f32 v[14:15], v[34:35], v[38:39]",
               "v_pk_add_f32 v[12:13], v[12:13], v[40:41]", "v_pk_add_f32 v[14:15], v[14:15], v[42:43]"], pipe=rpipe)
    stamp(8)
    red8(12)
    if mimic:
        rnd(12, 12)
        a(f"v_add_f32 v12, v12, {vr(vRB)}")
        rnd(12, 12)
    a("v_add_f32 v12, v12, v136")
    a("v_cvt_pk_bf16_f32 v12, v12, v12")
    a(f"buffer_store_short v12, {vr(vRO)}, {sr(R1,4)}, 0 offen")
    stamp(9)
    a("s_branch L_fin" if prof else "s_endpgm")

    g.lab("L_roleF")
    vW1 = 64
    vW2 = 128
    vA1 = 192
    vA2 = 224
    vAC = 240
    sF = sU0
    a(f"s_sub_u32 {sr(sF)}, {sr(sY)}, 8")
    a(f"s_lshl_b32 {sr(sU1)}, {sr(sF)}, 7")
    a(f"s_cmp_eq_u32 {sr(sW4)}, 1")
    a("s_cbranch_scc0 L_Fset")
    srd(R2, sW1, sU1, 0)
    a(f"s_sub_u32 {sr(R2+2)}, {512*2752}, {sr(sU1)}")
    a(f"v_lshrrev_b32 v12, 3, {vr(vLANE)}")
    a(f"v_and_b32 v13, 7, {vr(vLANE)}")
    a("v_mul_u32_u24 v12, 2752, v12")
    a("v_lshl_add_u32 v12, v13, 4, v12")
    a(f"s_mov_b32 {sr(sT3)}, {L_W}")
    g.lab("L_ldF")
    a(f"s_mov_b32 m0, {sr(sT3)}")
    a(f"s_waitcnt vmcnt({WF-1})")
    if 'noF' not in dbg: a(f"buffer_load_dwordx4 v12, {sr(R2,4)}, 0 offen {w1pol} lds")
    a(f"v_add_u32 v12, {8*2752}, v12")
    a(f"s_add_u32 {sr(sT3)}, {sr(sT3)}, 1024")
    a(f"s_cmp_lt_u32 {sr(sT3)}, {L_W + 65536}")
    a("s_cbranch_scc1 L_ldF")
    staged()
    g.lab("L_Fset")
    if 'ldonly' in dbg: a("s_branch L_fin")
    a(f"v_lshrrev_b32 v12, 1, {vr(vG)}")
    a("v_lshlrev_b32 v12, 7, v12")
    a(f"v_lshl_add_u32 v12, {vr(vI)}, 3, v12")
    a(f"v_and_b32 v15, 1, {vr(vG)}")
    a("v_lshl_add_u32 v12, v15, 2, v12")
    a("v_and_b32 v13, 0xc0, v12")
    a("v_and_b32 v14, 63, v12")
    a("v_lshl_add_u32 v13, v13, 1, v14")
    a(f"s_lshl_b32 {sr(sU2)}, {sr(sW4)}, 9")
    a(f"buffer_load_dword v40, v13, {sr(R0,4)}, {sr(sU2)} offen")
    a(f"buffer_load_dword v41, v13, {sr(R0,4)}, {sr(sU2)} offen offset:64")
    a(f"v_lshl_add_u32 v46, v12, 1, {sr(sU2)}")
    srd(R1, sB1, None, 2752)
    a(f"s_lshl_b32 {sr(sT0)}, {sr(sW4)}, 5")
    a(f"v_lshl_add_u32 v13, {vr(vI)}, 1, {sr(sT0)}")
    a(f"v_add_u32 v14, {sr(sU1)}, v13")
    a(f"buffer_load_ushort v44, v14, {sr(R1,4)}, 0 offen")
    a("v_lshl_add_u32 v47, v15, 7, v13")
    a(f"v_lshl_add_u32 v52, {vr(vG)}, 3, {sr(sT0)}")
    a("v_lshlrev_b32 v53, 6, v15")
    a(f"v_and_b32 v14, 1, {vr(vI)}")
    a(f"v_bfe_u32 v15, {vr(vI)}, 1, 1")
    a("v_lshlrev_b32 v13, 7, v14")
    a("v_lshl_add_u32 v13, v15, 6, v13")
    a(f"v_lshl_add_u32 v48, {vr(vG)}, 4, v13")
    a("v_mul_u32_u24 v51, 0xaaaa, v15")
    a("v_add_u32 v51, 0x4444, v51")
    a("v_mul_u32_u24 v50, 0xaaaa, v14")
    a("v_add_u32 v50, 0x4444, v50")
    a(f"v_bfe_u32 v13, {vr(vI)}, 2, 1")
    a("v_lshlrev_b32 v13, 10, v13")
    a("v_lshl_add_u32 v13, v14, 6, v13")
    a(f"v_lshl_add_u32 v49, {vr(vG)}, 4, v13")
    a("v_mov_b32 v38, 0x3f803f80")
    a(f"v_lshlrev_b32 v54, 11, {vr(vG)}")
    a(f"v_lshl_add_u32 v54, {vr(vI)}, 4, v54")
    a("v_add_u32 v55, 0x2000, v54")
    a(f"s_add_u32 {sr(sU2)}, {sr(sU2)}, {WS_A}")
    a(f"v_cmp_gt_u32 vcc, 8, {vr(vI)}")
    for k in range(4): a(f"v_and_b32 {vr(60+k)}, v38, {vr(vMASK+k)}")
    for k in range(4):
        a(f"v_cndmask_b32 {vr(56+k)}, 0, {vr(60+k)}, vcc")
        a(f"v_cndmask_b32 {vr(60+k)}, {vr(60+k)}, 0, vcc")
    for k in range(16): a(f"v_mov_b32 {vr(vA2+k)}, 0")
    a(f"s_lshl2_add_u32 {sr(sT0)}, {sr(sF)}, {sr(sW4)}")
    a(f"s_lshl_b32 {sr(sT0)}, {sr(sT0)}, 10")
    a(f"s_add_u32 {sr(sC0)}, {sr(sT0)}, {WS_Y}")
    a(f"s_mov_b32 {sr(sM0)}, 0x000f000f"); a(f"s_mov_b32 {sr(sM0+1)}, 0x000f000f")
    a(f"v_and_b32 v11, 3, {vr(vLANE)}")
    a("v_lshlrev_b32 v11, 3, v11")
    a(f"v_bfe_u32 v14, {vr(vLANE)}, 3, 1")
    a(f"v_bfe_u32 v13, {vr(vLANE)}, 2, 1")
    a("v_lshl_add_u32 v39, v14, 5, v13")
    a(f"v_lshl_add_u32 v39, {vr(vG)}, 2, v39")
    a(f"v_mul_u32_u24 v39, {W2P}, v39")
    a(f"s_lshl_b32 {sr(sT0)}, {sr(sW4)}, 8")
    a(f"s_add_u32 {sr(sT0)}, {sr(sT0)}, {L_W2}")
    a(f"v_add3_u32 v39, v39, v11, {sr(sT0)}")
    a("v_lshlrev_b32 v10, 5, v13")
    a("v_lshl_add_u32 v10, v14, 4, v10")
    a(f"v_lshl_add_u32 v10, {vr(vG)}, 1, v10")
    a("v_lshl_add_u32 v10, v10, 7, v11")
    a(f"s_lshl_b32 {sr(sT0)}, {sr(sW4)}, 5")
    a(f"s_add_u32 {sr(sT0)}, {sr(sT0)}, {L_W}")
    a(f"v_add_u32 v10, {sr(sT0)}, v10")
    lds_spin("L_stgF", C_STG, 12, 1, sleep=4)
    for s in range(8):
        for p in range(4):
            a(f"ds_read_b64_tr_b16 {vr(vW1+8*s+2*p,2)}, v10 offset:{(64*s + 8*(p>>1) + (p&1))*128}")
        if s & 1: a("s_waitcnt lgkmcnt(0)")
    get_loc("L_locF")
    for k in range(4): a(f"v_mov_b32 {vr(vAC+k)}, 0"); a(f"v_mov_b32 {vr(16+k)}, v38")
    a("v_and_b32 v42, 0xffff0000, v40")
    a("v_and_b32 v43, 0xffff0000, v41")
    for s_ in range(8): a(f"v_smfmac_f32_16x16x64_bf16 {vr(vAC,4)}, v[16:19], {vr(vW1+8*s_,8)}, v50")
    a("v_lshlrev_b32 v40, 16, v40")
    a("v_lshlrev_b32 v41, 16, v41")
    a("v_lshlrev_b32 v44, 16, v44")
    a(f"s_lshl_b32 {sr(sT0)}, {sr(sF)}, 16")
    srd(R1, sW2, sT0, 0)
    a(f"s_sub_u32 {sr(R1+2)}, {1376*1024}, {sr(sT0)}")
    a(f"v_add_f32 v45, {vr(vAC)}, {vr(vAC+1)}")
    for k in range(12): a(f"v_mov_b32 {vr(vAC+k)}, 0")
    a(f"s_lshl_b32 {sr(sT0)}, {sr(sW4)}, 14")
    a(f"v_add_u32 v13, {sr(sT0)}, v8")
    a(f"s_mul_i32 {sr(sT2)}, {sr(sW4)}, {16*W2P}")
    stamp(4)
    lds_spin("L_tr2", C_TRIG2, 12, 4, sleep=1)
    for k in range(16):
        a(f"s_add_u32 m0, {sr(sT2)}, {L_W2 + k*W2P}")
        a(f"s_waitcnt vmcnt({W2W-1})")
        a(f"buffer_load_dwordx4 v13, {sr(R1,4)}, 0 offen nt lds")
        a("v_add_u32 v13, 0x400, v13")
    a("s_waitcnt vmcnt(0)")
    a("s_barrier")
    for nu in range(8):
        for p in range(4):
            a(f"ds_read_b64_tr_b16 {vr(vW2+8*nu+2*p,2)}, v39 offset:{(16*(p>>1) + 2*(p&1))*W2P + nu*32}")
    stamp(5)
    poll("L_pollF", [f"buffer_load_dwordx4 {vr(vA1+8*ch+4*u,4)}, {vr(54+u)}, {sr(RWS,4)}, {sr(sU2)} offen offset:{ch*256} sc1" for ch in range(2) for u in range(2)],
         range(vA1, vA1+16), 32,
         spec=[f"v_mfma_f32_16x16x32_bf16 v[28:31], v[56:59], {vr(vA1,4)}, {'0' if mimic else 'v[40:43]'}",
               f"v_mfma_f32_16x16x32_bf16 v[28:31], v[56:59], {vr(vA1+4,4)}, v[28:31]",
               f"v_mfma_f32_16x16x32_bf16 v[28:31], v[60:63], {vr(vA1+8,4)}, v[28:31]",
               f"v_mfma_f32_16x16x32_bf16 v[28:31], v[60:63], {vr(vA1+12,4)}, v[28:31]"], per=2,
         post=["s_nop 3"])
    stamp(6)
    if mimic:
        a("v_cvt_pk_bf16_f32 v28, v28, v29")
        a("v_cvt_pk_bf16_f32 v30, v30, v31")
        a("v_and_b32 v29, 0xffff0000, v28")
        a("v_and_b32 v31, 0xffff0000, v30")
        a("v_lshlrev_b32 v28, 16, v28")
        a("v_lshlrev_b32 v30, 16, v30")
        a("v_pk_add_f32 v[28:29], v[28:29], v[40:41]")
        a("v_pk_add_f32 v[30:31], v[30:31], v[42:43]")
    a("v_cvt_pk_bf16_f32 v28, v28, v29")
    a("v_cvt_pk_bf16_f32 v29, v30, v31")
    a(f"ds_write_b64 v46, v[28:29] offset:{L_HN}")
    a("v_dot2_f32_bf16 v32, v28, v38, 0")
    a("v_dot2_f32_bf16 v33, v28, v28, 0")
    a("v_dot2_f32_bf16 v32, v29, v38, v32")
    a("v_dot2_f32_bf16 v33, v29, v29, v33")
    a("s_nop 0")
    for st in ("quad_perm:[1,0,3,2]", "quad_perm:[2,3,0,1]", "row_ror:4", "row_ror:8"):
        a("s_nop 0")
        for r in (32, 33): a(f"v_add_f32_dpp {vr(r)}, {vr(r)}, {vr(r)} {st} {DPPF}")
    a(f"ds_write_b64 v52, v[32:33] offset:{L_FS}")
    a("s_waitcnt lgkmcnt(0)")
    a("s_barrier")
    order = [('a', 0), ('s', 0), ('s', 1), ('a', 1), ('s', 2), ('s', 3)] + [('a', k) for k in range(2, 8)]
    for kind, k in order:
        if kind == 'a': a(f"ds_read_b128 {vr(vA1+4*k,4)}, v49 offset:{L_HN + k*128}")
        else: a(f"ds_read_b128 {vr(12+4*k if k < 3 else 28,4)}, v53 offset:{L_FS + k*16}")
    keep = g.L; g.L = []
    a("v_pk_add_f32 v[12:13], v[12:13], v[14:15]"); a("v_pk_add_f32 v[16:17], v[16:17], v[18:19]")
    a("v_pk_add_f32 v[12:13], v[12:13], v[16:17]")
    a("v_pk_add_f32 v[20:21], v[20:21], v[22:23]"); a("v_pk_add_f32 v[28:29], v[28:29], v[30:31]")
    a("v_pk_add_f32 v[12:13], v[12:13], v[20:21]"); a("v_pk_add_f32 v[12:13], v[12:13], v[28:29]")
    a("v_mul_f32 v32, 0x3b000000, v12"); a("v_mul_f32 v33, 0x3b000000, v13")
    a("v_fma_f32 v33, -v32, v32, v33"); a("v_max_f32 v36, 0, v33")
    ln_scale(32, 36)
    work = [l.strip() for l in g.L]; g.L = keep
    plan = {1: 3, 2: 3, 3: 3, 4: 2, 5: 2, 6: 2}
    for k in range(8):
        a(f"s_waitcnt lgkmcnt({len(order) - 1 - order.index(('a', k))})")
        a(f"v_smfmac_f32_16x16x64_bf16 {vr(vAC,4)}, {vr(vA1+4*k,4)}, {vr(vW1+8*k,8)}, v50")
        for _ in range(plan.get(k, 0)): a(work.pop(0))
    stamp(7)
    nrest = len(work)
    for l in work: a(l)
    if nrest < 8: a(f"s_nop {7 - nrest}")
    a(f"v_add_f32 v28, {vr(vAC)}, {vr(vAC+1)}")
    a("v_fma_f32 v28, -v32, v45, v28")
    if mimic:
        a("v_mul_f32 v28, v28, v36")
        rnd(28, 28)
        a("v_add_f32 v28, v28, v44")
        rnd(28, 28)
    else:
        a("v_fma_f32 v28, v28, v36, v44")
    a("v_max_f32 v28, 0, v28")
    a("v_mul_f32 v28, v28, v28")
    a("v_cvt_pk_bf16_f32 v28, v28, v28")
    a(f"ds_write_b16 v47, v28 offset:{L_RR}")
    a(f"s_mov_b64 exec, {sr(sM0,2)}")
    a("s_waitcnt lgkmcnt(0)")
    a("s_barrier")
    for q in range(4):
        a(f"ds_read_b128 {vr(vA2+4*q,4)}, v48 offset:{L_RR}")
        if q < 3: a(f"s_lshl_b64 exec, {sr(sM0,2)}, {4*(q+1)}")
    a("s_mov_b64 exec, -1")
    a(f"s_cmp_eq_u32 {sr(sLOC)}, {LOCV}")
    for q in range(4):
        a(f"s_waitcnt lgkmcnt({3-q})")
        for aa in range(2):
            a(f"v_smfmac_f32_16x16x64_bf16 {vr(vAC+4+4*aa,4)}, {vr(vA2+4*q,4)}, {vr(vW2+8*(4*aa+q),8)}, v51")
    a("s_nop 5")
    a("s_cbranch_scc0 L_F2far")
    for pol in ("", "sc1"):
        if pol: g.lab("L_F2far")
        a(f"v_pk_add_f32 v[28:29], {vr(vAC+4,2)}, {vr(vAC+6,2)}")
        a(f"v_pk_add_f32 v[30:31], {vr(vAC+8,2)}, {vr(vAC+10,2)}")
        a(f"buffer_store_dwordx4 v[28:31], v8, {sr(RWS,4)}, {sr(sC0)} offen {pol}")
        stamp(8)
        if not pol: a("s_branch L_fin")

    g.lab("L_fin")
    if diag or agg or store_prof:
        import diagcode
        diagcode.emit(locals())
    g.lab("L_end")
    a("s_endpgm")

    nv = 252
    out = [HEADER.rstrip("\n"),
           f"; @launch grid=(256,1,1) block=(512,1,1) lds={L_END}",
           '.amdgcn_target "amdgcn-amd-amdhsa--gfx950"', ".text", f".globl {NAME}_kernel", ".p2align 8",
           f".type {NAME}_kernel,@function", f"{NAME}_kernel:"]
    out += g.L
    out += ['.section .rodata,"a"', ".p2align 6", f".amdhsa_kernel {NAME}_kernel",
            f"  .amdhsa_next_free_vgpr {nv}", "  .amdhsa_next_free_sgpr 100", f"  .amdhsa_accum_offset {nv}",
            "  .amdhsa_group_segment_fixed_size 0", "  .amdhsa_kernarg_size 104",
            "  .amdhsa_user_sgpr_count 2", "  .amdhsa_user_sgpr_kernarg_segment_ptr 1",
            "  .amdhsa_system_sgpr_workgroup_id_x 1", "  .amdhsa_float_denorm_mode_32 3",
            ".end_amdhsa_kernel"]
    return "\n".join(out) + "\n"

if __name__ == "__main__":
    kw = eval("dict(" + (sys.argv[2] if len(sys.argv) > 2 else "") + ")")
    open(sys.argv[1], "w").write(gen(**kw))
```

```python
import struct, sys
NAME = "sequential_preLN__mha_block_cached__dense_activation_squared_relu__decode"

def f2u(x): return struct.unpack("<I", struct.pack("<f", x))[0]
LOG2E = f2u(1.4426950408889634)
SCALE = f2u(128 ** -0.5)
EPS = f2u(1e-5)
NF = 22

WS_P = 0
WS_A = 0x20000
WS_Y = 0x24000
WS_R = 0x50000
WS_QF = 0x60000
WS_QD = 0x80000
WS_IN = 0x100000
WS_END = 0x200000
STAMP_OFF = 128 << 20

C_COMB, C_STAT, C_STG, C_ORED, C_Q, C_QP, C_TRIG, C_TRIG2 = [16*i for i in range(8)]
C_FW = 128
L_FW = 144
C_FB = 160
C_CK = 176
C_FA = 192
L_Q = 208
L_ST = L_Q + 256
L_FS = L_ST + 64
L_RR = L_FS + 128
L_O = 1024
L_HN = L_O + 2048
L_RED = L_HN + 2048
L_W = L_RED + 4096
W2P = 1056
L_W2 = L_W + 0x10000
L_END = L_W2 + 64 * W2P
SPIN_MAX = 400000

HEADER = open("cdna_kernels/" + NAME + ".s.ref").read().split("; Override launch")[0]

class G:
    def __init__(s): s.L = []
    def __call__(s, x): s.L.append("  " + x)
    def lab(s, x): s.L.append(x + ":")
    def c(s, x): s.L.append("  ; " + x)

def gen(prof=False, diag=None, agg=None, dbg='', local=True, forcefb=False,
        D=5, DH=6, DE=8, NE=10, N0=46, budget=30, ramp=(), XF=2, WO=5, WF=5, W2W=8, QTRY=32,
        NSTAT=112, NTRIG=126, NT2=127, kF=28, kO=5, kX=8,
        lin='1 2 24 c 1c4 408 204 800 20 18 80 40 4c 400 400 400 440 0', qmode=1, pfw2=False, sleepR=2, mimic=False, rpipe=False,
        w1pol='', qsleep=0, qprio=2, kvpol='nt', pfo='', pf1='', kN=0, ldq=False, flagop='or', eclr=True, fullst=True, fb=(85,92,14,3,7,12,8), fa=None, fg=None):
    g = G()
    a = g
    dbg = set(dbg.split())
    if agg: prof = True
    store_prof = prof
    if diag: prof = True
    lin = [int(t_, 16) & ~3 for t_ in lin.split()]
    def vr(r, n=1): return f"v{r}" if n == 1 else f"v[{r}:{r+n-1}]"
    def sr(r, n=1): return f"s{r}" if n == 1 else f"s[{r}:{r+n-1}]"
    DPPF = "row_mask:0xf bank_mask:0xf"
    sX, sK, sV, sWQ, sWO, sBX, sW1, sB1 = 4, 6, 8, 10, 12, 14, 16, 18
    sW2, sB2, sOUT, sDBG, sWS = 20, 22, 24, 26, 28
    sWAVE, sH, sB, sSUB, sW4 = 30, 31, 32, 34, 35
    sT0, sT1, sT2, sT3 = 36, 37, 38, 39
    R0, R1, R2, R3, RWS = 40, 44, 48, 52, 56
    sSO, sSPIN, sSLOT, sXCC = 60, 61, 62, 63
    sM0 = 64
    sC0, sC1 = 66, 67
    sCLS, sY, sLOC, sU3 = 68, 69, 70, 71
    sST = 72
    sU0, sU1, sU2, sROLE = 96, 97, 98, 99
    def stamp(i):
        if prof: a(f"s_memrealtime {sr(sST+2*i,2)}")
    def srd(R, base, off_sgpr, nrec):
        if off_sgpr is None:
            a(f"s_mov_b64 {sr(R,2)}, {sr(base,2)}")
        else:
            a(f"s_add_u32 {sr(R)}, {sr(base)}, {sr(off_sgpr)}"); a(f"s_addc_u32 {sr(R+1)}, {sr(base+1)}, 0")
        a(f"s_mov_b32 {sr(R+2)}, {nrec}"); a(f"s_mov_b32 {sr(R+3)}, 0x20000")
    def rnd(dst, src):
        a(f"v_cvt_pk_bf16_f32 {vr(dst)}, {vr(src)}, {vr(src)}")
        a(f"v_lshlrev_b32 {vr(dst)}, 16, {vr(dst)}")
    def allred(op, r, t, quad=True, s32=True):
        for st in (["quad_perm:[1,0,3,2]", "quad_perm:[2,3,0,1]"] if quad else []) + ["row_ror:4", "row_ror:8"]:
            a("s_nop 1")
            a(f"{op}_dpp {vr(r)}, {vr(r)}, {vr(r)} {st} {DPPF}")
        for sw in ("v_permlane16_swap_b32", "v_permlane32_swap_b32")[:2 if s32 else 1]:
            a(f"v_mov_b32 {vr(t)}, {vr(r)}")
            a("s_nop 1")
            a(f"{sw} {vr(r)}, {vr(t)}")
            a(f"{op} {vr(r)}, {vr(r)}, {vr(t)}")
    def sent_ops(regs, tmp):
        rs_ = list(regs); o = []
        if len(rs_) == 1: return [f"v_cmp_eq_u32 vcc, -1, {vr(rs_[0])}"]
        o.append(f"v_max3_u32 {vr(tmp)}, {vr(rs_[0])}, {vr(rs_[1])}, {vr(rs_[2])}"); rs_ = rs_[3:]
        while len(rs_) >= 2:
            o.append(f"v_max3_u32 {vr(tmp)}, {vr(tmp)}, {vr(rs_[0])}, {vr(rs_[1])}"); rs_ = rs_[2:]
        if rs_: o.append(f"v_max_u32 {vr(tmp)}, {vr(tmp)}, {vr(rs_[0])}")
        o.append(f"v_cmp_eq_u32 vcc, -1, {vr(tmp)}")
        return o
    def poll(label, loads, regs, tmp, spin=SPIN_MAX, fail=None, pre=(), spec=(), per=99, post=(), sleep=0, pipe=False):
        a(f"s_mov_b32 {sr(sSPIN)}, {spin}")
        if pipe:
            for l in loads: a(l)
        a(f"s_branch {label}")
        g.lab(label + "_r")
        a(f"s_sub_u32 {sr(sSPIN)}, {sr(sSPIN)}, 1")
        a(f"s_cbranch_scc1 {fail or label + '_x'}")
        if sleep: a(f"s_sleep {sleep}")
        a("s_mov_b64 exec, vcc")
        g.lab(label)
        for l in loads: a(l)
        a("s_mov_b64 exec, -1")
        for l in pre: a(l)
        a(f"s_waitcnt vmcnt({len(loads) if pipe else 0})")
        chk_ = sent_ops(regs, tmp); spec = list(spec)
        while spec:
            a(spec.pop(0))
            for _ in range(per):
                if chk_: a(chk_.pop(0))
        for l in chk_: a(l)
        for l in post: a(l)
        a(f"s_cbranch_vccnz {label}_r")
        g.lab(label + "_x")
    def flags_addr(v, t):
        a(f"v_lshrrev_b32 {vr(v)}, 1, {vr(vI)}")
        a(f"v_lshlrev_b32 {vr(v)}, 5, {vr(v)}")
        a(f"v_and_b32 {vr(t)}, 1, {vr(vI)}")
        a(f"v_lshl_add_u32 {vr(v)}, {vr(t)}, 2, {vr(v)}")
    def flags_eval(v, t):
        a(f"s_mov_b32 {sr(sT0)}, 0x80808080")
        a(f"s_mul_i32 {sr(sT1)}, {sr(sXCC)}, 0x01010101")
        a(f"v_and_b32 {vr(t)}, {sr(sT0)}, {vr(v)}")
        a(f"v_cmp_eq_u32 {sr(sT2,2)}, {sr(sT1)}, {vr(v)}")
        a(f"v_cmp_ne_u32 vcc, {sr(sT0)}, {vr(t)}")
        a(f"s_lshl_b32 {sr(sT0)}, {sr(sCLS)}, 1")
        a(f"s_lshr_b32 {sr(sLOC)}, {sr(sT2)}, {sr(sT0)}")
        a(f"s_and_b32 {sr(sLOC)}, {sr(sLOC)}, 3")
        a(f"s_or_b32 {sr(sLOC)}, {sr(sLOC)}, 4")
        a(f"s_and_b32 {sr(sU3)}, vcc_lo, 0xffff")
    def wait_flags(label, v):
        a(f"s_mov_b32 {sr(sSPIN)}, {SPIN_MAX}")
        flags_addr(v+1, v+2)
        g.lab(label)
        a(f"global_load_dword {vr(v)}, {vr(v+1)}, {sr(sDBG,2)} sc1")
        a("s_waitcnt vmcnt(0)")
        flags_eval(v, v+2)
        a(f"s_cbranch_scc0 {label}_x")
        a("s_sleep 16")
        a(f"s_sub_u32 {sr(sSPIN)}, {sr(sSPIN)}, 4")
        a(f"s_cbranch_scc0 {label}")
        g.lab(label + "_x")
    def lds_spin(label, off, vt, want, sleep=0):
        g.lab(label)
        a(f"ds_read_b32 {vr(vt)}, {vr(vZ)} offset:{off}")
        if sleep: a(f"s_sleep {sleep}")
        a("s_waitcnt lgkmcnt(0)")
        a(f"v_cmp_ne_u32 vcc, {want}, {vr(vt)}")
        a(f"s_cbranch_vccnz {label}")
    def get_loc(label):
        g.lab(label)
        a(f"ds_read_b32 v12, {vr(vZ)} offset:{C_FW}")
        a("s_sleep 4")
        a("s_waitcnt vmcnt(0) lgkmcnt(0)")
        a(f"v_readfirstlane_b32 {sr(sLOC)}, v12")
        a(f"s_cmp_eq_u32 {sr(sLOC)}, 0")
        a(f"s_cbranch_scc1 {label}")
    def make_masks(both):
        a(f"v_and_b32 v10, 1, {vr(vI)}")
        a("v_lshlrev_b32 v10, 4, v10")
        a("v_mov_b32 v9, 0xffff")
        a("v_lshlrev_b32 v10, v10, v9")
        if both: a(f"v_bfe_u32 v9, {vr(vI)}, 1, 2")
        else: a(f"v_lshrrev_b32 v9, 1, {vr(vI)}")
        for r in range(4):
            a(f"v_cmp_eq_u32 vcc, {r}, v9")
            a("s_nop 1")
            a(f"v_cndmask_b32 {vr(vMASK+r)}, 0, v10, vcc")
    def ln_scale(vmean, vvar):
        rnd(vvar, vvar)
        a(f"v_add_f32 {vr(vvar)}, {EPS:#x}, {vr(vvar)}")
        rnd(vvar, vvar)
        a(f"v_sqrt_f32 {vr(vvar)}, {vr(vvar)}")
        rnd(vmean, vmean)
        rnd(vvar, vvar)
        a(f"v_rcp_f32 {vr(vvar)}, {vr(vvar)}")
    LOCV = 7 if local else 99

    vLANE, vI, vG = 1, 2, 3
    vMASK = 4
    vZ, vONE = 26, 27
    a(f"s_load_dwordx16 {sr(4,16)}, s[0:1], 0")
    a(f"s_load_dwordx8 {sr(20,8)}, s[0:1], 64")
    a(f"s_load_dwordx2 {sr(28,2)}, s[0:1], 96")
    a(f"s_lshr_b32 {sr(sT0)}, s2, 8")
    a("s_cbranch_scc1 L_end")
    stamp(0)
    a(f"s_and_b32 {sr(sH)}, s2, 31")
    a(f"s_lshr_b32 {sr(sSUB)}, s2, 5")
    a(f"s_lshl3_add_u32 {sr(sSLOT)}, {sr(sH)}, {sr(sSUB)}")
    a(f"s_lshl_b32 {sr(sT0)}, {sr(sSLOT)}, 14")
    a("v_lshlrev_b32 v10, 4, v0")
    a(f"v_mov_b32 {vr(vZ)}, 0")
    a(f"ds_write_b32 v10, {vr(vZ)}")
    a(f"v_lshl_add_u32 v9, v0, 5, {sr(sT0)}")
    a(f"s_mul_i32 {sr(sT0)}, s2, 5504")
    a("v_min_u32 v11, 5488, v10")
    a(f"v_add_u32 v11, {sr(sT0)}, v11")
    a("s_waitcnt lgkmcnt(0)")
    npf = 0
    if 'nopf' not in dbg:
        a(f"global_load_dword v250, v9, {sr(sWO,2)} {pfo}")
        a(f"global_load_dword v251, v11, {sr(sW1,2)} {pf1}")
        if pfw2: a(f"global_load_dword v249, v11, {sr(sW2,2)}")
        npf = 3 if pfw2 else 2
    a("s_barrier")
    if prof:
        for i in range(1, 12): a(f"s_mov_b64 {sr(sST+2*i,2)}, 0")
    stamp(1)
    a(f"v_lshrrev_b32 {vr(vI)}, 6, v0")
    a(f"v_and_b32 {vr(vLANE)}, 63, v0")
    a(f"s_lshr_b32 {sr(sB)}, s2, 7")
    a(f"v_readfirstlane_b32 {sr(sWAVE)}, {vr(vI)}")
    a(f"v_and_b32 {vr(vI)}, 15, {vr(vLANE)}")
    a(f"v_lshrrev_b32 {vr(vG)}, 4, {vr(vLANE)}")
    a(f"v_lshlrev_b32 v8, 4, {vr(vLANE)}")
    a(f"s_and_b32 {sr(sW4)}, {sr(sWAVE)}, 3")
    srd(RWS, sWS, None, WS_END)
    a(f"s_cmp_lt_u32 {sr(sWAVE)}, 4")
    a("s_cbranch_scc1 L_stream")
    a(f"s_cmp_eq_u32 {sr(sWAVE)}, 4")
    if eclr:
        a("s_cbranch_scc1 L_q1")
        a(f"s_cmp_eq_u32 {sr(sWAVE)}, 6")
        a(f"s_cselect_b32 {sr(sT0)}, s2, 64")
        a(f"s_cmp_lt_u32 {sr(sT0)}, 64")
        a("s_cbranch_scc0 L_other")
        for k in range(4): a(f"v_mov_b32 {vr(16+k)}, -1")
        a(f"s_mul_i32 {sr(sT0)}, s2, 3712")
        for k in range(3): a(f"buffer_store_dwordx4 v[16:19], v8, {sr(RWS,4)}, {sr(sT0)} offen offset:{k*1024} sc1")
        a("s_mov_b32 exec_hi, 0xff")
        a(f"buffer_store_dwordx4 v[16:19], v8, {sr(RWS,4)}, {sr(sT0)} offen offset:3072 sc1")
        a("s_mov_b32 exec_hi, -1")
        a("s_branch L_other")
        g.lab("L_q1")
    else:
        a("s_cbranch_scc0 L_other")
    def common2():
        a(f"s_and_b32 {sr(sCLS)}, s2, 7")
        a(f"s_lshr_b32 {sr(sY)}, s2, 3")
        a(f"s_getreg_b32 {sr(sXCC)}, hwreg(HW_REG_XCC_ID, 0, 3)")
        a(f"s_or_b32 {sr(sXCC)}, {sr(sXCC)}, 0x80")
        a(f"v_mov_b32 {vr(vONE)}, 1")
        a(f"s_cmp_lt_u32 {sr(sY)}, {8+NF}")
        a(f"s_cselect_b32 {sr(sROLE)}, 2, 0")
        a(f"s_cmp_eq_u32 {sr(sCLS)}, {XF}")
        a(f"s_cselect_b32 {sr(sROLE)}, {sr(sROLE)}, 0")
        a(f"s_cmp_lt_u32 {sr(sY)}, 8")
        a(f"s_cselect_b32 {sr(sROLE)}, 1, {sr(sROLE)}")

    hW = 64
    if qprio: a(f"s_setprio {qprio}")
    if 'noq' in dbg:
        a("v_mov_b32 v34, 1")
        a(f"ds_write_b32 {vr(vZ)}, v34 offset:{C_Q}")
        a(f"ds_write_b32 {vr(vZ)}, v34 offset:{C_QP}")
        a("s_branch L_end")
    for k in range(4): a(f"v_mov_b32 {vr(16+k)}, -1")
    if qmode == 0:
        a(f"s_lshl_b32 {sr(sU0)}, {sr(sSLOT)}, 12")
        a(f"s_add_u32 {sr(sU0)}, {sr(sU0)}, {WS_IN}")
        for u in range(4):
            a(f"buffer_store_dwordx4 v[16:19], v8, {sr(RWS,4)}, {sr(sU0)} offen offset:{u*1024}")
    else:
        a(f"s_lshl_b32 {sr(sU0)}, {sr(sSLOT)}, 7")
        a(f"s_add_u32 {sr(sU0)}, {sr(sU0)}, {WS_QF}")
        a("s_mov_b64 exec, 0xff")
        a(f"buffer_store_dwordx4 v[16:19], v8, {sr(RWS,4)}, {sr(sU0)} offen")
        a("s_mov_b64 exec, -1")
    a(f"v_lshlrev_b32 v12, 5, {vr(vLANE)}")
    srd(R0, sX, None, 2048)
    a(f"buffer_load_dwordx4 v[20:23], v12, {sr(R0,4)}, 0 offen")
    a(f"buffer_load_dwordx4 v[128:131], v12, {sr(R0,4)}, 0 offen offset:16")
    a(f"v_lshlrev_b32 v11, 13, {vr(vG)}")
    a(f"v_lshl_add_u32 v11, {vr(vI)}, 4, v11")
    a(f"v_lshl_add_u32 v63, {vr(vI)}, 2, {vr(vG)}")
    a("v_lshlrev_b32 v63, 1, v63")
    a(f"s_lshl_b32 {sr(sT0)}, {sr(sH)}, 8")
    a(f"s_lshl_b32 {sr(sSO)}, {sr(sSUB)}, 19")
    srd(R1, sWQ, sT0, 511*8192 + 256)
    a(f"s_mov_b32 {sr(sU3)}, 0")
    g.lab("L_qload")
    a(f"s_lshr_b32 {sr(sT2)}, {sr(sSO)}, 12")
    a(f"buffer_load_ushort v14, v63, {sr(R0,4)}, {sr(sT2)} offen")
    a(f"buffer_load_ushort v15, v63, {sr(R0,4)}, {sr(sT2)} offen offset:1024")
    for t in range(16):
        a(f"buffer_load_dwordx4 {vr(hW+4*t,4)}, v11, {sr(R1,4)}, {sr(sSO)} offen nt")
        a(f"s_add_u32 {sr(sSO)}, {sr(sSO)}, 0x8000")
    a("s_branch L_q2")

    g.lab("L_stream")
    vOFF = 8
    vQ, vP, vU = 12, 16, 20
    vMX, vL, vT = 22, 23, 24
    vACC, vA, vF, vS, vRING = 28, 32, 40, 48, 64
    NR = N0
    assert vRING + 4*NR <= 249
    sPAT, sJW, sK0, sPA = sU0, sU1, sU2, sU3
    a(f"s_lshl_b32 {sr(sT0)}, {sr(sB)}, 5")
    a(f"s_add_u32 {sr(sT0)}, {sr(sT0)}, {sr(sH)}")
    a(f"s_lshl_b32 {sr(sT0)}, {sr(sT0)}, 20")
    srd(R0, sK, sT0, 1 << 20)
    first = True
    for (reg, bit), col in zip([(sW4, 0), (sW4, 1), (2, 5), (2, 6)] + [(2, k) for k in range(5)] + [(2, 7)], lin[8:18]):
        if col:
            a(f"s_bitcmp1_b32 {sr(reg)}, {bit}")
            a(f"s_cselect_b32 {sr(sJW if first else sT2)}, {col << 8:#x}, 0")
            if not first: a(f"s_xor_b32 {sr(sJW)}, {sr(sJW)}, {sr(sT2)}")
            first = False
    ops = [('pf', m) for m in range(npf)]
    landed = [-1]
    def wait_vm(n):
        a(f"s_waitcnt vmcnt({n})")
        landed[0] = max(landed[0], len(ops) - 1 - n)
    def slot(n): return vRING + (n % NR) * 4
    done = set()
    usepat = kF or kO or kX or kN
    kmax = max(kF, kX + kO, kN + kO)
    kmin = min(kF, kX, kN)
    def issue(n):
        assert n < NR or (n - NR) in done, n
        c_ = 0
        for k in range(6):
            if n >> k & 1: c_ ^= lin[2 + k]
        a(f"s_xor_b32 {sr(sSO)}, {sr(sJW)}, {c_ << 8:#x}")
        def cnt(d):
            k = c = 0
            for o in reversed(ops):
                if o[0] != 'x':
                    if k == d - 1: break
                    k += 1
                c += 1
            return c
        if fg and fg['ck'][0] + fg['lag'] < n < 128 - NE:
            st_ = max(c + fg['lag'] for c in fg['ck'] if c + fg['lag'] < n)
            en_ = min([c + fg['lag'] for c in fg['ck'] if c + fg['lag'] >= n] + [127 - NE])
            a(f"s_bitcmp1_b32 {sr(sPA)}, {min(31, (n - st_ - 1) if fg.get('front') else (en_ - n))}")
            lo = cnt(D)
            wait_vm(cnt(fg['win']))
            a(f"s_cbranch_scc1 L_w{n}")
            a(f"s_waitcnt vmcnt({lo})")
            g.lab(f"L_w{n}")
        elif fa and fa[1] < n <= fa[3]:
            a(f"s_bitcmp1_b32 {sr(sPA)}, {(fa[3] - n) & 31}")
            lo = cnt(D)
            wait_vm(cnt(fa[6]))
            a(f"s_cbranch_scc1 L_w{n}")
            a(f"s_waitcnt vmcnt({lo})")
            g.lab(f"L_w{n}")
        elif fb and fb[0] < n < 128 - NE:
            a(f"s_bitcmp1_b32 {sr(sPAT)}, {(127 - NE - n) & 31}")
            lo = cnt(D)
            wait_vm(cnt(fb[4]))
            a(f"s_cbranch_scc1 L_w{n}")
            a(f"s_waitcnt vmcnt({lo})")
            g.lab(f"L_w{n}")
        elif n < len(ramp) or not usepat or n < 6 or n >= 128 - NE or not kmin <= (n & 31) < kmax:
            d = ramp[n] if n < len(ramp) else (DE if n >= 128 - NE else (DH if n >= 6 and (n & 31) < kmin else D))
            if len(ops) >= d: wait_vm(cnt(d))
        else:
            a(f"s_bitcmp1_b32 {sr(sPAT)}, {n & 31}")
            lo = cnt(D)
            wait_vm(cnt(DH))
            a(f"s_cbranch_scc1 L_w{n}")
            a(f"s_waitcnt vmcnt({lo})")
            g.lab(f"L_w{n}")
        a(f"buffer_load_dwordx4 {vr(slot(n),4)}, {vr(vOFF)}, {sr(R0 if n < 64 else R1,4)}, {sr(sSO)} offen {kvpol}")
        ops.append(('ld', n))
    def has(key): return key in ops and ops.index(key) <= landed[0]
    chunks = []
    def k_item(n):
        def f():
            r = n & 3
            for k in range(4):
                a(f"v_dot2_f32_bf16 {vr(vP+r)}, {vr(slot(n)+k)}, {vr(vQ+k)}, {'0' if k == 0 else vr(vP+r)}")
        chunks.append((('ld', n), 5, f, n))
    def k_block(t):
        def f():
            s = vS + t
            a(f"v_add_f32_dpp {vr(vU)}, {vr(vP)}, {vr(vP)} row_ror:8 row_mask:0xf bank_mask:0x3")
            a(f"v_add_f32_dpp {vr(vU+1)}, {vr(vP+1)}, {vr(vP+1)} row_ror:8 row_mask:0xf bank_mask:0x3")
            a(f"v_add_f32_dpp {vr(vU)}, {vr(vP+2)}, {vr(vP+2)} row_ror:8 row_mask:0xf bank_mask:0xc")
            a(f"v_add_f32_dpp {vr(vU+1)}, {vr(vP+3)}, {vr(vP+3)} row_ror:8 row_mask:0xf bank_mask:0xc")
            a("s_nop 0")
            a(f"v_add_f32_dpp {vr(s)}, {vr(vU)}, {vr(vU)} row_shl:4 row_mask:0xf bank_mask:0x5")
            a(f"v_add_f32_dpp {vr(s)}, {vr(vU+1)}, {vr(vU+1)} row_shr:4 row_mask:0xf bank_mask:0xa")
            a("s_nop 1")
            a(f"v_add_f32_dpp {vr(s)}, {vr(s)}, {vr(s)} quad_perm:[1,0,3,2] {DPPF}")
            a("s_nop 1")
            a(f"v_add_f32_dpp {vr(s)}, {vr(s)}, {vr(s)} quad_perm:[2,3,0,1] {DPPF}")
            rnd(s, s)
            a(f"v_mul_f32 {vr(s)}, {sr(sC1)}, {vr(s)}")
            rnd(s, s)
            a(f"v_max_f32 {vr(vMX)}, {vr(vMX)}, {vr(s)}")
        chunks.append((None, 19, f, None))
    def v_item(n):
        def f():
            m = n - 64
            t, r = m >> 2, m & 3
            A = vA + 4 * (m & 1)
            for k in range(4):
                a(f"v_and_b32_dpp {vr(A+k)}, {vr(vS+t)}, {vr(vMASK+k)} row_newbcast:{4*r} {DPPF}")
            if has(('ld', n)):
                a("s_nop 1")
            else:
                a("s_nop 0")
                wait_vm(len(ops) - 1 - ops.index(('ld', n)))
            a(f"v_mfma_f32_16x16x32_bf16 {vr(vACC,4)}, {vr(A,4)}, {vr(slot(n),4)}, {'0' if m == 0 else vr(vACC,4)}")
        chunks.append((('ld', n), 8, f, n))
    for t in range(16):
        for r in range(4): k_item(4*t + r)
        k_block(t)
    def c_max():
        stamp(3)
        allred("v_max_f32", vMX, vT, quad=False)
        a(f"v_mul_f32 {vr(vMX)}, {sr(sC0)}, {vr(vMX)}")
        a(f"v_mov_b32 {vr(vL)}, 0")
    chunks.append((None, 24, c_max, None))
    for t0 in range(0, 16, 4):
        def f(t0=t0):
            rs_ = [vS + t for t in range(t0, t0 + 4)]
            for s in rs_: a(f"v_fma_f32 {vr(s)}, {vr(s)}, {sr(sC0)}, -{vr(vMX)}")
            for s in rs_: a(f"v_exp_f32 {vr(s)}, {vr(s)}")
            for s in rs_:
                a(f"v_add_f32 {vr(vL)}, {vr(vL)}, {vr(s)}")
                a(f"v_cvt_pk_bf16_f32 {vr(s)}, {vr(s)}, {vr(s)}")
        chunks.append((None, 20, f, None))
    sum_done = [False]
    def c_sum():
        allred("v_add_f32", vL, vT, quad=False)
        a(f"s_lshl_b32 {sr(sT0)}, {sr(sW4)}, 3")
        a(f"v_mov_b32 {vr(vT)}, {sr(sT0)}")
        a("s_mov_b64 exec, 1")
        a(f"ds_write_b64 {vr(vT)}, {vr(vMX,2)} offset:{L_ST}")
        a(f"ds_add_u32 {vr(vZ)}, {vr(vONE)} offset:{C_STAT}")
        a("s_mov_b64 exec, -1")
        sum_done[0] = True
    chunks.append((None, 28, c_sum, None))
    for n in range(64, 128): v_item(n)
    def x_fw():
        assert sum_done[0]
        g.lab("L_fw")
        a(f"ds_read_b32 v20, {vr(vZ)} offset:{C_FW}")
        a(f"ds_read_b128 {vr(vF,4)}, {vr(vZ)} offset:{L_FW}")
        a("s_waitcnt lgkmcnt(0)")
        a(f"v_readfirstlane_b32 {sr(sLOC)}, v20")
        a(f"s_cmp_eq_u32 {sr(sLOC)}, 0")
        a("s_cbranch_scc1 L_fw")
        stamp(4)
    def x_trig():
        a(f"ds_write_b32 {vr(vZ)}, {vr(vONE)} offset:{C_TRIG}")
    def x_trig2():
        a("s_mov_b64 exec, 1")
        a(f"ds_add_u32 {vr(vZ)}, {vr(vONE)} offset:{C_TRIG2}")
        a("s_mov_b64 exec, -1")
    extra = {NSTAT: x_fw, NTRIG: x_trig, NT2: x_trig2}
    if fb:
        def x_fb():
            a(f"ds_read_b32 v20, {vr(vZ)} offset:{C_FB}")
            a("s_waitcnt lgkmcnt(0)")
            a(f"v_readfirstlane_b32 {sr(sPAT)}, v20")
        extra[fb[0]] = x_fb; extra[fb[1]] = x_fb
    if fa or fg:
        def x_ck():
            a("s_mov_b64 exec, 1")
            a(f"ds_add_u32 {vr(vZ)}, {vr(vONE)} offset:{C_CK}")
            a("s_mov_b64 exec, -1")
        def x_fa():
            a(f"ds_read_b32 v25, {vr(vZ)} offset:{C_FA}")
            a("s_waitcnt lgkmcnt(0)")
            a(f"v_readfirstlane_b32 {sr(sPA)}, v25")
        if fa: extra[fa[0]] = x_ck; extra[fa[1]] = x_fa; extra[fa[2]] = x_fa
        else:
            for c in fg['ck']:
                for n_, f_ in ((c, x_ck), (c + fg['lag'], x_fa), (c + fg['lag'] + 4, x_fa)):
                    assert n_ not in extra, n_
                    extra[n_] = f_
    if 'nox' in dbg: extra = {}
    ci = [0]
    def run_chunks(bud, force=False):
        while ci[0] < len(chunks):
            needs, cost, fn, frees = chunks[ci[0]]
            if not force:
                if needs is not None and not has(needs): break
                if cost > bud: break
            if 'nocomp' not in dbg or force or fn is c_sum: fn()
            bud -= cost; ci[0] += 1
            if frees is not None: done.add(frees)
    for n in range(N0):
        issue(n)
        if n in extra: extra[n]()
        if n == 1:
            srd(R1, sV, sT0, 1 << 20)
            common2()
            a(f"s_lshl_b32 {sr(sSLOT)}, {sr(sSLOT)}, 9")
            a(f"s_mov_b32 {sr(sC0)}, {LOG2E:#x}")
            a(f"s_mov_b32 {sr(sC1)}, {SCALE:#x}")
            if usepat:
                a(f"s_cmp_eq_u32 {sr(sCLS)}, {XF}")
                a(f"s_cselect_b32 {sr(sK0)}, {kX}, {kN}")
                a(f"s_cmp_eq_u32 {sr(sROLE)}, 1")
                a(f"s_cselect_b32 {sr(sT1)}, {kO}, 0")
                a(f"s_add_u32 {sr(sK0)}, {sr(sK0)}, {sr(sT1)}")
                a(f"s_cmp_eq_u32 {sr(sROLE)}, 2")
                a(f"s_cselect_b32 {sr(sK0)}, {kF}, {sr(sK0)}")
                a(f"s_bfm_b64 {sr(sT2,2)}, {sr(sK0)}, 0")
                a(f"s_mov_b32 {sr(sPAT)}, {sr(sT2)}")
            make_masks(False)
            a(f"v_lshlrev_b32 v9, 4, {vr(vI)}")
            a("v_lshrrev_b32 v11, 1, v8")
            a(f"s_lshl_b32 {sr(sT1)}, {sr(sW4)}, 9")
            a(f"v_add_u32 v10, {sr(sT1)}, v8")
            a(f"v_mov_b32 {vr(vMX)}, 0xff800000")
    g.lab("L_qspin")
    a(f"ds_read_b32 {vr(vT)}, {vr(vZ)} offset:{C_Q}")
    a(f"ds_read_b128 {vr(vQ,4)}, v9 offset:{L_Q}")
    a("s_waitcnt lgkmcnt(0)")
    a(f"v_cmp_ne_u32 vcc, 1, {vr(vT)}")
    a("s_cbranch_vccnz L_qspin")
    stamp(2)
    run_chunks(5)
    for n in range(N0, 128):
        issue(n)
        if n in extra: extra[n]()
        if prof == 2 and n in (80, 96, 120): stamp({80: 7, 96: 8, 120: 9}[n])
        run_chunks(budget - (24 if n in extra else 0))
    run_chunks(0, force=True)
    a("s_mov_b32 exec_hi, 0")
    stamp(5)
    a(f"s_cmp_eq_u32 {sr(sLOC)}, {LOCV}")
    a(f"s_cselect_b32 {sr(sT1)}, 3, 7")
    a("s_nop 4")
    a(f"ds_write_b128 v10, {vr(vACC,4)} offset:{L_O}")
    a("s_mov_b32 exec_lo, 1")
    a(f"ds_add_rtn_u32 v25, {vr(vZ)}, {vr(vONE)} offset:{C_COMB}")
    a("s_mov_b32 exec_lo, -1")
    for w in range(4): a(f"ds_read_b128 {vr(48+4*w,4)}, v8 offset:{L_O + w*512}")
    a("s_waitcnt lgkmcnt(3)")
    a(f"v_readfirstlane_b32 {sr(sT0)}, v25")
    def sel(w): return "op_sel_hi:[1,0,1]" if w % 2 == 0 else "op_sel:[0,1,0]"
    for k in (0, 2): a(f"v_pk_mul_f32 {vr(48+k,2)}, {vr(48+k,2)}, {vr(vF,2)} op_sel_hi:[1,0]")
    for w in range(1, 4):
        a(f"s_waitcnt lgkmcnt({3-w})")
        for k in (0, 2): a(f"v_pk_fma_f32 {vr(48+k,2)}, {vr(48+4*w+k,2)}, {vr(vF+(w&2),2)}, {vr(48+k,2)} {sel(w)}")
    a(f"s_cmp_eq_u32 {sr(sT0)}, {sr(sT1)}")
    a("v_cvt_pk_bf16_f32 v48, v48, v49")
    a("v_cvt_pk_bf16_f32 v49, v50, v51")
    a("s_cbranch_scc0 L_pub_far")
    a(f"buffer_store_dwordx2 v[48:49], v11, {sr(RWS,4)}, {sr(sSLOT)} offen")
    stamp(6)
    g.lab("L_sdone")
    a(f"s_cmp_eq_u32 {sr(sROLE)}, 2")
    a("s_cbranch_scc0 L_fin")
    a("s_barrier")
    a("s_branch L_fin")
    g.lab("L_pub_far")
    a(f"s_cmp_eq_u32 {sr(sT0)}, 3")
    a("s_cbranch_scc0 L_sdone")
    a(f"buffer_store_dwordx2 v[48:49], v11, {sr(RWS,4)}, {sr(sSLOT)} offen sc1")
    stamp(6)
    a("s_branch L_sdone")

    g.lab("L_q2")
    a(f"s_cmp_eq_u32 {sr(sU3)}, 0")
    a("s_cbranch_scc0 L_tile")
    common2()
    make_masks(True)
    a(f"v_and_b32 v12, 31, {vr(vLANE)}")
    a("v_lshlrev_b32 v12, 4, v12")
    a(f"v_lshrrev_b32 v13, 5, {vr(vLANE)}")
    if qmode == 0:
        a("v_lshl_add_u32 v60, v13, 14, v12")
        a(f"s_lshl_b32 {sr(sU1)}, {sr(sH)}, 15")
        a(f"s_lshl_b32 {sr(sT0)}, {sr(sSUB)}, 9")
        a(f"s_add_u32 {sr(sU1)}, {sr(sU1)}, {sr(sT0)}")
        a(f"s_add_u32 {sr(sU1)}, {sr(sU1)}, {WS_IN}")
    else:
        a("v_lshl_add_u32 v60, v13, 10, v12")
        a(f"s_lshl_b32 {sr(sU1)}, {sr(sSLOT)}, 10")
        a(f"s_add_u32 {sr(sU1)}, {sr(sU1)}, {WS_QD}")
        a(f"s_lshl_b32 {sr(sT0)}, {sr(sH)}, 10")
        a(f"s_lshl2_add_u32 {sr(sT0)}, {sr(sSUB)}, {sr(sT0)}")
        a(f"s_add_u32 {sr(sT0)}, {sr(sT0)}, {WS_QF}")
        a(f"v_lshl_add_u32 v61, {vr(vLANE)}, 7, {sr(sT0)}")
        a(f"v_and_b32 v132, 7, {vr(vLANE)}")
        a("v_lshlrev_b32 v132, 2, v132")
        a(f"v_mov_b32 v133, {sr(sXCC)}")
    a(f"v_and_b32 v13, 1, {vr(vG)}")
    a("v_lshlrev_b32 v13, 3, v13")
    a(f"v_lshl_add_u32 v62, {vr(vI)}, 4, v13")
    for k in range(4): a(f"v_mov_b32 {vr(56+k)}, 0")
    a("s_waitcnt vmcnt(18)")
    for k in range(8):
        src = 20 + k if k < 4 else 124 + k
        a(f"v_and_b32 {vr(33+2*k)}, 0xffff0000, {vr(src)}")
        a(f"v_lshlrev_b32 {vr(32+2*k)}, 16, {vr(src)}")
    for k in range(4): a(f"v_pk_add_f32 {vr(48+2*k,2)}, {vr(32+4*k,2)}, {vr(34+4*k,2)}")
    a("v_pk_add_f32 v[48:49], v[48:49], v[50:51]")
    a("v_pk_add_f32 v[52:53], v[52:53], v[54:55]")
    a("v_pk_add_f32 v[48:49], v[48:49], v[52:53]")
    a("v_add_f32 v28, v48, v49")
    allred("v_add_f32", 28, 29, s32=False)
    a("v_mul_f32 v28, 0x3b000000, v28")
    for k in range(8): a(f"v_pk_add_f32 {vr(32+2*k,2)}, {vr(32+2*k,2)}, v[28:29] op_sel_hi:[1,0] neg_lo:[0,1] neg_hi:[0,1]")
    a("v_pk_mul_f32 v[30:31], v[32:33], v[32:33]")
    for k in range(1, 8): a(f"v_pk_fma_f32 v[30:31], {vr(32+2*k,2)}, {vr(32+2*k,2)}, v[30:31]")
    a("v_add_f32 v30, v30, v31")
    allred("v_add_f32", 30, 29, s32=False)
    a("v_mul_f32 v30, 0x3b000000, v30")
    ln_scale(28, 30)
    a("v_mov_b32 v29, v28")
    a("v_mov_b32 v31, v30")
    a("s_nop 1")
    a("v_permlane32_swap_b32 v28, v29")
    a("v_permlane32_swap_b32 v30, v31")
    g.lab("L_tile")
    a("s_waitcnt vmcnt(16)")
    a("v_lshlrev_b32 v14, 16, v14")
    a("v_lshlrev_b32 v15, 16, v15")
    a("v_sub_f32 v14, v14, v28")
    a("v_sub_f32 v15, v15, v29")
    rnd(14, 14); rnd(15, 15)
    a("v_mul_f32 v14, v14, v30")
    a("v_mul_f32 v15, v15, v31")
    a("v_cvt_pk_bf16_f32 v14, v14, v14")
    a("v_cvt_pk_bf16_f32 v15, v15, v15")
    a("s_nop 0")
    for t in range(16):
        a(f"v_mov_b32_dpp {vr(40+t)}, v14 row_newbcast:{t} row_mask:0xf bank_mask:0x3")
        a(f"v_mov_b32_dpp {vr(40+t)}, v15 row_newbcast:{t} row_mask:0xf bank_mask:0xc")
    for t in range(16):
        A = 32 + 4 * (t & 1)
        for k in range(4): a(f"v_and_b32 {vr(A+k)}, {vr(40+t)}, {vr(vMASK+k)}")
        a(f"s_waitcnt vmcnt({15-t})")
        a("s_nop 0")
        a(f"v_mfma_f32_16x16x32_bf16 v[56:59], {vr(A,4)}, {vr(hW+4*t,4)}, v[56:59]")
    a(f"s_cmp_eq_u32 {sr(sU3)}, 0")
    a(f"ds_write_b32 {vr(vZ)}, {vr(vONE)} offset:{C_QP}")
    a("s_nop 4")
    a("s_cbranch_scc0 L_qmore")
    stamp(3)
    if 'noxch' in dbg: a("s_branch L_qput")
    if qmode == 0:
        if not forcefb:
            for jj in range(4):
                a(f"buffer_store_dwordx4 v[56:59], v60, {sr(RWS,4)}, {sr(sU1)} offen")
                if jj < 3: a(f"s_add_u32 {sr(sU1)}, {sr(sU1)}, 4096")
        poll("L_pollQ", [f"buffer_load_dwordx4 {vr(32+4*u,4)}, v8, {sr(RWS,4)}, {sr(sU0)} offen offset:{u*1024} sc1" for u in range(4)],
             range(32, 48), 48, spin=QTRY, fail="L_qfail")
    else:
        a(f"buffer_store_dwordx4 v[56:59], v8, {sr(RWS,4)}, {sr(sU1)} offen")
        a(f"s_lshl_b32 {sr(sT0)}, {sr(sH)}, 13")
        a(f"s_lshl_b32 {sr(sT1)}, {sr(sB)}, 9")
        a(f"s_add_u32 {sr(sT0)}, {sr(sT0)}, {sr(sT1)}")
        a(f"s_add_u32 {sr(sT0)}, {sr(sT0)}, {WS_QD}")
        a(f"s_add_u32 {sr(sT1)}, {sr(sT0)}, 4096")
        a("s_mov_b64 exec, 0xff")
        a("s_waitcnt vmcnt(0)")
        if not forcefb: a(f"buffer_store_dword v133, v61, {sr(RWS,4)}, 0 offen")
        a("s_mov_b64 exec, -1")
        if qsleep: a(f"s_sleep {qsleep}")
        poll("L_pollQ", [f"buffer_load_dword v32, v132, {sr(RWS,4)}, {sr(sU0)} offen sc1"], [32], 33, spin=QTRY, fail="L_qfail")
        a("v_cmp_ne_u32 vcc, v32, v133")
        a("s_cbranch_vccnz L_qfail")
        for u in range(4):
            a(f"buffer_load_dwordx4 {vr(32+4*u,4)}, v60, {sr(RWS,4)}, {sr(sT0 if u < 2 else sT1)} offen offset:{(u&1)*2048} sc1")
        a("s_waitcnt vmcnt(0)")
    a("v_pk_add_f32 v[32:33], v[32:33], v[36:37]"); a("v_pk_add_f32 v[34:35], v[34:35], v[38:39]")
    a("v_pk_add_f32 v[40:41], v[40:41], v[44:45]"); a("v_pk_add_f32 v[42:43], v[42:43], v[46:47]")
    a("v_pk_add_f32 v[32:33], v[32:33], v[40:41]"); a("v_pk_add_f32 v[34:35], v[34:35], v[42:43]")
    for k in range(4): a(f"v_mov_b32 {vr(36+k)}, {vr(32+k)}")
    for k in range(4): a(f"v_permlane32_swap_b32 {vr(32+k)}, {vr(36+k)}")
    a("v_pk_add_f32 v[56:57], v[32:33], v[36:37]"); a("v_pk_add_f32 v[58:59], v[34:35], v[38:39]")
    g.lab("L_qput")
    a("v_cvt_pk_bf16_f32 v32, v56, v57")
    a("v_cvt_pk_bf16_f32 v33, v58, v59")
    a(f"ds_write_b64 v62, v[32:33] offset:{L_Q}")
    a(f"ds_write_b32 {vr(vZ)}, {vr(vONE)} offset:{C_Q}")
    a("s_mov_b64 exec, -1")
    stamp(2)
    a("s_setprio 0")
    a(f"s_lshl_b32 {sr(sSLOT)}, {sr(sSLOT)}, 9")
    if fb:
        wait_flags("L_cnt", 12)
        a(f"s_and_b32 {sr(sT0)}, {sr(sY)}, 7")
        a(f"s_lshl_b32 {sr(sT0)}, {sr(sT0)}, 9")
        a("v_mov_b32 v25, 1")
        lds_spin("L_waitst", C_STAT, 12, 4, sleep=2)
        a("s_mov_b64 exec, 1")
        a(f"buffer_atomic_add v25, {vr(vZ)}, {sr(RWS,4)}, {sr(sT0)} offen offset:384 sc0 sc1")
        a("s_mov_b64 exec, -1")
    else:
        lds_spin("L_waitst", C_STAT, 12, 4, sleep=8)
        wait_flags("L_cnt", 12)
    a(f"ds_read_b128 v[12:15], {vr(vZ)} offset:{L_ST}")
    a(f"ds_read_b128 v[16:19], {vr(vZ)} offset:{L_ST+16}")
    a("s_waitcnt lgkmcnt(0)")
    a("v_max3_f32 v20, v12, v14, v16")
    a("v_max_f32 v20, v20, v18")
    for w in range(4): a(f"v_sub_f32 {vr(28+w)}, {vr(12+2*w)}, v20")
    for w in range(4): a(f"v_exp_f32 {vr(28+w)}, {vr(28+w)}")
    a(f"v_mov_b32 v12, {sr(sLOC)}")
    a("v_mul_f32 v21, v28, v13")
    for w in range(1, 4): a(f"v_fmac_f32 v21, {vr(28+w)}, {vr(13+2*w)}")
    a("v_rcp_f32 v13, v21")
    a("v_lshrrev_b32 v14, 1, v8")
    a(f"s_mov_b64 exec, {0xffff if fullst else 1}")
    a(f"s_cmp_eq_u32 {sr(sLOC)}, {LOCV}")
    a("s_cbranch_scc1 L_st_loc")
    a(f"buffer_store_dwordx2 v[20:21], v14, {sr(RWS,4)}, {sr(sSLOT)} offen offset:256 sc1")
    a("s_branch L_st_done")
    g.lab("L_st_loc")
    a(f"buffer_store_dwordx2 v[20:21], v14, {sr(RWS,4)}, {sr(sSLOT)} offen offset:256")
    g.lab("L_st_done")
    for w in range(4): a(f"v_mul_f32 {vr(28+w)}, {vr(28+w)}, v13")
    a(f"ds_write_b128 {vr(vZ)}, v[28:31] offset:{L_FW}")
    a(f"ds_write_b32 {vr(vZ)}, v12 offset:{C_FW}")
    if fb:
        a(f"s_cmp_eq_u32 {sr(sCLS)}, {XF}")
        a(f"s_cselect_b32 {sr(sT1)}, {fb[6]}, 0")
        a(f"s_cmp_eq_u32 {sr(sROLE)}, 2")
        a(f"s_cselect_b32 {sr(sT1)}, {fb[5]}, {sr(sT1)}")
        a("s_waitcnt vmcnt(1)")
        a(f"v_readfirstlane_b32 {sr(sT0)}, v25")
        a(f"s_sub_i32 {sr(sT0)}, {sr(sT0)}, {fb[2] - 1}")
        a(f"s_max_i32 {sr(sT0)}, {sr(sT0)}, 0")
        a(f"s_mul_i32 {sr(sT0)}, {sr(sT0)}, {sr(sT0)}")
        a(f"s_lshr_b32 {sr(sT0)}, {sr(sT0)}, {fb[3]}")
        a(f"s_add_u32 {sr(sT0)}, {sr(sT0)}, {sr(sT1)}")
        a(f"s_min_u32 {sr(sT0)}, {sr(sT0)}, 32")
        a(f"s_bfm_b64 {sr(sT2,2)}, {sr(sT0)}, 0")
        a(f"v_mov_b32 v12, {sr(sT2)}")
        a(f"ds_write_b32 {vr(vZ)}, v12 offset:{C_FB}")
    a("s_mov_b64 exec, -1")
    a(f"s_cmp_eq_u32 {sr(sROLE)}, 0")
    a("s_cbranch_scc1 L_end" if prof == 2 else "s_cbranch_scc1 L_fin")
    a("s_branch L_role")
    g.lab("L_qfail")
    a(f"s_mov_b32 {sr(sU3)}, 8")
    g.lab("L_qmore")
    a(f"s_and_b32 {sr(sSO)}, {sr(sSO)}, 0x3fffff")
    a(f"s_sub_u32 {sr(sU3)}, {sr(sU3)}, 1")
    a(f"s_cmp_eq_u32 {sr(sU3)}, 0")
    a("s_cbranch_scc0 L_qload")
    a(f"s_lshl_b32 {sr(sT0)}, {sr(sB)}, 5")
    a(f"s_bfm_b64 exec, 32, {sr(sT0)}")
    a("s_branch L_qput")

    g.lab("L_other")
    common2()
    if fa or fg:
        a(f"s_cmp_eq_u32 {sr(sW4)}, 3")
        a("s_cbranch_scc1 L_w7s")
    a(f"s_cmp_eq_u32 {sr(sROLE)}, 0")
    a("s_cbranch_scc1 L_end" if prof == 2 else "s_cbranch_scc1 L_fin")
    a(f"s_cmp_eq_u32 {sr(sW4)}, 3")
    a("s_cbranch_scc0 L_nocp")
    g.lab("L_w7s")
    a(f"s_cmp_lt_u32 {sr(sY)}, 3")
    a("s_cbranch_scc0 L_nocp2")
    a(f"s_getpc_b64 {sr(sT2,2)}")
    g.lab("L_pc")
    a(f"s_sub_u32 {sr(sT2)}, {sr(sT2)}, L_pc-{NAME}_kernel")
    a(f"s_subb_u32 {sr(sT3)}, {sr(sT3)}, 0")
    a(f"s_lshl_b32 {sr(sT0)}, {sr(sY)}, 13")
    a(f"v_lshl_add_u32 v28, {vr(vLANE)}, 7, {sr(sT0)}")
    a(f"v_min_u32 v28, L_end-{NAME}_kernel, v28")
    a(f"global_load_dword v248, v28, {sr(sT2,2)}")
    g.lab("L_nocp2")
    if fg:
        lds_spin("L_fa0", C_QP, 12, 1, sleep=8)
        a("s_sleep 16")
        wait_flags("L_cnt7", 12)
        a(f"s_and_b32 {sr(sU0)}, {sr(sY)}, 7")
        a(f"s_lshl_b32 {sr(sU0)}, {sr(sU0)}, 9")
        a(f"s_cmp_eq_u32 {sr(sROLE)}, 1")
        a(f"s_cselect_b32 {sr(sT1)}, {fg['kO']}, 0")
        a(f"s_cmp_eq_u32 {sr(sROLE)}, 2")
        a(f"s_cselect_b32 {sr(sT1)}, {fg['kF']}, {sr(sT1)}")
        a(f"s_mov_b32 {sr(sU1)}, 4")
        a("s_mov_b64 exec, 1")
        g.lab("L_fg")
        a(f"ds_read_b32 v12, {vr(vZ)} offset:{C_CK}")
        a("s_sleep 2")
        a("v_mov_b32 v25, 1")
        a("s_waitcnt lgkmcnt(0)")
        a(f"v_cmp_gt_u32 vcc, {sr(sU1)}, v12")
        a("s_cbranch_vccnz L_fg")
        a(f"buffer_atomic_add v25, {vr(vZ)}, {sr(RWS,4)}, {sr(sU0)} offen offset:384 sc0 sc1")
        a(f"s_add_u32 {sr(sU0)}, {sr(sU0)}, 4096")
        a("s_waitcnt vmcnt(0)")
        a(f"v_readfirstlane_b32 {sr(sT0)}, v25")
        a(f"s_sub_i32 {sr(sT0)}, {sr(sT0)}, {fg['r0'] - 1}")
        a(f"s_max_i32 {sr(sT0)}, {sr(sT0)}, 0")
        a(f"s_mul_i32 {sr(sT0)}, {sr(sT0)}, {sr(sT0)}")
        a(f"s_lshr_b32 {sr(sT0)}, {sr(sT0)}, {fg['sh']}")
        a(f"s_add_u32 {sr(sT0)}, {sr(sT0)}, {sr(sT1)}")
        a(f"s_min_u32 {sr(sT0)}, {sr(sT0)}, 32")
        a(f"s_bfm_b64 {sr(sT2,2)}, {sr(sT0)}, 0")
        a(f"v_mov_b32 v12, {sr(sT2)}")
        a(f"ds_write_b32 {vr(vZ)}, v12 offset:{C_FA}")
        a(f"s_add_u32 {sr(sU1)}, {sr(sU1)}, 4")
        a(f"s_cmp_le_u32 {sr(sU1)}, {4*len(fg['ck'])}")
        a("s_cbranch_scc1 L_fg")
        a("s_mov_b64 exec, -1")
        a(f"s_cmp_eq_u32 {sr(sROLE)}, 0")
        a("s_cbranch_scc1 L_end" if prof == 2 else "s_cbranch_scc1 L_fin")
    if fa:
        lds_spin("L_fa0", C_QP, 12, 1, sleep=8)
        a("s_sleep 24")
        wait_flags("L_cnt7", 12)
        a(f"s_and_b32 {sr(sT0)}, {sr(sY)}, 7")
        a(f"s_lshl_b32 {sr(sT0)}, {sr(sT0)}, 9")
        a(f"s_add_u32 {sr(sT0)}, {sr(sT0)}, 4096")
        a("v_mov_b32 v25, 1")
        lds_spin("L_fa1", C_CK, 12, 4, sleep=2)
        a("s_mov_b64 exec, 1")
        a(f"buffer_atomic_add v25, {vr(vZ)}, {sr(RWS,4)}, {sr(sT0)} offen offset:384 sc0 sc1")
        a(f"s_cmp_eq_u32 {sr(sROLE)}, 1")
        a(f"s_cselect_b32 {sr(sT1)}, {fa[8]}, 0")
        a(f"s_cmp_eq_u32 {sr(sROLE)}, 2")
        a(f"s_cselect_b32 {sr(sT1)}, {fa[7]}, {sr(sT1)}")
        a("s_waitcnt vmcnt(0)")
        a(f"v_readfirstlane_b32 {sr(sT0)}, v25")
        a(f"s_sub_i32 {sr(sT0)}, {sr(sT0)}, {fa[4] - 1}")
        a(f"s_max_i32 {sr(sT0)}, {sr(sT0)}, 0")
        a(f"s_mul_i32 {sr(sT0)}, {sr(sT0)}, {sr(sT0)}")
        a(f"s_lshr_b32 {sr(sT0)}, {sr(sT0)}, {fa[5]}")
        a(f"s_add_u32 {sr(sT0)}, {sr(sT0)}, {sr(sT1)}")
        a(f"s_min_u32 {sr(sT0)}, {sr(sT0)}, 32")
        a(f"s_bfm_b64 {sr(sT2,2)}, {sr(sT0)}, 0")
        a(f"v_mov_b32 v12, {sr(sT2)}")
        a(f"ds_write_b32 {vr(vZ)}, v12 offset:{C_FA}")
        a("s_mov_b64 exec, -1")
        a(f"s_cmp_eq_u32 {sr(sROLE)}, 0")
        a("s_cbranch_scc1 L_end" if prof == 2 else "s_cbranch_scc1 L_fin")
    g.lab("L_nocp")
    srd(R0, sX, None, 2048)
    make_masks(True)
    if 'noclear' in dbg: a("s_branch L_role")
    a(f"s_cmp_eq_u32 {sr(sW4)}, 2")
    a("s_cbranch_scc0 L_role")
    g.lab("L_sign")
    a(f"s_lshl_b32 {sr(sT0)}, {sr(sCLS)}, 5")
    a(f"s_add_u32 {sr(sT0)}, {sr(sT0)}, {sr(sY)}")
    a(f"v_mov_b32 v12, {sr(sT0)}")
    a(f"v_mov_b32 v13, {sr(sXCC)}")
    a("s_waitcnt vmcnt(0)")
    a("s_mov_b64 exec, 1")
    if 'noflag' not in dbg:
        if flagop == 'byte': a(f"global_store_byte v12, v13, {sr(sDBG,2)} sc1")
        else:
            a("v_and_b32 v14, 3, v12")
            a("v_lshlrev_b32 v14, 3, v14")
            a("v_lshlrev_b32 v13, v14, v13")
            a("v_and_b32 v12, -4, v12")
            a(f"global_atomic_or v12, v13, {sr(sDBG,2)} sc1")
    a("s_mov_b64 exec, -1")
    g.lab("L_role")
    if 'norole' in dbg: a("s_branch L_fin")
    a("s_setprio 1")
    lds_spin("L_ldw", C_Q if ldq else C_QP, 12, 1, sleep=4)
    a(f"s_cmp_eq_u32 {sr(sROLE)}, 2")
    a("s_cbranch_scc1 L_roleF")
    def staged():
        a("s_waitcnt vmcnt(0)")
        a(f"ds_write_b32 {vr(vZ)}, {vr(vONE)} offset:{C_STG}")
        stamp(3)

    vB = 64
    a(f"s_lshl_b32 {sr(sU1)}, {sr(sY)}, 7")
    a(f"s_cmp_eq_u32 {sr(sW4)}, 1")
    a("s_cbranch_scc0 L_Oset")
    a(f"s_lshl_b32 {sr(sT0)}, {sr(sCLS)}, 17")
    a(f"s_add_u32 {sr(sT0)}, {sr(sT0)}, {sr(sU1)}")
    srd(R2, sWO, sT0, 3*(1 << 20) + 127*1024 + 128)
    a(f"v_lshrrev_b32 v12, 3, {vr(vLANE)}")
    a(f"v_and_b32 v13, 7, {vr(vLANE)}")
    a("v_lshlrev_b32 v12, 10, v12")
    a("v_lshl_add_u32 v12, v13, 4, v12")
    a(f"s_mov_b32 {sr(sSO)}, 0")
    a(f"s_mov_b32 {sr(sT3)}, {L_W}")
    g.lab("L_ldO")
    a(f"s_mov_b32 m0, {sr(sT3)}")
    a(f"s_waitcnt vmcnt({WO-1})")
    if 'noO' not in dbg: a(f"buffer_load_dwordx4 v12, {sr(R2,4)}, {sr(sSO)} offen nt lds")
    a(f"s_add_u32 {sr(sSO)}, {sr(sSO)}, 0x2000")
    a(f"s_bitcmp1_b32 {sr(sSO)}, 17")
    a(f"s_cselect_b32 {sr(sT0)}, {(1 << 20) - (1 << 17)}, 0")
    a(f"s_add_u32 {sr(sSO)}, {sr(sSO)}, {sr(sT0)}")
    a(f"s_add_u32 {sr(sT3)}, {sr(sT3)}, 1024")
    a(f"s_cmp_lt_u32 {sr(sT3)}, {L_W + 65536}")
    a("s_cbranch_scc1 L_ldO")
    staged()
    g.lab("L_Oset")
    if 'ldonly' in dbg: a("s_branch L_fin")
    a(f"s_lshl3_add_u32 {sr(sU0)}, {sr(sW4)}, {sr(sCLS)}")
    a(f"s_lshl_b32 {sr(sU0)}, {sr(sU0)}, 12")
    a(f"v_bfe_u32 v13, {vr(vLANE)}, 3, 1")
    a(f"v_bfe_u32 v12, {vr(vLANE)}, 2, 1")
    a("v_lshl_add_u32 v13, v13, 4, v12")
    a(f"v_lshrrev_b32 v23, 1, {vr(vG)}")
    a("v_lshl_add_u32 v13, v23, 5, v13")
    a(f"v_and_b32 v24, 1, {vr(vG)}")
    a("v_lshl_add_u32 v13, v24, 3, v13")
    a(f"v_and_b32 v12, 3, {vr(vLANE)}")
    a("v_lshlrev_b32 v12, 3, v12")
    a("v_lshl_add_u32 v13, v13, 7, v12")
    a(f"s_lshl_b32 {sr(sT3)}, {sr(sW4)}, 14")
    a(f"v_add_u32 v13, {sr(sT3)}, v13")
    lds_spin("L_stgO", C_STG, 12, 1, sleep=4)
    for nu in range(4):
        for u in range(2):
            for p in range(4):
                row = 64*(p >> 1) + 4*u + 2*(p & 1)
                a(f"ds_read_b64_tr_b16 {vr(vB+16*nu+8*u+2*p,2)}, v13 offset:{L_W + row*128 + nu*32}")
        a("s_waitcnt lgkmcnt(0)")
    a(f"v_lshrrev_b32 v10, 1, {vr(vI)}")
    a("v_lshlrev_b32 v10, 9, v10")
    a(f"v_and_b32 v11, 1, {vr(vI)}")
    a("v_lshl_add_u32 v10, v11, 4, v10")
    a(f"v_lshl_add_u32 v10, {vr(vG)}, 5, v10")
    a("v_mul_u32_u24 v22, 0xaaaa, v11")
    a("v_add_u32 v22, 0x4444, v22")
    a(f"s_lshl_b32 {sr(sT2)}, {sr(sW4)}, 10")
    a(f"v_add_u32 v11, {sr(sT2)}, v8")
    a("v_lshlrev_b32 v21, 10, v23")
    a(f"v_and_b32 v12, 31, {vr(vLANE)}")
    a("v_lshl_add_u32 v21, v12, 2, v21")
    a("v_lshlrev_b32 v23, 11, v23")
    a(f"s_lshl_b32 {sr(sT2)}, {sr(sCLS)}, 11")
    a(f"s_add_u32 {sr(sT2)}, {sr(sT2)}, {sr(sU1)}")
    a(f"s_add_u32 {sr(sC0)}, {sr(sT2)}, {WS_A}")
    get_loc("L_locO")
    a(f"s_mov_b32 {sr(sU2)}, 3")
    a(f"s_cmp_eq_u32 {sr(sCLS)}, {XF}")
    a("s_cbranch_scc0 L_noR")
    vRX, vRB, vRO, vRA, vRY = 128, 129, 130, 131, 132
    a(f"v_and_b32 v14, 7, {vr(vLANE)}")
    a("v_lshlrev_b32 v13, 2, v14")
    a(f"global_load_dword v15, v13, {sr(sDBG,2)} offset:{XF*32} sc1")
    a(f"s_mul_i32 {sr(sT3)}, {sr(sXCC)}, 0x01010101")
    a(f"s_lshl2_add_u32 {sr(sT0)}, {sr(sY)}, {sr(sW4)}")
    a(f"s_lshl_b32 {sr(sT1)}, {sr(sT0)}, 7")
    a(f"s_add_u32 {sr(sT1)}, {sr(sT1)}, {WS_Y}")
    srd(R3, sWS, sT1, (NF-1)*4096 + 128)
    a(f"s_lshr_b32 {sr(sT0)}, {sr(sY)}, 1")
    a(f"s_lshl_b32 {sr(sT0)}, {sr(sT0)}, 8")
    a(f"s_and_b32 {sr(sC1)}, {sr(sY)}, 1")
    a(f"s_lshl_b32 {sr(sT1)}, {sr(sC1)}, 6")
    a(f"s_add_u32 {sr(sT1)}, {sr(sT1)}, {sr(sT0)}")
    a(f"s_lshl4_add_u32 {sr(sT1)}, {sr(sW4)}, {sr(sT1)}")
    a(f"v_bfe_u32 v12, {vr(vLANE)}, 4, 1")
    a("v_lshlrev_b32 v12, 7, v12")
    a("v_lshl_add_u32 v12, v14, 1, v12")
    a(f"v_add_u32 v12, {sr(sT1)}, v12")
    a(f"v_lshrrev_b32 v13, 5, {vr(vLANE)}")
    a(f"v_lshl_add_u32 {vr(vRO)}, v13, 10, v12")
    srd(R2, sB2, None, 1024)
    srd(R1, sOUT, None, 2048)
    a(f"buffer_load_ushort {vr(vRX)}, {vr(vRO)}, {sr(R0,4)}, 0 offen")
    a(f"buffer_load_ushort {vr(vRB)}, v12, {sr(R2,4)}, 0 offen")
    a(f"buffer_load_ushort v16, {vr(vRO)}, {sr(R1,4)}, 0 offen")
    a(f"v_lshrrev_b32 v12, 3, {vr(vLANE)}")
    a("v_lshlrev_b32 v13, 11, v12")
    a("v_lshl_add_u32 v13, v14, 2, v13")
    a(f"s_lshl_b32 {sr(sT2)}, {sr(sW4)}, 5")
    a(f"s_add_u32 {sr(sT0)}, {sr(sT0)}, {sr(sT2)}")
    a(f"s_add_u32 {sr(sT0)}, {sr(sT0)}, {WS_A}")
    a(f"v_add_u32 {vr(vRA)}, {sr(sT0)}, v13")
    a(f"s_lshl_b32 {sr(sC1)}, {sr(sC1)}, 4")
    a(f"s_sub_u32 {sr(sC1)}, 16, {sr(sC1)}")
    a("v_lshlrev_b32 v12, 12, v12")
    a(f"v_lshl_add_u32 {vr(vRY)}, v14, 4, v12")
    for u in range(1, 3): a(f"v_add_u32 {vr(vRY+u)}, {u*0x8000}, {vr(vRY)}")
    a("v_cmp_eq_u32 vcc, 7, v14")
    a("v_mov_b32 v13, 16")
    a("s_waitcnt vmcnt(0)")
    a("v_cndmask_b32 v13, 0, v13, vcc")
    a(f"v_xor_b32 v15, {sr(sT3)}, v15")
    a("v_lshlrev_b32 v15, v13, v15")
    a("v_cmp_ne_u32 vcc, 0, v15")
    a(f"v_lshlrev_b32 {vr(vRX)}, 16, {vr(vRX)}")
    a(f"v_lshlrev_b32 {vr(vRB)}, 16, {vr(vRB)}")
    a("s_cbranch_vccnz L_noR")
    if local: a(f"s_mov_b32 {sr(sU2)}, 7")
    g.lab("L_noR")
    poll("L_pollOs", [f"buffer_load_dwordx2 {vr(12+2*r,2)}, v23, {sr(RWS,4)}, {sr(sU0)} offen offset:{r*512+256} sc1" for r in range(4)],
         range(12, 20), 20, sleep=24)
    a("v_max3_f32 v20, v12, v14, v16")
    a("v_max_f32 v20, v20, v18")
    for r in range(4): a(f"v_sub_f32 {vr(28+r)}, {vr(12+2*r)}, v20")
    for r in range(4): a(f"v_exp_f32 {vr(28+r)}, {vr(28+r)}")
    a("v_cmp_eq_u32 vcc, 1, v24")
    for r in range(4): a(f"v_mul_f32 {vr(28+r)}, {vr(28+r)}, {vr(13+2*r)}")
    a("v_add_f32 v20, v28, v29")
    a("v_add_f32 v12, v30, v31")
    a("v_add_f32 v20, v20, v12")
    a("v_rcp_f32 v20, v20")
    for k in range(8): a(f"v_mov_b32 {vr(40+k)}, 0")
    a("v_cndmask_b32 v28, v28, v30, vcc")
    a("v_cndmask_b32 v29, v29, v31, vcc")
    for r in range(2): a(f"v_mul_f32 {vr(28+r)}, {vr(28+r)}, v20")
    stamp(4)
    lds_spin("L_trig", C_TRIG, 12, 1, sleep=2)
    stamp(5)
    def osm(nu, u): return f"v_smfmac_f32_16x16x64_bf16 {vr(32+4*nu,4)}, {vr(12+4*u,4)}, {vr(vB+16*nu+8*u,8)}, v22"
    poll("L_pollO", [f"buffer_load_dwordx4 {vr(12+4*u,4)}, v10, {sr(RWS,4)}, {sr(sU0)} offen offset:{u*128} sc1" for u in range(2)],
         range(12, 20), 20, pre=["s_nop 1"] + [f"v_mov_b32 {vr(32+k)}, 0" for k in range(8)] + ["s_nop 0"],
         spec=[osm(0, 0), osm(0, 1), osm(1, 0)], per=2, post=[osm(1, 1)])
    stamp(6)
    def oep(nu):
        return [f"v_pk_mul_f32 {vr(32+4*nu,2)}, {vr(32+4*nu,2)}, v[28:29] op_sel_hi:[1,0]",
                f"v_pk_fma_f32 {vr(32+4*nu,2)}, {vr(34+4*nu,2)}, v[28:29], {vr(32+4*nu,2)} op_sel:[0,1,0]",
                f"v_add_f32 {vr(48+nu)}, {vr(32+4*nu)}, {vr(33+4*nu)}"]
    e0, e1, e2, e3 = oep(0), oep(1), oep(2), oep(3)
    a(osm(2, 0)); a(osm(2, 1)); a(e0[0]); a(osm(3, 0)); a(e0[1]); a(osm(3, 1)); a(e0[2])
    for l in e1: a(l)
    a("s_nop 0")
    for l in e2: a(l)
    for l in e3: a(l)
    a(f"ds_write_b128 v11, v[48:51] offset:{L_RED}")
    a("s_mov_b64 exec, 1")
    a(f"ds_add_rtn_u32 v20, {vr(vZ)}, {vr(vONE)} offset:{C_ORED}")
    a("s_mov_b64 exec, -1")
    for w in range(4): a(f"ds_read_b128 {vr(32+4*w,4)}, v8 offset:{L_RED + w*1024}")
    a("s_waitcnt lgkmcnt(2)")
    a(f"v_readfirstlane_b32 {sr(sT0)}, v20")
    a("v_pk_add_f32 v[32:33], v[32:33], v[36:37]")
    a("v_pk_add_f32 v[34:35], v[34:35], v[38:39]")
    a("s_waitcnt lgkmcnt(1)")
    a("v_pk_add_f32 v[32:33], v[32:33], v[40:41]")
    a("v_pk_add_f32 v[34:35], v[34:35], v[42:43]")
    a("s_waitcnt lgkmcnt(0)")
    a("v_pk_add_f32 v[32:33], v[32:33], v[44:45]")
    a("v_pk_add_f32 v[34:35], v[34:35], v[46:47]")
    a(f"s_cmp_eq_u32 {sr(sT0)}, {sr(sU2)}")
    a("v_permlane16_swap_b32 v32, v33")
    a("v_permlane16_swap_b32 v34, v35")
    a("v_add_f32 v32, v32, v33")
    a("v_add_f32 v34, v34, v35")
    a("v_cvt_pk_bf16_f32 v32, v32, v34")
    a("s_cbranch_scc0 L_Onear")
    a(f"buffer_store_dword v32, v21, {sr(RWS,4)}, {sr(sC0)} offen sc1")
    stamp(7)
    a("s_branch L_Odone")
    g.lab("L_Onear")
    a(f"s_cmp_eq_u32 {sr(sT0)}, 3")
    a("s_cbranch_scc0 L_Odone")
    a(f"buffer_store_dword v32, v21, {sr(RWS,4)}, {sr(sC0)} offen")
    stamp(7)
    g.lab("L_Odone")
    a(f"s_cmp_eq_u32 {sr(sCLS)}, {XF}")
    a("s_cbranch_scc0 L_fin")
    def red8(b):
        a(f"v_permlane32_swap_b32 {vr(b)}, {vr(b+1)}")
        a(f"v_permlane32_swap_b32 {vr(b+2)}, {vr(b+3)}")
        a(f"v_add_f32 {vr(b)}, {vr(b)}, {vr(b+1)}")
        a(f"v_add_f32 {vr(b+2)}, {vr(b+2)}, {vr(b+3)}")
        a("s_nop 1")
        a(f"v_permlane16_swap_b32 {vr(b)}, {vr(b+2)}")
        a(f"v_add_f32 {vr(b)}, {vr(b)}, {vr(b+2)}")
        a("s_nop 1")
        a(f"v_add_f32_dpp {vr(b)}, {vr(b)}, {vr(b)} row_ror:8 {DPPF}")
    lds_spin("L_rw", C_ORED, 12, 4, sleep=1)
    poll("L_pollRa", [f"buffer_load_dword {vr(12+r)}, {vr(vRA)}, {sr(RWS,4)}, 0 offen offset:{(r&1)*1024 + (r>>1)*128} sc1" for r in range(4)],
         range(12, 16), 16, sleep=sleepR)
    for k in range(4): a(f"v_lshlrev_b32 {vr(12+k)}, {sr(sC1)}, {vr(12+k)}")
    for k in range(4): a(f"v_and_b32 {vr(12+k)}, 0xffff0000, {vr(12+k)}")
    a("s_nop 1")
    red8(12)
    if mimic: rnd(12, 12)
    a(f"v_add_f32 v136, {vr(vRX)}, v12")
    rnd(136, 136)
    if not mimic: a(f"v_add_f32 v136, v136, {vr(vRB)}")
    poll("L_pollRy", [f"buffer_load_dwordx4 {vr(32+4*u,4)}, {vr(vRY+u)}, {sr(R3,4)}, 0 offen sc1" for u in range(3)], range(32, 44), 16,
         post=["v_pk_add_f32 v[12:13], v[32:33], v[36:37]", "v_pk_add_f32 v[14:15], v[34:35], v[38:39]",
               "v_pk_add_f32 v[12:13], v[12:13], v[40:41]", "v_pk_add_f32 v[14:15], v[14:15], v[42:43]"], pipe=rpipe)
    stamp(8)
    red8(12)
    if mimic:
        rnd(12, 12)
        a(f"v_add_f32 v12, v12, {vr(vRB)}")
        rnd(12, 12)
    a("v_add_f32 v12, v12, v136")
    a("v_cvt_pk_bf16_f32 v12, v12, v12")
    a(f"buffer_store_short v12, {vr(vRO)}, {sr(R1,4)}, 0 offen")
    stamp(9)
    a("s_branch L_fin" if prof else "s_endpgm")

    g.lab("L_roleF")
    vW1 = 64
    vW2 = 128
    vA1 = 192
    vA2 = 224
    vAC = 240
    sF = sU0
    a(f"s_sub_u32 {sr(sF)}, {sr(sY)}, 8")
    a(f"s_lshl_b32 {sr(sU1)}, {sr(sF)}, 7")
    a(f"s_cmp_eq_u32 {sr(sW4)}, 1")
    a("s_cbranch_scc0 L_Fset")
    srd(R2, sW1, sU1, 0)
    a(f"s_sub_u32 {sr(R2+2)}, {512*2752}, {sr(sU1)}")
    a(f"v_lshrrev_b32 v12, 3, {vr(vLANE)}")
    a(f"v_and_b32 v13, 7, {vr(vLANE)}")
    a("v_mul_u32_u24 v12, 2752, v12")
    a("v_lshl_add_u32 v12, v13, 4, v12")
    a(f"s_mov_b32 {sr(sT3)}, {L_W}")
    g.lab("L_ldF")
    a(f"s_mov_b32 m0, {sr(sT3)}")
    a(f"s_waitcnt vmcnt({WF-1})")
    if 'noF' not in dbg: a(f"buffer_load_dwordx4 v12, {sr(R2,4)}, 0 offen {w1pol} lds")
    a(f"v_add_u32 v12, {8*2752}, v12")
    a(f"s_add_u32 {sr(sT3)}, {sr(sT3)}, 1024")
    a(f"s_cmp_lt_u32 {sr(sT3)}, {L_W + 65536}")
    a("s_cbranch_scc1 L_ldF")
    staged()
    g.lab("L_Fset")
    if 'ldonly' in dbg: a("s_branch L_fin")
    a(f"v_lshrrev_b32 v12, 1, {vr(vG)}")
    a("v_lshlrev_b32 v12, 7, v12")
    a(f"v_lshl_add_u32 v12, {vr(vI)}, 3, v12")
    a(f"v_and_b32 v15, 1, {vr(vG)}")
    a("v_lshl_add_u32 v12, v15, 2, v12")
    a("v_and_b32 v13, 0xc0, v12")
    a("v_and_b32 v14, 63, v12")
    a("v_lshl_add_u32 v13, v13, 1, v14")
    a(f"s_lshl_b32 {sr(sU2)}, {sr(sW4)}, 9")
    a(f"buffer_load_dword v40, v13, {sr(R0,4)}, {sr(sU2)} offen")
    a(f"buffer_load_dword v41, v13, {sr(R0,4)}, {sr(sU2)} offen offset:64")
    a(f"v_lshl_add_u32 v46, v12, 1, {sr(sU2)}")
    srd(R1, sB1, None, 2752)
    a(f"s_lshl_b32 {sr(sT0)}, {sr(sW4)}, 5")
    a(f"v_lshl_add_u32 v13, {vr(vI)}, 1, {sr(sT0)}")
    a(f"v_add_u32 v14, {sr(sU1)}, v13")
    a(f"buffer_load_ushort v44, v14, {sr(R1,4)}, 0 offen")
    a("v_lshl_add_u32 v47, v15, 7, v13")
    a(f"v_lshl_add_u32 v52, {vr(vG)}, 3, {sr(sT0)}")
    a("v_lshlrev_b32 v53, 6, v15")
    a(f"v_and_b32 v14, 1, {vr(vI)}")
    a(f"v_bfe_u32 v15, {vr(vI)}, 1, 1")
    a("v_lshlrev_b32 v13, 7, v14")
    a("v_lshl_add_u32 v13, v15, 6, v13")
    a(f"v_lshl_add_u32 v48, {vr(vG)}, 4, v13")
    a("v_mul_u32_u24 v51, 0xaaaa, v15")
    a("v_add_u32 v51, 0x4444, v51")
    a("v_mul_u32_u24 v50, 0xaaaa, v14")
    a("v_add_u32 v50, 0x4444, v50")
    a(f"v_bfe_u32 v13, {vr(vI)}, 2, 1")
    a("v_lshlrev_b32 v13, 10, v13")
    a("v_lshl_add_u32 v13, v14, 6, v13")
    a(f"v_lshl_add_u32 v49, {vr(vG)}, 4, v13")
    a("v_mov_b32 v38, 0x3f803f80")
    a(f"v_lshlrev_b32 v54, 11, {vr(vG)}")
    a(f"v_lshl_add_u32 v54, {vr(vI)}, 4, v54")
    a("v_add_u32 v55, 0x2000, v54")
    a(f"s_add_u32 {sr(sU2)}, {sr(sU2)}, {WS_A}")
    a(f"v_cmp_gt_u32 vcc, 8, {vr(vI)}")
    for k in range(4): a(f"v_and_b32 {vr(60+k)}, v38, {vr(vMASK+k)}")
    for k in range(4):
        a(f"v_cndmask_b32 {vr(56+k)}, 0, {vr(60+k)}, vcc")
        a(f"v_cndmask_b32 {vr(60+k)}, {vr(60+k)}, 0, vcc")
    for k in range(16): a(f"v_mov_b32 {vr(vA2+k)}, 0")
    a(f"s_lshl2_add_u32 {sr(sT0)}, {sr(sF)}, {sr(sW4)}")
    a(f"s_lshl_b32 {sr(sT0)}, {sr(sT0)}, 10")
    a(f"s_add_u32 {sr(sC0)}, {sr(sT0)}, {WS_Y}")
    a(f"s_mov_b32 {sr(sM0)}, 0x000f000f"); a(f"s_mov_b32 {sr(sM0+1)}, 0x000f000f")
    a(f"v_and_b32 v11, 3, {vr(vLANE)}")
    a("v_lshlrev_b32 v11, 3, v11")
    a(f"v_bfe_u32 v14, {vr(vLANE)}, 3, 1")
    a(f"v_bfe_u32 v13, {vr(vLANE)}, 2, 1")
    a("v_lshl_add_u32 v39, v14, 5, v13")
    a(f"v_lshl_add_u32 v39, {vr(vG)}, 2, v39")
    a(f"v_mul_u32_u24 v39, {W2P}, v39")
    a(f"s_lshl_b32 {sr(sT0)}, {sr(sW4)}, 8")
    a(f"s_add_u32 {sr(sT0)}, {sr(sT0)}, {L_W2}")
    a(f"v_add3_u32 v39, v39, v11, {sr(sT0)}")
    a("v_lshlrev_b32 v10, 5, v13")
    a("v_lshl_add_u32 v10, v14, 4, v10")
    a(f"v_lshl_add_u32 v10, {vr(vG)}, 1, v10")
    a("v_lshl_add_u32 v10, v10, 7, v11")
    a(f"s_lshl_b32 {sr(sT0)}, {sr(sW4)}, 5")
    a(f"s_add_u32 {sr(sT0)}, {sr(sT0)}, {L_W}")
    a(f"v_add_u32 v10, {sr(sT0)}, v10")
    lds_spin("L_stgF", C_STG, 12, 1, sleep=4)
    for s in range(8):
        for p in range(4):
            a(f"ds_read_b64_tr_b16 {vr(vW1+8*s+2*p,2)}, v10 offset:{(64*s + 8*(p>>1) + (p&1))*128}")
        if s & 1: a("s_waitcnt lgkmcnt(0)")
    get_loc("L_locF")
    for k in range(4): a(f"v_mov_b32 {vr(vAC+k)}, 0"); a(f"v_mov_b32 {vr(16+k)}, v38")
    a("v_and_b32 v42, 0xffff0000, v40")
    a("v_and_b32 v43, 0xffff0000, v41")
    for s_ in range(8): a(f"v_smfmac_f32_16x16x64_bf16 {vr(vAC,4)}, v[16:19], {vr(vW1+8*s_,8)}, v50")
    a("v_lshlrev_b32 v40, 16, v40")
    a("v_lshlrev_b32 v41, 16, v41")
    a("v_lshlrev_b32 v44, 16, v44")
    a(f"s_lshl_b32 {sr(sT0)}, {sr(sF)}, 16")
    srd(R1, sW2, sT0, 0)
    a(f"s_sub_u32 {sr(R1+2)}, {1376*1024}, {sr(sT0)}")
    a(f"v_add_f32 v45, {vr(vAC)}, {vr(vAC+1)}")
    for k in range(12): a(f"v_mov_b32 {vr(vAC+k)}, 0")
    a(f"s_lshl_b32 {sr(sT0)}, {sr(sW4)}, 14")
    a(f"v_add_u32 v13, {sr(sT0)}, v8")
    a(f"s_mul_i32 {sr(sT2)}, {sr(sW4)}, {16*W2P}")
    stamp(4)
    lds_spin("L_tr2", C_TRIG2, 12, 4, sleep=1)
    for k in range(16):
        a(f"s_add_u32 m0, {sr(sT2)}, {L_W2 + k*W2P}")
        a(f"s_waitcnt vmcnt({W2W-1})")
        a(f"buffer_load_dwordx4 v13, {sr(R1,4)}, 0 offen nt lds")
        a("v_add_u32 v13, 0x400, v13")
    a("s_waitcnt vmcnt(0)")
    a("s_barrier")
    for nu in range(8):
        for p in range(4):
            a(f"ds_read_b64_tr_b16 {vr(vW2+8*nu+2*p,2)}, v39 offset:{(16*(p>>1) + 2*(p&1))*W2P + nu*32}")
    stamp(5)
    poll("L_pollF", [f"buffer_load_dwordx4 {vr(vA1+8*ch+4*u,4)}, {vr(54+u)}, {sr(RWS,4)}, {sr(sU2)} offen offset:{ch*256} sc1" for ch in range(2) for u in range(2)],
         range(vA1, vA1+16), 32,
         spec=[f"v_mfma_f32_16x16x32_bf16 v[28:31], v[56:59], {vr(vA1,4)}, {'0' if mimic else 'v[40:43]'}",
               f"v_mfma_f32_16x16x32_bf16 v[28:31], v[56:59], {vr(vA1+4,4)}, v[28:31]",
               f"v_mfma_f32_16x16x32_bf16 v[28:31], v[60:63], {vr(vA1+8,4)}, v[28:31]",
               f"v_mfma_f32_16x16x32_bf16 v[28:31], v[60:63], {vr(vA1+12,4)}, v[28:31]"], per=2,
         post=["s_nop 3"])
    stamp(6)
    if mimic:
        a("v_cvt_pk_bf16_f32 v28, v28, v29")
        a("v_cvt_pk_bf16_f32 v30, v30, v31")
        a("v_and_b32 v29, 0xffff0000, v28")
        a("v_and_b32 v31, 0xffff0000, v30")
        a("v_lshlrev_b32 v28, 16, v28")
        a("v_lshlrev_b32 v30, 16, v30")
        a("v_pk_add_f32 v[28:29], v[28:29], v[40:41]")
        a("v_pk_add_f32 v[30:31], v[30:31], v[42:43]")
    a("v_cvt_pk_bf16_f32 v28, v28, v29")
    a("v_cvt_pk_bf16_f32 v29, v30, v31")
    a(f"ds_write_b64 v46, v[28:29] offset:{L_HN}")
    a("v_dot2_f32_bf16 v32, v28, v38, 0")
    a("v_dot2_f32_bf16 v33, v28, v28, 0")
    a("v_dot2_f32_bf16 v32, v29, v38, v32")
    a("v_dot2_f32_bf16 v33, v29, v29, v33")
    a("s_nop 0")
    for st in ("quad_perm:[1,0,3,2]", "quad_perm:[2,3,0,1]", "row_ror:4", "row_ror:8"):
        a("s_nop 0")
        for r in (32, 33): a(f"v_add_f32_dpp {vr(r)}, {vr(r)}, {vr(r)} {st} {DPPF}")
    a(f"ds_write_b64 v52, v[32:33] offset:{L_FS}")
    a("s_waitcnt lgkmcnt(0)")
    a("s_barrier")
    order = [('a', 0), ('s', 0), ('s', 1), ('a', 1), ('s', 2), ('s', 3)] + [('a', k) for k in range(2, 8)]
    for kind, k in order:
        if kind == 'a': a(f"ds_read_b128 {vr(vA1+4*k,4)}, v49 offset:{L_HN + k*128}")
        else: a(f"ds_read_b128 {vr(12+4*k if k < 3 else 28,4)}, v53 offset:{L_FS + k*16}")
    keep = g.L; g.L = []
    a("v_pk_add_f32 v[12:13], v[12:13], v[14:15]"); a("v_pk_add_f32 v[16:17], v[16:17], v[18:19]")
    a("v_pk_add_f32 v[12:13], v[12:13], v[16:17]")
    a("v_pk_add_f32 v[20:21], v[20:21], v[22:23]"); a("v_pk_add_f32 v[28:29], v[28:29], v[30:31]")
    a("v_pk_add_f32 v[12:13], v[12:13], v[20:21]"); a("v_pk_add_f32 v[12:13], v[12:13], v[28:29]")
    a("v_mul_f32 v32, 0x3b000000, v12"); a("v_mul_f32 v33, 0x3b000000, v13")
    a("v_fma_f32 v33, -v32, v32, v33"); a("v_max_f32 v36, 0, v33")
    ln_scale(32, 36)
    work = [l.strip() for l in g.L]; g.L = keep
    plan = {1: 3, 2: 3, 3: 3, 4: 2, 5: 2, 6: 2}
    for k in range(8):
        a(f"s_waitcnt lgkmcnt({len(order) - 1 - order.index(('a', k))})")
        a(f"v_smfmac_f32_16x16x64_bf16 {vr(vAC,4)}, {vr(vA1+4*k,4)}, {vr(vW1+8*k,8)}, v50")
        for _ in range(plan.get(k, 0)): a(work.pop(0))
    stamp(7)
    nrest = len(work)
    for l in work: a(l)
    if nrest < 8: a(f"s_nop {7 - nrest}")
    a(f"v_add_f32 v28, {vr(vAC)}, {vr(vAC+1)}")
    a("v_fma_f32 v28, -v32, v45, v28")
    if mimic:
        a("v_mul_f32 v28, v28, v36")
        rnd(28, 28)
        a("v_add_f32 v28, v28, v44")
        rnd(28, 28)
    else:
        a("v_fma_f32 v28, v28, v36, v44")
    a("v_max_f32 v28, 0, v28")
    a("v_mul_f32 v28, v28, v28")
    a("v_cvt_pk_bf16_f32 v28, v28, v28")
    a(f"ds_write_b16 v47, v28 offset:{L_RR}")
    a(f"s_mov_b64 exec, {sr(sM0,2)}")
    a("s_waitcnt lgkmcnt(0)")
    a("s_barrier")
    for q in range(4):
        a(f"ds_read_b128 {vr(vA2+4*q,4)}, v48 offset:{L_RR}")
        if q < 3: a(f"s_lshl_b64 exec, {sr(sM0,2)}, {4*(q+1)}")
    a("s_mov_b64 exec, -1")
    a(f"s_cmp_eq_u32 {sr(sLOC)}, {LOCV}")
    for q in range(4):
        a(f"s_waitcnt lgkmcnt({3-q})")
        for aa in range(2):
            a(f"v_smfmac_f32_16x16x64_bf16 {vr(vAC+4+4*aa,4)}, {vr(vA2+4*q,4)}, {vr(vW2+8*(4*aa+q),8)}, v51")
    a("s_nop 5")
    a("s_cbranch_scc0 L_F2far")
    for pol in ("", "sc1"):
        if pol: g.lab("L_F2far")
        a(f"v_pk_add_f32 v[28:29], {vr(vAC+4,2)}, {vr(vAC+6,2)}")
        a(f"v_pk_add_f32 v[30:31], {vr(vAC+8,2)}, {vr(vAC+10,2)}")
        a(f"buffer_store_dwordx4 v[28:31], v8, {sr(RWS,4)}, {sr(sC0)} offen {pol}")
        stamp(8)
        if not pol: a("s_branch L_fin")

    g.lab("L_fin")
    if diag or agg or store_prof:
        import diagcode
        diagcode.emit(locals())
    g.lab("L_end")
    a("s_endpgm")

    nv = 252
    out = [HEADER.rstrip("\n"),
           f"; @launch grid=(256,1,1) block=(512,1,1) lds={L_END}",
           '.amdgcn_target "amdgcn-amd-amdhsa--gfx950"', ".text", f".globl {NAME}_kernel", ".p2align 8",
           f".type {NAME}_kernel,@function", f"{NAME}_kernel:"]
    out += g.L
    out += ['.section .rodata,"a"', ".p2align 6", f".amdhsa_kernel {NAME}_kernel",
            f"  .amdhsa_next_free_vgpr {nv}", "  .amdhsa_next_free_sgpr 100", f"  .amdhsa_accum_offset {nv}",
            "  .amdhsa_group_segment_fixed_size 0", "  .amdhsa_kernarg_size 104",
            "  .amdhsa_user_sgpr_count 2", "  .amdhsa_user_sgpr_kernarg_segment_ptr 1",
            "  .amdhsa_system_sgpr_workgroup_id_x 1", "  .amdhsa_float_denorm_mode_32 3",
            ".end_amdhsa_kernel"]
    return "\n".join(out) + "\n"

if __name__ == "__main__":
    kw = eval("dict(" + (sys.argv[2] if len(sys.argv) > 2 else "") + ")")
    open(sys.argv[1], "w").write(gen(**kw))
```

```python
import struct, sys
NAME = "sequential_preLN__mha_block_cached__dense_activation_squared_relu__decode"

def f2u(x): return struct.unpack("<I", struct.pack("<f", x))[0]
LOG2E = f2u(1.4426950408889634)
SCALE = f2u(128 ** -0.5)
EPS = f2u(1e-5)
NF = 22

WS_P = 0
WS_A = 0x20000
WS_Y = 0x24000
WS_QF = 0x60000
WS_HM = 0x68000
WS_GO = 64*512 + 384
WS_QD = 0x80000
WS_END = 0xc0000
STAMP_OFF = 128 << 20

C_COMB, C_STAT, C_STG, C_ORED, C_Q, C_QP, C_TRIG, C_TRIG2 = [16*i for i in range(8)]
C_FW = 128
L_FW = 144
C_CK = 160
C_PAT, C_PT2 = 176, 208
C_LOC = 192
L_Q = 224
L_ST = L_Q + 256
L_FS = L_ST + 64
L_RR = L_FS + 128
L_O = 1024
L_HN = L_O + 2048
L_RED = L_HN + 2048
L_W = L_RED + 4096
W2P = 1072
L_W2 = L_W + 0x10000
L_END = L_W2 + 64 * W2P
SPIN_MAX = 400000

HEADER = open("cdna_kernels/" + NAME + ".s.ref").read().split("; Override launch")[0]

class G:
    def __init__(s): s.L = []
    def __call__(s, x): s.L.append("  " + x)
    def lab(s, x): s.L.append(x + ":")
    def c(s, x): s.L.append("  ; " + x)

def gen(prof=False, diag=None, agg=None, dbg='', local=True, forcefb=False,
        D=5, DH=6, DE=8, NE=10, N0=46, budget=30, XF=2, WO=5, WF=5, W2W=8, QTRY=32,
        NSTAT=112, NTRIG=126, NT2=127, kF=28, kO=5, kX=8,
        lin='1 2 24 c 1c4 408 204 800 20 18 80 40 4c 400 400 400 440 0', pfw2=False, sleepR=2, lnmimic=True, qprio=2,
        ck0=20, ck=(30, 62, 90), lag=9, r0=16, sh=3, win=7, gF=11, gO=1, gX=6, lo=4, r1=12, sh1=4, her=0, HTRY=160, w2mode=0):
    g = G()
    a = g
    dbg = set(dbg.split())
    if agg: prof = True
    store_prof = prof
    if diag: prof = True
    lin = [int(t_, 16) & ~3 for t_ in lin.split()]
    def vr(r, n=1): return f"v{r}" if n == 1 else f"v[{r}:{r+n-1}]"
    def sr(r, n=1): return f"s{r}" if n == 1 else f"s[{r}:{r+n-1}]"
    DPPF = "row_mask:0xf bank_mask:0xf"
    sX, sK, sV, sWQ, sWO, sBX, sW1, sB1 = 4, 6, 8, 10, 12, 14, 16, 18
    sW2, sB2, sOUT, sDBG, sWS = 20, 22, 24, 26, 28
    sWAVE, sH, sB, sSUB, sW4 = 30, 31, 32, 34, 35
    sT0, sT1, sT2, sT3 = 36, 37, 38, 39
    R0, R1, R2, R3, RWS = 40, 44, 48, 52, 56
    sSO, sSPIN, sSLOT, sXCC = 60, 61, 62, 63
    sM0 = 64
    sC0, sC1 = 66, 67
    sCLS, sY, sLOC, sU3 = 68, 69, 70, 71
    sST = 72
    sU0, sU1, sU2, sROLE = 96, 97, 98, 99
    def stamp(i):
        if prof: a(f"s_memrealtime {sr(sST+2*i,2)}")
    def srd(R, base, off_sgpr, nrec):
        if off_sgpr is None:
            a(f"s_mov_b64 {sr(R,2)}, {sr(base,2)}")
        else:
            a(f"s_add_u32 {sr(R)}, {sr(base)}, {sr(off_sgpr)}"); a(f"s_addc_u32 {sr(R+1)}, {sr(base+1)}, 0")
        a(f"s_mov_b32 {sr(R+2)}, {nrec}"); a(f"s_mov_b32 {sr(R+3)}, 0x20000")
    def rnd(dst, src):
        a(f"v_cvt_pk_bf16_f32 {vr(dst)}, {vr(src)}, {vr(src)}")
        a(f"v_lshlrev_b32 {vr(dst)}, 16, {vr(dst)}")
    def allred(op, r, t, quad=True, s32=True):
        for st in (["quad_perm:[1,0,3,2]", "quad_perm:[2,3,0,1]"] if quad else []) + ["row_ror:4", "row_ror:8"]:
            a("s_nop 1")
            a(f"{op}_dpp {vr(r)}, {vr(r)}, {vr(r)} {st} {DPPF}")
        for sw in ("v_permlane16_swap_b32", "v_permlane32_swap_b32")[:2 if s32 else 1]:
            a(f"v_mov_b32 {vr(t)}, {vr(r)}")
            a("s_nop 1")
            a(f"{sw} {vr(r)}, {vr(t)}")
            a(f"{op} {vr(r)}, {vr(r)}, {vr(t)}")
    def sent_ops(regs, tmp):
        rs_ = list(regs); o = []
        if len(rs_) == 1: return [f"v_cmp_eq_u32 vcc, -1, {vr(rs_[0])}"]
        o.append(f"v_max3_u32 {vr(tmp)}, {vr(rs_[0])}, {vr(rs_[1])}, {vr(rs_[2])}"); rs_ = rs_[3:]
        while len(rs_) >= 2:
            o.append(f"v_max3_u32 {vr(tmp)}, {vr(tmp)}, {vr(rs_[0])}, {vr(rs_[1])}"); rs_ = rs_[2:]
        if rs_: o.append(f"v_max_u32 {vr(tmp)}, {vr(tmp)}, {vr(rs_[0])}")
        o.append(f"v_cmp_eq_u32 vcc, -1, {vr(tmp)}")
        return o
    def poll(label, loads, regs, tmp, spin=SPIN_MAX, fail=None, pre=(), spec=(), per=99, post=(), sleep=0, first=()):
        a(f"s_mov_b32 {sr(sSPIN)}, {spin}")
        if first:
            for l in loads: a(l)
            a("s_mov_b64 exec, -1")
            for l in first: a(l)
            a(f"s_branch {label}_w")
        else:
            a(f"s_branch {label}")
        g.lab(label + "_r")
        a(f"s_sub_u32 {sr(sSPIN)}, {sr(sSPIN)}, 1")
        a(f"s_cbranch_scc1 {fail or label + '_x'}")
        if sleep: a(f"s_sleep {sleep}")
        a("s_mov_b64 exec, vcc")
        g.lab(label)
        for l in loads: a(l)
        a("s_mov_b64 exec, -1")
        if first: g.lab(label + "_w")
        for l in pre: a(l)
        a("s_waitcnt vmcnt(0)")
        chk_ = sent_ops(regs, tmp); spec = list(spec)
        while spec:
            a(spec.pop(0))
            for _ in range(per):
                if chk_: a(chk_.pop(0))
        for l in chk_: a(l)
        for l in post: a(l)
        a(f"s_cbranch_vccnz {label}_r")
        g.lab(label + "_x")
    def flags_addr(v, t):
        a(f"v_lshrrev_b32 {vr(v)}, 1, {vr(vI)}")
        a(f"v_lshlrev_b32 {vr(v)}, 5, {vr(v)}")
        a(f"v_and_b32 {vr(t)}, 1, {vr(vI)}")
        a(f"v_lshl_add_u32 {vr(v)}, {vr(t)}, 2, {vr(v)}")
    def flags_eval(v, t):
        a(f"s_mov_b32 {sr(sT0)}, 0x80808080")
        a(f"s_mul_i32 {sr(sT1)}, {sr(sXCC)}, 0x01010101")
        a(f"v_and_b32 {vr(t)}, {sr(sT0)}, {vr(v)}")
        a(f"v_cmp_eq_u32 {sr(sT2,2)}, {sr(sT1)}, {vr(v)}")
        a(f"v_cmp_ne_u32 vcc, {sr(sT0)}, {vr(t)}")
        a(f"s_lshl_b32 {sr(sT0)}, {sr(sCLS)}, 1")
        a(f"s_lshr_b32 {sr(sLOC)}, {sr(sT2)}, {sr(sT0)}")
        a(f"s_and_b32 {sr(sLOC)}, {sr(sLOC)}, 3")
        a(f"s_or_b32 {sr(sLOC)}, {sr(sLOC)}, 4")
        a(f"s_and_b32 {sr(sU3)}, vcc_lo, 0xffff")
    def wait_flags(label, v):
        a(f"s_mov_b32 {sr(sSPIN)}, {SPIN_MAX}")
        flags_addr(v+1, v+2)
        g.lab(label)
        a(f"global_load_dword {vr(v)}, {vr(v+1)}, {sr(sDBG,2)} sc1")
        a("s_waitcnt vmcnt(0)")
        flags_eval(v, v+2)
        a(f"s_cbranch_scc0 {label}_x")
        a("s_sleep 16")
        a(f"s_sub_u32 {sr(sSPIN)}, {sr(sSPIN)}, 4")
        a(f"s_cbranch_scc0 {label}")
        g.lab(label + "_x")
    def lds_spin(label, off, vt, want, sleep=0):
        g.lab(label)
        a(f"ds_read_b32 {vr(vt)}, {vr(vZ)} offset:{off}")
        if sleep: a(f"s_sleep {sleep}")
        a("s_waitcnt lgkmcnt(0)")
        a(f"v_cmp_ne_u32 vcc, {want}, {vr(vt)}")
        a(f"s_cbranch_vccnz {label}")
    def get_loc(label):
        g.lab(label)
        a(f"ds_read_b32 v12, {vr(vZ)} offset:{C_LOC}")
        a("s_sleep 4")
        a("s_waitcnt vmcnt(0) lgkmcnt(0)")
        a(f"v_readfirstlane_b32 {sr(sLOC)}, v12")
        a(f"s_cmp_eq_u32 {sr(sLOC)}, 0")
        a(f"s_cbranch_scc1 {label}")
    def wait_go(label, sleep=0, first=()):
        a(f"v_and_b32 v12, 7, {vr(vLANE)}")
        a(f"v_cmp_eq_u32 vcc, {XF}, v12")
        a(f"s_mov_b32 {sr(sT0)}, {WS_GO}")
        a("s_nop 0")
        a(f"v_cndmask_b32 v12, v12, {XF ^ 1}, vcc")
        a("v_lshlrev_b32 v12, 9, v12")
        a("v_mov_b32 v13, 0")
        a("s_mov_b64 exec, 0xff")
        poll(label, [f"buffer_load_dword v13, v12, {sr(RWS,4)}, {sr(sT0)} offen sc1"], [13], 14, sleep=sleep, first=first)
    def make_masks(both):
        a(f"v_and_b32 v10, 1, {vr(vI)}")
        a("v_lshlrev_b32 v10, 4, v10")
        a("v_mov_b32 v9, 0xffff")
        a("v_lshlrev_b32 v10, v10, v9")
        if both: a(f"v_bfe_u32 v9, {vr(vI)}, 1, 2")
        else: a(f"v_lshrrev_b32 v9, 1, {vr(vI)}")
        for r in range(4):
            a(f"v_cmp_eq_u32 vcc, {r}, v9")
            a("s_nop 1")
            a(f"v_cndmask_b32 {vr(vMASK+r)}, 0, v10, vcc")
    def ln_scale(vmean, vvar):
        rnd(vvar, vvar)
        a(f"v_add_f32 {vr(vvar)}, {EPS:#x}, {vr(vvar)}")
        rnd(vvar, vvar)
        a(f"v_sqrt_f32 {vr(vvar)}, {vr(vvar)}")
        rnd(vmean, vmean)
        rnd(vvar, vvar)
        a(f"v_rcp_f32 {vr(vvar)}, {vr(vvar)}")
    LOCV = 7 if local else 99

    vLANE, vI, vG = 1, 2, 3
    vMASK = 4
    vZ, vONE = 26, 27
    a(f"s_load_dwordx16 {sr(4,16)}, s[0:1], 0")
    a(f"s_load_dwordx8 {sr(20,8)}, s[0:1], 64")
    a(f"s_load_dwordx2 {sr(28,2)}, s[0:1], 96")
    a(f"s_lshr_b32 {sr(sT0)}, s2, 8")
    a("s_cbranch_scc1 L_end")
    stamp(0)
    a(f"s_and_b32 {sr(sH)}, s2, 31")
    a(f"s_lshr_b32 {sr(sSUB)}, s2, 5")
    a(f"s_lshl3_add_u32 {sr(sSLOT)}, {sr(sH)}, {sr(sSUB)}")
    a(f"s_lshl_b32 {sr(sT0)}, {sr(sSLOT)}, 14")
    a("v_lshlrev_b32 v10, 4, v0")
    a(f"v_mov_b32 {vr(vZ)}, 0")
    a(f"ds_write_b32 v10, {vr(vZ)}")
    a(f"v_lshl_add_u32 v9, v0, 5, {sr(sT0)}")
    a(f"s_mul_i32 {sr(sT0)}, s2, 5504")
    a("v_min_u32 v11, 5488, v10")
    a(f"v_add_u32 v11, {sr(sT0)}, v11")
    a("s_waitcnt lgkmcnt(0)")
    npf = 0
    if 'nopf' not in dbg:
        a(f"global_load_dword v250, v9, {sr(sWO,2)}")
        a(f"global_load_dword v251, v11, {sr(sW1,2)}")
        if pfw2: a(f"global_load_dword v249, v11, {sr(sW2,2)}")
        npf = 3 if pfw2 else 2
    a("s_barrier")
    if prof:
        for i in range(1, 12): a(f"s_mov_b64 {sr(sST+2*i,2)}, 0")
    stamp(1)
    a(f"v_lshrrev_b32 {vr(vI)}, 6, v0")
    a(f"v_and_b32 {vr(vLANE)}, 63, v0")
    a(f"s_lshr_b32 {sr(sB)}, s2, 7")
    a(f"v_readfirstlane_b32 {sr(sWAVE)}, {vr(vI)}")
    a(f"v_and_b32 {vr(vI)}, 15, {vr(vLANE)}")
    a(f"v_lshrrev_b32 {vr(vG)}, 4, {vr(vLANE)}")
    a(f"v_lshlrev_b32 v8, 4, {vr(vLANE)}")
    a(f"s_and_b32 {sr(sW4)}, {sr(sWAVE)}, 3")
    srd(RWS, sWS, None, WS_END)
    a(f"s_cmp_lt_u32 {sr(sWAVE)}, 4")
    a("s_cbranch_scc1 L_stream")
    a(f"s_cmp_eq_u32 {sr(sWAVE)}, 4")
    a("s_cbranch_scc1 L_q1")
    a(f"s_cmp_eq_u32 {sr(sWAVE)}, 6")
    a(f"s_cselect_b32 {sr(sT0)}, s2, 64")
    a(f"s_cmp_lt_u32 {sr(sT0)}, 64")
    a("s_cbranch_scc0 L_other")
    for k in range(4): a(f"v_mov_b32 {vr(16+k)}, -1")
    a(f"s_mul_i32 {sr(sT0)}, s2, 3712")
    for k in range(3): a(f"buffer_store_dwordx4 v[16:19], v8, {sr(RWS,4)}, {sr(sT0)} offen offset:{k*1024} sc1")
    a("s_mov_b32 exec_hi, 0xff")
    a(f"buffer_store_dwordx4 v[16:19], v8, {sr(RWS,4)}, {sr(sT0)} offen offset:3072 sc1")
    a("s_mov_b32 exec_hi, -1")
    a("s_branch L_other")
    g.lab("L_q1")
    def common2():
        a(f"s_and_b32 {sr(sCLS)}, s2, 7")
        a(f"s_lshr_b32 {sr(sY)}, s2, 3")
        a(f"s_getreg_b32 {sr(sXCC)}, hwreg(HW_REG_XCC_ID, 0, 3)")
        a(f"s_or_b32 {sr(sXCC)}, {sr(sXCC)}, 0x80")
        a(f"v_mov_b32 {vr(vONE)}, 1")
        a(f"s_cmp_lt_u32 {sr(sY)}, {8+NF}")
        a(f"s_cselect_b32 {sr(sROLE)}, 2, 0")
        a(f"s_cmp_eq_u32 {sr(sCLS)}, {XF}")
        a(f"s_cselect_b32 {sr(sROLE)}, {sr(sROLE)}, 0")
        a(f"s_cmp_lt_u32 {sr(sY)}, 8")
        a(f"s_cselect_b32 {sr(sROLE)}, 1, {sr(sROLE)}")

    hW = 64
    if qprio: a(f"s_setprio {qprio}")
    if 'noq' in dbg:
        a("v_mov_b32 v34, 1")
        a(f"ds_write_b32 {vr(vZ)}, v34 offset:{C_Q}")
        a(f"ds_write_b32 {vr(vZ)}, v34 offset:{C_QP}")
        a("s_branch L_end")
    for k in range(4): a(f"v_mov_b32 {vr(16+k)}, -1")
    a(f"s_lshl_b32 {sr(sU0)}, {sr(sSLOT)}, 7")
    a(f"s_add_u32 {sr(sU0)}, {sr(sU0)}, {WS_QF}")
    a("s_mov_b64 exec, 0xff")
    a(f"buffer_store_dwordx4 v[16:19], v8, {sr(RWS,4)}, {sr(sU0)} offen")
    a("s_mov_b64 exec, -1")
    a(f"v_lshlrev_b32 v12, 5, {vr(vLANE)}")
    srd(R0, sX, None, 2048)
    a(f"buffer_load_dwordx4 v[20:23], v12, {sr(R0,4)}, 0 offen")
    a(f"buffer_load_dwordx4 v[128:131], v12, {sr(R0,4)}, 0 offen offset:16")
    a(f"v_lshlrev_b32 v11, 13, {vr(vG)}")
    a(f"v_lshl_add_u32 v11, {vr(vI)}, 4, v11")
    a(f"v_lshl_add_u32 v63, {vr(vI)}, 2, {vr(vG)}")
    a("v_lshlrev_b32 v63, 1, v63")
    a(f"s_lshl_b32 {sr(sT0)}, {sr(sH)}, 8")
    a(f"s_lshl_b32 {sr(sSO)}, {sr(sSUB)}, 19")
    srd(R1, sWQ, sT0, 511*8192 + 256)
    a(f"s_mov_b32 {sr(sU3)}, 0")
    g.lab("L_qload")
    a(f"s_lshr_b32 {sr(sT2)}, {sr(sSO)}, 12")
    a(f"buffer_load_ushort v14, v63, {sr(R0,4)}, {sr(sT2)} offen")
    a(f"buffer_load_ushort v15, v63, {sr(R0,4)}, {sr(sT2)} offen offset:1024")
    for t in range(16):
        a(f"buffer_load_dwordx4 {vr(hW+4*t,4)}, v11, {sr(R1,4)}, {sr(sSO)} offen nt")
        a(f"s_add_u32 {sr(sSO)}, {sr(sSO)}, 0x8000")
    a("s_branch L_q2")

    g.lab("L_stream")
    vOFF = 8
    vQ, vP, vU = 12, 16, 20
    vMX, vL, vT = 22, 23, 24
    vACC, vA, vF, vS, vRING = 28, 32, 40, 48, 64
    NR = N0
    assert vRING + 4*NR <= 249
    sJW, sK0, sPA = sU1, sU2, sM0
    a(f"s_lshl_b32 {sr(sT0)}, {sr(sB)}, 5")
    a(f"s_add_u32 {sr(sT0)}, {sr(sT0)}, {sr(sH)}")
    a(f"s_lshl_b32 {sr(sT0)}, {sr(sT0)}, 20")
    srd(R0, sK, sT0, 1 << 20)
    first = True
    for (reg, bit), col in zip([(sW4, 0), (sW4, 1), (2, 5), (2, 6)] + [(2, k) for k in range(5)] + [(2, 7)], lin[8:18]):
        if col:
            a(f"s_bitcmp1_b32 {sr(reg)}, {bit}")
            a(f"s_cselect_b32 {sr(sJW if first else sT2)}, {col << 8:#x}, 0")
            if not first: a(f"s_xor_b32 {sr(sJW)}, {sr(sJW)}, {sr(sT2)}")
            first = False
    ops = [('pf', m) for m in range(npf)]
    landed = [-1]
    def wait_vm(n):
        a(f"s_waitcnt vmcnt({n})")
        landed[0] = max(landed[0], len(ops) - 1 - n)
    def slot(n): return vRING + (n % NR) * 4
    done = set()
    kmax = max(kF, kX + kO)
    def issue(n):
        assert n < NR or (n - NR) in done, n
        c_ = 0
        for k in range(6):
            if n >> k & 1: c_ ^= lin[2 + k]
        a(f"s_xor_b32 {sr(sSO)}, {sr(sJW)}, {c_ << 8:#x}")
        def cnt(d):
            k = c = 0
            for o in reversed(ops):
                if o[0] != 'x':
                    if k == d - 1: break
                    k += 1
                c += 1
            return c
        if n >= 128 - NE:
            wait_vm(cnt(DE))
        elif ck and n > ck[0] + lag:
            bit_ = min(31, min([c + lag for c in ck if c + lag >= n] + [127 - NE]) - n)
            a(f"s_bitcmp1_b32 {sr(sPA)}, {bit_}")
            mid, low = cnt(D), cnt(lo)
            wait_vm(cnt(win))
            a(f"s_cbranch_scc1 L_w{n}")
            a(f"s_bitcmp0_b32 {sr(sPA+1)}, {bit_}")
            a(f"s_waitcnt vmcnt({mid})")
            a(f"s_cbranch_scc1 L_w{n}")
            a(f"s_waitcnt vmcnt({low})")
            g.lab(f"L_w{n}")
        elif n >= 6 and (n & 31) < kmax:
            a(f"s_cmp_gt_u32 {sr(sK0)}, {n & 31}")
            mid = cnt(D)
            wait_vm(cnt(DH))
            a(f"s_cbranch_scc1 L_w{n}")
            a(f"s_waitcnt vmcnt({mid})")
            g.lab(f"L_w{n}")
        elif len(ops) >= D:
            wait_vm(cnt(D))
        a(f"buffer_load_dwordx4 {vr(slot(n),4)}, {vr(vOFF)}, {sr(R0 if n < 64 else R1,4)}, {sr(sSO)} offen nt")
        ops.append(('ld', n))
    def has(key): return key in ops and ops.index(key) <= landed[0]
    chunks = []
    def k_item(n):
        def f():
            r = n & 3
            for k in range(4):
                a(f"v_dot2_f32_bf16 {vr(vP+r)}, {vr(slot(n)+k)}, {vr(vQ+k)}, {'0' if k == 0 else vr(vP+r)}")
        chunks.append((('ld', n), 5, f, n))
    def k_block(t):
        def f():
            s = vS + t
            a(f"v_add_f32_dpp {vr(vU)}, {vr(vP)}, {vr(vP)} row_ror:8 row_mask:0xf bank_mask:0x3")
            a(f"v_add_f32_dpp {vr(vU+1)}, {vr(vP+1)}, {vr(vP+1)} row_ror:8 row_mask:0xf bank_mask:0x3")
            a(f"v_add_f32_dpp {vr(vU)}, {vr(vP+2)}, {vr(vP+2)} row_ror:8 row_mask:0xf bank_mask:0xc")
            a(f"v_add_f32_dpp {vr(vU+1)}, {vr(vP+3)}, {vr(vP+3)} row_ror:8 row_mask:0xf bank_mask:0xc")
            a("s_nop 0")
            a(f"v_add_f32_dpp {vr(s)}, {vr(vU)}, {vr(vU)} row_shl:4 row_mask:0xf bank_mask:0x5")
            a(f"v_add_f32_dpp {vr(s)}, {vr(vU+1)}, {vr(vU+1)} row_shr:4 row_mask:0xf bank_mask:0xa")
            a("s_nop 1")
            a(f"v_add_f32_dpp {vr(s)}, {vr(s)}, {vr(s)} quad_perm:[1,0,3,2] {DPPF}")
            a("s_nop 1")
            a(f"v_add_f32_dpp {vr(s)}, {vr(s)}, {vr(s)} quad_perm:[2,3,0,1] {DPPF}")
            rnd(s, s)
            a(f"v_mul_f32 {vr(s)}, {sr(sC1)}, {vr(s)}")
            rnd(s, s)
            a(f"v_max_f32 {vr(vMX)}, {vr(vMX)}, {vr(s)}")
        chunks.append((None, 19, f, None))
    def v_item(n):
        def f():
            m = n - 64
            t, r = m >> 2, m & 3
            A = vA + 4 * (m & 1)
            if her and n == 128 - her:
                a("s_mov_b64 exec, 1")
                a(f"buffer_store_byte {vr(vZ)}, {vr(vZ)}, {sr(RWS,4)}, {sr(sU0)} offen")
                a("s_mov_b64 exec, -1")
                ops.append(('x', 'mark'))
            for k in range(4):
                a(f"v_and_b32_dpp {vr(A+k)}, {vr(vS+t)}, {vr(vMASK+k)} row_newbcast:{4*r} {DPPF}")
            if has(('ld', n)):
                a("s_nop 1")
            else:
                a("s_nop 0")
                wait_vm(len(ops) - 1 - ops.index(('ld', n)))
            a(f"v_mfma_f32_16x16x32_bf16 {vr(vACC,4)}, {vr(A,4)}, {vr(slot(n),4)}, {'0' if m == 0 else vr(vACC,4)}")
        chunks.append((('ld', n), 8, f, n))
    for t in range(16):
        for r in range(4): k_item(4*t + r)
        k_block(t)
    def c_max():
        stamp(3)
        allred("v_max_f32", vMX, vT, quad=False)
        a(f"v_mul_f32 {vr(vMX)}, {sr(sC0)}, {vr(vMX)}")
        a(f"v_mov_b32 {vr(vL)}, 0")
    chunks.append((None, 24, c_max, None))
    for t0 in range(0, 16, 4):
        def f(t0=t0):
            rs_ = [vS + t for t in range(t0, t0 + 4)]
            for s in rs_: a(f"v_fma_f32 {vr(s)}, {vr(s)}, {sr(sC0)}, -{vr(vMX)}")
            for s in rs_: a(f"v_exp_f32 {vr(s)}, {vr(s)}")
            for s in rs_:
                a(f"v_add_f32 {vr(vL)}, {vr(vL)}, {vr(s)}")
                a(f"v_cvt_pk_bf16_f32 {vr(s)}, {vr(s)}, {vr(s)}")
        chunks.append((None, 20, f, None))
    sum_done = [False]
    def c_sum():
        allred("v_add_f32", vL, vT, quad=False)
        a(f"s_lshl_b32 {sr(sT0)}, {sr(sW4)}, 3")
        a(f"v_mov_b32 {vr(vT)}, {sr(sT0)}")
        a("s_mov_b64 exec, 1")
        a(f"ds_write_b64 {vr(vT)}, {vr(vMX,2)} offset:{L_ST}")
        a(f"ds_add_u32 {vr(vZ)}, {vr(vONE)} offset:{C_STAT}")
        a("s_mov_b64 exec, -1")
        sum_done[0] = True
    chunks.append((None, 28, c_sum, None))
    for n in range(64, 128): v_item(n)
    def x_fw():
        assert sum_done[0]
        g.lab("L_fw")
        a(f"ds_read_b32 v20, {vr(vZ)} offset:{C_FW}")
        a(f"ds_read_b128 {vr(vF,4)}, {vr(vZ)} offset:{L_FW}")
        a("s_waitcnt lgkmcnt(0)")
        a(f"v_readfirstlane_b32 {sr(sLOC)}, v20")
        a(f"s_cmp_eq_u32 {sr(sLOC)}, 0")
        a("s_cbranch_scc1 L_fw")
        stamp(4)
    def x_trig():
        a(f"ds_write_b32 {vr(vZ)}, {vr(vONE)} offset:{C_TRIG}")
    def x_trig2():
        a("s_mov_b64 exec, 1")
        a(f"ds_add_u32 {vr(vZ)}, {vr(vONE)} offset:{C_TRIG2}")
        a("s_mov_b64 exec, -1")
    extra = {NSTAT: x_fw, NTRIG: x_trig, NT2: x_trig2}
    pre_extra = {}
    def x_ck():
        a("s_mov_b64 exec, 1")
        a(f"ds_add_u32 {vr(vZ)}, {vr(vONE)} offset:{C_CK}")
        a("s_mov_b64 exec, -1")
    def p_pat(): a(f"ds_read2_b32 v[44:45], {vr(vZ)} offset0:{C_PAT//4} offset1:{C_PT2//4}")
    def x_pat():
        a("s_waitcnt lgkmcnt(0)")
        a(f"v_readfirstlane_b32 {sr(sPA)}, v44")
        a(f"v_readfirstlane_b32 {sr(sPA+1)}, v45")
    extra[ck0] = x_ck
    for c in ck:
        for n_, f_ in ((c, x_ck), (c + lag, x_pat), (c + lag + 4, x_pat)):
            assert n_ not in extra, n_
            extra[n_] = f_
            if f_ is x_pat: pre_extra[n_] = p_pat
    if 'nox' in dbg: extra = {}
    ci = [0]
    def run_chunks(bud, force=False):
        while ci[0] < len(chunks):
            needs, cost, fn, frees = chunks[ci[0]]
            if not force:
                if needs is not None and not has(needs): break
                if cost > bud: break
            if 'nocomp' not in dbg or force or fn is c_sum: fn()
            bud -= cost; ci[0] += 1
            if frees is not None: done.add(frees)
    for n in range(N0):
        if n in pre_extra: pre_extra[n]()
        issue(n)
        if n in extra: extra[n]()
        if n == 1:
            srd(R1, sV, sT0, 1 << 20)
            common2()
            a(f"s_lshl_b32 {sr(sSLOT)}, {sr(sSLOT)}, 9")
            a(f"s_mov_b32 {sr(sC0)}, {LOG2E:#x}")
            a(f"s_mov_b32 {sr(sC1)}, {SCALE:#x}")
            a(f"s_cmp_eq_u32 {sr(sCLS)}, {XF}")
            a(f"s_cselect_b32 {sr(sK0)}, {kX}, 0")
            a(f"s_cmp_eq_u32 {sr(sROLE)}, 1")
            a(f"s_cselect_b32 {sr(sT1)}, {kO}, 0")
            a(f"s_add_u32 {sr(sK0)}, {sr(sK0)}, {sr(sT1)}")
            a(f"s_cmp_eq_u32 {sr(sROLE)}, 2")
            a(f"s_cselect_b32 {sr(sK0)}, {kF}, {sr(sK0)}")
            if her is not None:
                a(f"s_lshl_b32 {sr(sU0)}, {sr(sCLS)}, 5")
                a(f"s_add_u32 {sr(sU0)}, {sr(sU0)}, {sr(sY)}")
                a(f"s_lshl2_add_u32 {sr(sU0)}, {sr(sU0)}, {sr(sW4)}")
                a(f"s_add_u32 {sr(sU0)}, {sr(sU0)}, {WS_HM}")
            make_masks(False)
            a(f"v_lshlrev_b32 v9, 4, {vr(vI)}")
            a("v_lshrrev_b32 v11, 1, v8")
            a(f"s_lshl_b32 {sr(sT1)}, {sr(sW4)}, 9")
            a(f"v_add_u32 v10, {sr(sT1)}, v8")
            a(f"v_mov_b32 {vr(vMX)}, 0xff800000")
    g.lab("L_qspin")
    a(f"ds_read_b32 {vr(vT)}, {vr(vZ)} offset:{C_Q}")
    a(f"ds_read_b128 {vr(vQ,4)}, v9 offset:{L_Q}")
    a("s_waitcnt lgkmcnt(0)")
    a(f"v_cmp_ne_u32 vcc, 1, {vr(vT)}")
    a("s_cbranch_vccnz L_qspin")
    stamp(2)
    run_chunks(5)
    for n in range(N0, 128):
        if n in pre_extra: pre_extra[n]()
        issue(n)
        if n in extra: extra[n]()
        if prof == 2 and n in (80, 96, 120): stamp({80: 7, 96: 8, 120: 9}[n])
        run_chunks(budget - (5 if n in extra else 0))
    run_chunks(0, force=True)
    a("s_mov_b32 exec_hi, 0")
    stamp(5)
    a(f"s_cmp_eq_u32 {sr(sLOC)}, {LOCV}")
    a(f"s_cselect_b32 {sr(sT1)}, 3, 7")
    if her == 0:
        a("s_mov_b32 exec_lo, 1")
        a(f"buffer_store_byte {vr(vZ)}, {vr(vZ)}, {sr(RWS,4)}, {sr(sU0)} offen")
        a("s_mov_b32 exec_lo, -1")
        a("s_nop 1")
    else: a("s_nop 4")
    a(f"ds_write_b128 v10, {vr(vACC,4)} offset:{L_O}")
    a("s_mov_b32 exec_lo, 1")
    a(f"ds_add_rtn_u32 v25, {vr(vZ)}, {vr(vONE)} offset:{C_COMB}")
    a("s_mov_b32 exec_lo, -1")
    for w in range(4): a(f"ds_read_b128 {vr(48+4*w,4)}, v8 offset:{L_O + w*512}")
    a("s_waitcnt lgkmcnt(3)")
    a(f"v_readfirstlane_b32 {sr(sT0)}, v25")
    def sel(w): return "op_sel_hi:[1,0,1]" if w % 2 == 0 else "op_sel:[0,1,0]"
    for k in (0, 2): a(f"v_pk_mul_f32 {vr(48+k,2)}, {vr(48+k,2)}, {vr(vF,2)} op_sel_hi:[1,0]")
    for w in range(1, 4):
        a(f"s_waitcnt lgkmcnt({3-w})")
        for k in (0, 2): a(f"v_pk_fma_f32 {vr(48+k,2)}, {vr(48+4*w+k,2)}, {vr(vF+(w&2),2)}, {vr(48+k,2)} {sel(w)}")
    a(f"s_cmp_eq_u32 {sr(sT0)}, {sr(sT1)}")
    a("v_cvt_pk_bf16_f32 v48, v48, v49")
    a("v_cvt_pk_bf16_f32 v49, v50, v51")
    a("s_cbranch_scc0 L_pub_far")
    a(f"buffer_store_dwordx2 v[48:49], v11, {sr(RWS,4)}, {sr(sSLOT)} offen")
    stamp(6)
    g.lab("L_sdone")
    a("s_branch L_fin" if prof else "s_endpgm")
    g.lab("L_pub_far")
    a(f"s_cmp_eq_u32 {sr(sT0)}, 3")
    a("s_cbranch_scc0 L_sdone")
    a(f"buffer_store_dwordx2 v[48:49], v11, {sr(RWS,4)}, {sr(sSLOT)} offen sc1")
    stamp(6)
    a("s_branch L_sdone")

    g.lab("L_q2")
    a(f"s_cmp_eq_u32 {sr(sU3)}, 0")
    a("s_cbranch_scc0 L_tile")
    common2()
    make_masks(True)
    a(f"v_and_b32 v12, 31, {vr(vLANE)}")
    a("v_lshlrev_b32 v12, 4, v12")
    a(f"v_lshrrev_b32 v13, 5, {vr(vLANE)}")
    a("v_lshl_add_u32 v60, v13, 10, v12")
    a(f"s_lshl_b32 {sr(sU1)}, {sr(sSLOT)}, 10")
    a(f"s_add_u32 {sr(sU1)}, {sr(sU1)}, {WS_QD}")
    a(f"s_lshl_b32 {sr(sT0)}, {sr(sH)}, 10")
    a(f"s_lshl2_add_u32 {sr(sT0)}, {sr(sSUB)}, {sr(sT0)}")
    a(f"s_add_u32 {sr(sT0)}, {sr(sT0)}, {WS_QF}")
    a(f"v_lshl_add_u32 v61, {vr(vLANE)}, 7, {sr(sT0)}")
    a(f"v_and_b32 v132, 7, {vr(vLANE)}")
    a("v_lshlrev_b32 v132, 2, v132")
    a(f"v_mov_b32 v133, {sr(sXCC)}")
    a(f"v_and_b32 v13, 1, {vr(vG)}")
    a("v_lshlrev_b32 v13, 3, v13")
    a(f"v_lshl_add_u32 v62, {vr(vI)}, 4, v13")
    for k in range(4): a(f"v_mov_b32 {vr(56+k)}, 0")
    a("s_waitcnt vmcnt(18)")
    for k in range(8):
        src = 20 + k if k < 4 else 124 + k
        a(f"v_and_b32 {vr(33+2*k)}, 0xffff0000, {vr(src)}")
        a(f"v_lshlrev_b32 {vr(32+2*k)}, 16, {vr(src)}")
    for k in range(4): a(f"v_pk_add_f32 {vr(48+2*k,2)}, {vr(32+4*k,2)}, {vr(34+4*k,2)}")
    a("v_pk_add_f32 v[48:49], v[48:49], v[50:51]")
    a("v_pk_add_f32 v[52:53], v[52:53], v[54:55]")
    a("v_pk_add_f32 v[48:49], v[48:49], v[52:53]")
    a("v_add_f32 v28, v48, v49")
    allred("v_add_f32", 28, 29, s32=False)
    a("v_mul_f32 v28, 0x3b000000, v28")
    for k in range(8): a(f"v_pk_add_f32 {vr(32+2*k,2)}, {vr(32+2*k,2)}, v[28:29] op_sel_hi:[1,0] neg_lo:[0,1] neg_hi:[0,1]")
    a("v_pk_mul_f32 v[30:31], v[32:33], v[32:33]")
    for k in range(1, 8): a(f"v_pk_fma_f32 v[30:31], {vr(32+2*k,2)}, {vr(32+2*k,2)}, v[30:31]")
    a("v_add_f32 v30, v30, v31")
    allred("v_add_f32", 30, 29, s32=False)
    a("v_mul_f32 v30, 0x3b000000, v30")
    ln_scale(28, 30)
    a("v_mov_b32 v29, v28")
    a("v_mov_b32 v31, v30")
    a("s_nop 1")
    a("v_permlane32_swap_b32 v28, v29")
    a("v_permlane32_swap_b32 v30, v31")
    g.lab("L_tile")
    a("s_waitcnt vmcnt(16)")
    a("v_lshlrev_b32 v14, 16, v14")
    a("v_lshlrev_b32 v15, 16, v15")
    a("v_sub_f32 v14, v14, v28")
    a("v_sub_f32 v15, v15, v29")
    rnd(14, 14); rnd(15, 15)
    a("v_mul_f32 v14, v14, v30")
    a("v_mul_f32 v15, v15, v31")
    a("v_cvt_pk_bf16_f32 v14, v14, v14")
    a("v_cvt_pk_bf16_f32 v15, v15, v15")
    a("s_nop 0")
    for t in range(16):
        a(f"v_mov_b32_dpp {vr(40+t)}, v14 row_newbcast:{t} row_mask:0xf bank_mask:0x3")
        a(f"v_mov_b32_dpp {vr(40+t)}, v15 row_newbcast:{t} row_mask:0xf bank_mask:0xc")
    for t in range(16):
        A = 32 + 4 * (t & 1)
        for k in range(4): a(f"v_and_b32 {vr(A+k)}, {vr(40+t)}, {vr(vMASK+k)}")
        a(f"s_waitcnt vmcnt({15-t})")
        a("s_nop 0")
        a(f"v_mfma_f32_16x16x32_bf16 v[56:59], {vr(A,4)}, {vr(hW+4*t,4)}, v[56:59]")
    a(f"s_cmp_eq_u32 {sr(sU3)}, 0")
    a(f"ds_write_b32 {vr(vZ)}, {vr(vONE)} offset:{C_QP}")
    a("s_nop 4")
    a("s_cbranch_scc0 L_qmore")
    stamp(3)
    if 'noxch' in dbg: a("s_branch L_qput")
    a(f"buffer_store_dwordx4 v[56:59], v8, {sr(RWS,4)}, {sr(sU1)} offen")
    a(f"s_lshl_b32 {sr(sT0)}, {sr(sH)}, 13")
    a(f"s_lshl_b32 {sr(sT1)}, {sr(sB)}, 9")
    a(f"s_add_u32 {sr(sT0)}, {sr(sT0)}, {sr(sT1)}")
    a(f"s_add_u32 {sr(sT0)}, {sr(sT0)}, {WS_QD}")
    a(f"s_add_u32 {sr(sT1)}, {sr(sT0)}, 4096")
    a("s_mov_b64 exec, 0xff")
    a("s_waitcnt vmcnt(0)")
    if not forcefb: a(f"buffer_store_dword v133, v61, {sr(RWS,4)}, 0 offen")
    a("s_mov_b64 exec, -1")
    poll("L_pollQ", [f"buffer_load_dword v32, v132, {sr(RWS,4)}, {sr(sU0)} offen sc1"], [32], 33, spin=QTRY, fail="L_qfail")
    a("v_cmp_ne_u32 vcc, v32, v133")
    a("s_cbranch_vccnz L_qfail")
    for u in range(4):
        a(f"buffer_load_dwordx4 {vr(32+4*u,4)}, v60, {sr(RWS,4)}, {sr(sT0 if u < 2 else sT1)} offen offset:{(u&1)*2048} sc1")
    a("s_waitcnt vmcnt(0)")
    a("v_pk_add_f32 v[32:33], v[32:33], v[36:37]"); a("v_pk_add_f32 v[34:35], v[34:35], v[38:39]")
    a("v_pk_add_f32 v[40:41], v[40:41], v[44:45]"); a("v_pk_add_f32 v[42:43], v[42:43], v[46:47]")
    a("v_pk_add_f32 v[32:33], v[32:33], v[40:41]"); a("v_pk_add_f32 v[34:35], v[34:35], v[42:43]")
    for k in range(4): a(f"v_mov_b32 {vr(36+k)}, {vr(32+k)}")
    for k in range(4): a(f"v_permlane32_swap_b32 {vr(32+k)}, {vr(36+k)}")
    a("v_pk_add_f32 v[56:57], v[32:33], v[36:37]"); a("v_pk_add_f32 v[58:59], v[34:35], v[38:39]")
    g.lab("L_qput")
    a("v_cvt_pk_bf16_f32 v32, v56, v57")
    a("v_cvt_pk_bf16_f32 v33, v58, v59")
    a(f"ds_write_b64 v62, v[32:33] offset:{L_Q}")
    a(f"ds_write_b32 {vr(vZ)}, {vr(vONE)} offset:{C_Q}")
    a("s_mov_b64 exec, -1")
    stamp(2)
    a("s_setprio 0")
    a(f"s_lshl_b32 {sr(sSLOT)}, {sr(sSLOT)}, 9")
    get_loc("L_locQ")
    lds_spin("L_waitst", C_STAT, 12, 4, sleep=8)
    a(f"ds_read_b128 v[12:15], {vr(vZ)} offset:{L_ST}")
    a(f"ds_read_b128 v[16:19], {vr(vZ)} offset:{L_ST+16}")
    a("s_waitcnt lgkmcnt(0)")
    a("v_max3_f32 v20, v12, v14, v16")
    a("v_max_f32 v20, v20, v18")
    for w in range(4): a(f"v_sub_f32 {vr(28+w)}, {vr(12+2*w)}, v20")
    for w in range(4): a(f"v_exp_f32 {vr(28+w)}, {vr(28+w)}")
    a(f"v_mov_b32 v12, {sr(sLOC)}")
    a("v_mul_f32 v21, v28, v13")
    for w in range(1, 4): a(f"v_fmac_f32 v21, {vr(28+w)}, {vr(13+2*w)}")
    a("v_rcp_f32 v13, v21")
    a("v_lshrrev_b32 v14, 1, v8")
    a(f"s_mov_b64 exec, 0xffff")
    a(f"s_cmp_eq_u32 {sr(sLOC)}, {LOCV}")
    a("s_cbranch_scc1 L_st_loc")
    a(f"buffer_store_dwordx2 v[20:21], v14, {sr(RWS,4)}, {sr(sSLOT)} offen offset:256 sc1")
    a("s_branch L_st_done")
    g.lab("L_st_loc")
    a(f"buffer_store_dwordx2 v[20:21], v14, {sr(RWS,4)}, {sr(sSLOT)} offen offset:256")
    g.lab("L_st_done")
    for w in range(4): a(f"v_mul_f32 {vr(28+w)}, {vr(28+w)}, v13")
    a(f"ds_write_b128 {vr(vZ)}, v[28:31] offset:{L_FW}")
    a(f"ds_write_b32 {vr(vZ)}, v12 offset:{C_FW}")
    a("s_mov_b64 exec, -1")
    a(f"s_cmp_eq_u32 {sr(sROLE)}, 0")
    a("s_cbranch_scc1 L_end" if prof == 2 else "s_cbranch_scc1 L_fin")
    a("s_branch L_role")
    g.lab("L_qfail")
    a(f"s_mov_b32 {sr(sU3)}, 8")
    g.lab("L_qmore")
    a(f"s_and_b32 {sr(sSO)}, {sr(sSO)}, 0x3fffff")
    a(f"s_sub_u32 {sr(sU3)}, {sr(sU3)}, 1")
    a(f"s_cmp_eq_u32 {sr(sU3)}, 0")
    a("s_cbranch_scc0 L_qload")
    a(f"s_lshl_b32 {sr(sT0)}, {sr(sB)}, 5")
    a(f"s_bfm_b64 exec, 32, {sr(sT0)}")
    a("s_branch L_qput")

    g.lab("L_other")
    common2()
    a(f"s_cmp_eq_u32 {sr(sW4)}, 3")
    a("s_cbranch_scc0 L_nokeep")
    a(f"s_cmp_lt_u32 {sr(sY)}, 3")
    a("s_cbranch_scc0 L_nocp")
    g.c("pull the kernel's own code into this die's L2")
    a(f"s_getpc_b64 {sr(sT2,2)}")
    g.lab("L_pc")
    a(f"s_sub_u32 {sr(sT2)}, {sr(sT2)}, L_pc-{NAME}_kernel")
    a(f"s_subb_u32 {sr(sT3)}, {sr(sT3)}, 0")
    a(f"s_lshl_b32 {sr(sT0)}, {sr(sY)}, 13")
    a(f"v_lshl_add_u32 v28, {vr(vLANE)}, 7, {sr(sT0)}")
    a(f"v_min_u32 v28, L_end-{NAME}_kernel, v28")
    a(f"global_load_dword v248, v28, {sr(sT2,2)}")
    g.lab("L_nocp")
    g.c("wave 7, pace keeper: checks the sign-ins once the stream is under way; then, at each checkpoint, the arrival")
    g.c("order among 32 workgroups spread over the chip decides for how many of the next steps this workgroup keeps")
    g.c("more (late) or fewer (early) reads in flight, so that all workgroups finish their stream together")
    def ck_wait(label):
        g.lab(label)
        a(f"ds_read_b32 v12, {vr(vZ)} offset:{C_CK}")
        a("s_sleep 2")
        a("v_mov_b32 v25, 1")
        a("s_waitcnt lgkmcnt(0)")
        a(f"v_cmp_gt_u32 vcc, {sr(sU1)}, v12")
        a(f"s_cbranch_vccnz {label}")
    if her is not None:
        a(f"s_lshl_b32 {sr(sC1)}, {sr(sCLS)}, 7")
        a(f"s_add_u32 {sr(sC1)}, {sr(sC1)}, {WS_HM}")
        a(f"v_and_b32 v30, 31, {vr(vLANE)}")
        a("v_lshlrev_b32 v30, 2, v30")
        a(f"s_cmp_eq_u32 {sr(sY)}, 31")
        a("s_cbranch_scc0 L_nohc")
        a("v_mov_b32 v31, -1")
        a(f"buffer_store_dword v31, v30, {sr(RWS,4)}, {sr(sC1)} offen")
        g.lab("L_nohc")
    a(f"s_mov_b32 {sr(sU1)}, 4")
    ck_wait("L_ck0")
    wait_flags("L_cnt", 12)
    a(f"v_mov_b32 v12, {sr(sLOC)}")
    a(f"ds_write_b32 {vr(vZ)}, v12 offset:{C_LOC}")
    if ck:
        a(f"s_and_b32 {sr(sU0)}, {sr(sY)}, 7")
        a(f"s_lshl_b32 {sr(sU0)}, {sr(sU0)}, 9")
        a(f"s_cmp_eq_u32 {sr(sROLE)}, 1")
        a(f"s_cselect_b32 {sr(sU2)}, {gO}, 0")
        a(f"s_cmp_eq_u32 {sr(sCLS)}, {XF}")
        a(f"s_cselect_b32 {sr(sU2)}, {gX}, {sr(sU2)}")
        a(f"s_cselect_b32 {sr(sC0)}, -64, {r1 - 1}")
        a(f"s_cmp_eq_u32 {sr(sROLE)}, 2")
        a(f"s_cselect_b32 {sr(sU2)}, {gF}, {sr(sU2)}")
        a(f"s_mov_b32 {sr(sU1)}, 8")
        a("s_mov_b64 exec, 1")
        ck_wait("L_ck")
        a(f"buffer_atomic_add v25, {vr(vZ)}, {sr(RWS,4)}, {sr(sU0)} offen offset:384 sc0 sc1")
        a(f"s_add_u32 {sr(sU0)}, {sr(sU0)}, 4096")
        a("s_waitcnt vmcnt(0)")
        a(f"v_readfirstlane_b32 {sr(sT1)}, v25")
        for k_ in range(2):
            if k_ == 0: a(f"s_sub_i32 {sr(sT0)}, {sr(sT1)}, {r0 - 1}")
            else: a(f"s_sub_i32 {sr(sT0)}, {sr(sC0)}, {sr(sT1)}")
            a(f"s_max_i32 {sr(sT0)}, {sr(sT0)}, 0")
            a(f"s_mul_i32 {sr(sT0)}, {sr(sT0)}, {sr(sT0)}")
            a(f"s_lshr_b32 {sr(sT0)}, {sr(sT0)}, {sh1 if k_ else sh}")
            if k_ == 0: a(f"s_add_u32 {sr(sT0)}, {sr(sT0)}, {sr(sU2)}")
            a(f"s_min_u32 {sr(sT0)}, {sr(sT0)}, 32")
            a(f"s_bfm_b64 {sr(sT2,2)}, {sr(sT0)}, 0")
            a(f"v_mov_b32 {vr(14+k_)}, {sr(sT2)}")
        a(f"ds_write2_b32 {vr(vZ)}, v14, v15 offset0:{C_PAT//4} offset1:{C_PT2//4}")
        a(f"s_add_u32 {sr(sU1)}, {sr(sU1)}, 4")
        a(f"s_cmp_le_u32 {sr(sU1)}, {4*len(ck) + 4}")
        a("s_cbranch_scc1 L_ck")
        a("s_mov_b64 exec, -1")
    if her is not None:
        g.c("herald: tells the FFN workgroups when this class's streams are about to end, so that they read the")
        g.c("out-projection partials once, after they have been written")
        a(f"s_cmp_eq_u32 {sr(sY)}, 31")
        a("s_cbranch_scc0 L_nokeep")
        lds_spin("L_htr", C_TRIG, 12, 1, sleep=2)
        a(f"s_cmp_eq_u32 {sr(sLOC)}, {LOCV}")
        a(f"s_cselect_b32 {sr(sSPIN)}, {HTRY}, 0")
        a(f"s_lshl_b32 {sr(sT0)}, {sr(sCLS)}, 9")
        a(f"s_add_u32 {sr(sT0)}, {sr(sT0)}, {WS_GO}")
        g.lab("L_her")
        a(f"buffer_load_dword v31, v30, {sr(RWS,4)}, {sr(sC1)} offen sc1")
        a(f"s_sub_u32 {sr(sSPIN)}, {sr(sSPIN)}, 1")
        a("s_cbranch_scc1 L_her_x")
        a("s_waitcnt vmcnt(0)")
        a("v_cmp_ne_u32 vcc, 0, v31")
        a("s_cbranch_vccnz L_her")
        g.lab("L_her_x")
        a("s_mov_b64 exec, 1")
        a(f"buffer_store_dword {vr(vZ)}, {vr(vZ)}, {sr(RWS,4)}, {sr(sT0)} offen sc1")
        a("s_mov_b64 exec, -1")
        stamp(7)
    g.lab("L_nokeep")
    a(f"s_cmp_eq_u32 {sr(sROLE)}, 0")
    a("s_cbranch_scc1 L_end" if prof == 2 else "s_cbranch_scc1 L_fin")
    srd(R0, sX, None, 2048)
    make_masks(True)
    a(f"s_cmp_eq_u32 {sr(sW4)}, 2")
    a("s_cbranch_scc0 L_role")
    g.lab("L_sign")
    a(f"s_lshl_b32 {sr(sT0)}, {sr(sCLS)}, 5")
    a(f"s_add_u32 {sr(sT0)}, {sr(sT0)}, {sr(sY)}")
    a(f"s_lshl_b32 {sr(sT1)}, {sr(sY)}, 3")
    a(f"s_lshl_b32 {sr(sT1)}, {sr(sXCC)}, {sr(sT1)}")
    a(f"s_and_b32 {sr(sT0)}, {sr(sT0)}, -4")
    a(f"v_mov_b32 v12, {sr(sT0)}")
    a(f"v_mov_b32 v13, {sr(sT1)}")
    a("s_waitcnt vmcnt(0)")
    a("s_mov_b64 exec, 1")
    a(f"global_atomic_or v12, v13, {sr(sDBG,2)} sc1")
    a("s_mov_b64 exec, -1")
    g.lab("L_role")
    if 'norole' in dbg: a("s_branch L_fin")
    a("s_setprio 1")
    lds_spin("L_ldw", C_QP, 12, 1, sleep=4)
    a(f"s_cmp_eq_u32 {sr(sROLE)}, 2")
    a("s_cbranch_scc1 L_roleF")
    def staged():
        a("s_waitcnt vmcnt(0)")
        a(f"ds_write_b32 {vr(vZ)}, {vr(vONE)} offset:{C_STG}")
        stamp(3)

    vB = 64
    a(f"s_lshl_b32 {sr(sU1)}, {sr(sY)}, 7")
    a(f"s_cmp_eq_u32 {sr(sW4)}, 1")
    a("s_cbranch_scc0 L_Oset")
    a(f"s_lshl_b32 {sr(sT0)}, {sr(sCLS)}, 17")
    a(f"s_add_u32 {sr(sT0)}, {sr(sT0)}, {sr(sU1)}")
    srd(R2, sWO, sT0, 3*(1 << 20) + 127*1024 + 128)
    a(f"v_lshrrev_b32 v12, 3, {vr(vLANE)}")
    a(f"v_and_b32 v13, 7, {vr(vLANE)}")
    a("v_lshlrev_b32 v12, 10, v12")
    a("v_lshl_add_u32 v12, v13, 4, v12")
    a(f"s_mov_b32 {sr(sSO)}, 0")
    a(f"s_mov_b32 {sr(sT3)}, {L_W}")
    g.lab("L_ldO")
    a(f"s_mov_b32 m0, {sr(sT3)}")
    a(f"s_waitcnt vmcnt({WO-1})")
    if 'noO' not in dbg: a(f"buffer_load_dwordx4 v12, {sr(R2,4)}, {sr(sSO)} offen nt lds")
    a(f"s_add_u32 {sr(sSO)}, {sr(sSO)}, 0x2000")
    a(f"s_bitcmp1_b32 {sr(sSO)}, 17")
    a(f"s_cselect_b32 {sr(sT0)}, {(1 << 20) - (1 << 17)}, 0")
    a(f"s_add_u32 {sr(sSO)}, {sr(sSO)}, {sr(sT0)}")
    a(f"s_add_u32 {sr(sT3)}, {sr(sT3)}, 1024")
    a(f"s_cmp_lt_u32 {sr(sT3)}, {L_W + 65536}")
    a("s_cbranch_scc1 L_ldO")
    staged()
    g.lab("L_Oset")
    if 'ldonly' in dbg: a("s_branch L_fin")
    a(f"s_lshl3_add_u32 {sr(sU0)}, {sr(sW4)}, {sr(sCLS)}")
    a(f"s_lshl_b32 {sr(sU0)}, {sr(sU0)}, 12")
    a(f"v_bfe_u32 v13, {vr(vLANE)}, 3, 1")
    a(f"v_bfe_u32 v12, {vr(vLANE)}, 2, 1")
    a("v_lshl_add_u32 v13, v13, 4, v12")
    a(f"v_lshrrev_b32 v23, 1, {vr(vG)}")
    a("v_lshl_add_u32 v13, v23, 5, v13")
    a(f"v_and_b32 v24, 1, {vr(vG)}")
    a("v_lshl_add_u32 v13, v24, 3, v13")
    a(f"v_and_b32 v12, 3, {vr(vLANE)}")
    a("v_lshlrev_b32 v12, 3, v12")
    a("v_lshl_add_u32 v13, v13, 7, v12")
    a(f"s_lshl_b32 {sr(sT3)}, {sr(sW4)}, 14")
    a(f"v_add_u32 v13, {sr(sT3)}, v13")
    lds_spin("L_stgO", C_STG, 12, 1, sleep=4)
    for nu in range(4):
        for u in range(2):
            for p in range(4):
                row = 64*(p >> 1) + 4*u + 2*(p & 1)
                a(f"ds_read_b64_tr_b16 {vr(vB+16*nu+8*u+2*p,2)}, v13 offset:{L_W + row*128 + nu*32}")
        a("s_waitcnt lgkmcnt(0)")
    a(f"v_lshrrev_b32 v10, 1, {vr(vI)}")
    a("v_lshlrev_b32 v10, 9, v10")
    a(f"v_and_b32 v11, 1, {vr(vI)}")
    a("v_lshl_add_u32 v10, v11, 4, v10")
    a(f"v_lshl_add_u32 v10, {vr(vG)}, 5, v10")
    a("v_mul_u32_u24 v22, 0xaaaa, v11")
    a("v_add_u32 v22, 0x4444, v22")
    a(f"s_lshl_b32 {sr(sT2)}, {sr(sW4)}, 10")
    a(f"v_add_u32 v11, {sr(sT2)}, v8")
    a("v_lshlrev_b32 v21, 10, v23")
    a(f"v_and_b32 v12, 31, {vr(vLANE)}")
    a("v_lshl_add_u32 v21, v12, 2, v21")
    a("v_lshlrev_b32 v23, 11, v23")
    a(f"s_lshl_b32 {sr(sT2)}, {sr(sCLS)}, 11")
    a(f"s_add_u32 {sr(sT2)}, {sr(sT2)}, {sr(sU1)}")
    a(f"s_add_u32 {sr(sC0)}, {sr(sT2)}, {WS_A}")
    get_loc("L_locO")
    a(f"s_mov_b32 {sr(sU2)}, 3")
    a(f"s_cmp_eq_u32 {sr(sCLS)}, {XF}")
    a("s_cbranch_scc0 L_noR")
    vRX, vRB, vRO, vRA, vRY = 128, 129, 130, 131, 132
    a(f"v_and_b32 v14, 7, {vr(vLANE)}")
    a("v_lshlrev_b32 v13, 2, v14")
    a(f"global_load_dword v15, v13, {sr(sDBG,2)} offset:{XF*32} sc1")
    a(f"s_mul_i32 {sr(sT3)}, {sr(sXCC)}, 0x01010101")
    a(f"s_lshl2_add_u32 {sr(sT0)}, {sr(sY)}, {sr(sW4)}")
    a(f"s_lshl_b32 {sr(sT1)}, {sr(sT0)}, 7")
    a(f"s_add_u32 {sr(sT1)}, {sr(sT1)}, {WS_Y}")
    srd(R3, sWS, sT1, (NF-1)*4096 + 128)
    a(f"s_lshr_b32 {sr(sT0)}, {sr(sY)}, 1")
    a(f"s_lshl_b32 {sr(sT0)}, {sr(sT0)}, 8")
    a(f"s_and_b32 {sr(sC1)}, {sr(sY)}, 1")
    a(f"s_lshl_b32 {sr(sT1)}, {sr(sC1)}, 6")
    a(f"s_add_u32 {sr(sT1)}, {sr(sT1)}, {sr(sT0)}")
    a(f"s_lshl4_add_u32 {sr(sT1)}, {sr(sW4)}, {sr(sT1)}")
    a(f"v_bfe_u32 v12, {vr(vLANE)}, 4, 1")
    a("v_lshlrev_b32 v12, 7, v12")
    a("v_lshl_add_u32 v12, v14, 1, v12")
    a(f"v_add_u32 v12, {sr(sT1)}, v12")
    a(f"v_lshrrev_b32 v13, 5, {vr(vLANE)}")
    a(f"v_lshl_add_u32 {vr(vRO)}, v13, 10, v12")
    srd(R2, sB2, None, 1024)
    srd(R1, sOUT, None, 2048)
    a(f"buffer_load_ushort {vr(vRX)}, {vr(vRO)}, {sr(R0,4)}, 0 offen")
    a(f"buffer_load_ushort {vr(vRB)}, v12, {sr(R2,4)}, 0 offen")
    a(f"buffer_load_ushort v16, {vr(vRO)}, {sr(R1,4)}, 0 offen")
    a(f"v_lshrrev_b32 v12, 3, {vr(vLANE)}")
    a("v_lshlrev_b32 v13, 11, v12")
    a("v_lshl_add_u32 v13, v14, 2, v13")
    a(f"s_lshl_b32 {sr(sT2)}, {sr(sW4)}, 5")
    a(f"s_add_u32 {sr(sT0)}, {sr(sT0)}, {sr(sT2)}")
    a(f"s_add_u32 {sr(sT0)}, {sr(sT0)}, {WS_A}")
    a(f"v_add_u32 {vr(vRA)}, {sr(sT0)}, v13")
    a(f"s_lshl_b32 {sr(sC1)}, {sr(sC1)}, 4")
    a(f"s_sub_u32 {sr(sC1)}, 16, {sr(sC1)}")
    a("v_lshlrev_b32 v12, 12, v12")
    a(f"v_lshl_add_u32 {vr(vRY)}, v14, 4, v12")
    for u in range(1, 3): a(f"v_add_u32 {vr(vRY+u)}, {u*0x8000}, {vr(vRY)}")
    a("v_cmp_eq_u32 vcc, 7, v14")
    a("v_mov_b32 v13, 16")
    a("s_waitcnt vmcnt(0)")
    a("v_cndmask_b32 v13, 0, v13, vcc")
    a(f"v_xor_b32 v15, {sr(sT3)}, v15")
    a("v_lshlrev_b32 v15, v13, v15")
    a("v_cmp_ne_u32 vcc, 0, v15")
    a(f"v_lshlrev_b32 {vr(vRX)}, 16, {vr(vRX)}")
    a(f"v_lshlrev_b32 {vr(vRB)}, 16, {vr(vRB)}")
    a("s_cbranch_vccnz L_noR")
    if local: a(f"s_mov_b32 {sr(sU2)}, 7")
    g.lab("L_noR")
    poll("L_pollOs", [f"buffer_load_dwordx2 {vr(12+2*r,2)}, v23, {sr(RWS,4)}, {sr(sU0)} offen offset:{r*512+256} sc1" for r in range(4)],
         range(12, 20), 20, sleep=24)
    a("v_max3_f32 v20, v12, v14, v16")
    a("v_max_f32 v20, v20, v18")
    for r in range(4): a(f"v_sub_f32 {vr(28+r)}, {vr(12+2*r)}, v20")
    for r in range(4): a(f"v_exp_f32 {vr(28+r)}, {vr(28+r)}")
    a("v_cmp_eq_u32 vcc, 1, v24")
    for r in range(4): a(f"v_mul_f32 {vr(28+r)}, {vr(28+r)}, {vr(13+2*r)}")
    a("v_add_f32 v20, v28, v29")
    a("v_add_f32 v12, v30, v31")
    a("v_add_f32 v20, v20, v12")
    a("v_rcp_f32 v20, v20")
    for k in range(8): a(f"v_mov_b32 {vr(40+k)}, 0")
    a("v_cndmask_b32 v28, v28, v30, vcc")
    a("v_cndmask_b32 v29, v29, v31, vcc")
    for r in range(2): a(f"v_mul_f32 {vr(28+r)}, {vr(28+r)}, v20")
    stamp(4)
    lds_spin("L_trig", C_TRIG, 12, 1, sleep=2)
    stamp(5)
    def osm(nu, u): return f"v_smfmac_f32_16x16x64_bf16 {vr(32+4*nu,4)}, {vr(12+4*u,4)}, {vr(vB+16*nu+8*u,8)}, v22"
    poll("L_pollO", [f"buffer_load_dwordx4 {vr(12+4*u,4)}, v10, {sr(RWS,4)}, {sr(sU0)} offen offset:{u*128} sc1" for u in range(2)],
         range(12, 20), 20, pre=["s_nop 1"] + [f"v_mov_b32 {vr(32+k)}, 0" for k in range(8)] + ["s_nop 0"],
         spec=[osm(0, 0), osm(0, 1), osm(1, 0)], per=2, post=[osm(1, 1)])
    stamp(6)
    def oep(nu):
        return [f"v_pk_mul_f32 {vr(32+4*nu,2)}, {vr(32+4*nu,2)}, v[28:29] op_sel_hi:[1,0]",
                f"v_pk_fma_f32 {vr(32+4*nu,2)}, {vr(34+4*nu,2)}, v[28:29], {vr(32+4*nu,2)} op_sel:[0,1,0]",
                f"v_add_f32 {vr(48+nu)}, {vr(32+4*nu)}, {vr(33+4*nu)}"]
    e0, e1, e2, e3 = oep(0), oep(1), oep(2), oep(3)
    a(osm(2, 0)); a(osm(2, 1)); a(e0[0]); a(osm(3, 0)); a(e0[1]); a(osm(3, 1)); a(e0[2])
    for l in e1: a(l)
    a("s_nop 0")
    for l in e2: a(l)
    for l in e3: a(l)
    a(f"ds_write_b128 v11, v[48:51] offset:{L_RED}")
    a("s_mov_b64 exec, 1")
    a(f"ds_add_rtn_u32 v20, {vr(vZ)}, {vr(vONE)} offset:{C_ORED}")
    a("s_mov_b64 exec, -1")
    for w in range(4): a(f"ds_read_b128 {vr(32+4*w,4)}, v8 offset:{L_RED + w*1024}")
    a("s_waitcnt lgkmcnt(2)")
    a(f"v_readfirstlane_b32 {sr(sT0)}, v20")
    a("v_pk_add_f32 v[32:33], v[32:33], v[36:37]")
    a("v_pk_add_f32 v[34:35], v[34:35], v[38:39]")
    a("s_waitcnt lgkmcnt(1)")
    a("v_pk_add_f32 v[32:33], v[32:33], v[40:41]")
    a("v_pk_add_f32 v[34:35], v[34:35], v[42:43]")
    a("s_waitcnt lgkmcnt(0)")
    a("v_pk_add_f32 v[32:33], v[32:33], v[44:45]")
    a("v_pk_add_f32 v[34:35], v[34:35], v[46:47]")
    a(f"s_cmp_eq_u32 {sr(sT0)}, {sr(sU2)}")
    a("v_permlane16_swap_b32 v32, v33")
    a("v_permlane16_swap_b32 v34, v35")
    a("v_add_f32 v32, v32, v33")
    a("v_add_f32 v34, v34, v35")
    a("v_cvt_pk_bf16_f32 v32, v32, v34")
    a("s_cbranch_scc0 L_Onear")
    a(f"buffer_store_dword v32, v21, {sr(RWS,4)}, {sr(sC0)} offen sc1")
    stamp(7)
    a("s_branch L_Odone")
    g.lab("L_Onear")
    a(f"s_cmp_eq_u32 {sr(sT0)}, 3")
    a("s_cbranch_scc0 L_Odone")
    a(f"buffer_store_dword v32, v21, {sr(RWS,4)}, {sr(sC0)} offen")
    stamp(7)
    g.lab("L_Odone")
    a(f"s_cmp_eq_u32 {sr(sCLS)}, {XF}")
    a("s_cbranch_scc0 L_fin")
    def red8(b):
        a(f"v_permlane32_swap_b32 {vr(b)}, {vr(b+1)}")
        a(f"v_permlane32_swap_b32 {vr(b+2)}, {vr(b+3)}")
        a(f"v_add_f32 {vr(b)}, {vr(b)}, {vr(b+1)}")
        a(f"v_add_f32 {vr(b+2)}, {vr(b+2)}, {vr(b+3)}")
        a("s_nop 1")
        a(f"v_permlane16_swap_b32 {vr(b)}, {vr(b+2)}")
        a(f"v_add_f32 {vr(b)}, {vr(b)}, {vr(b+2)}")
        a("s_nop 1")
        a(f"v_add_f32_dpp {vr(b)}, {vr(b)}, {vr(b)} row_ror:8 {DPPF}")
    lds_spin("L_rw", C_ORED, 12, 4, sleep=1)
    if her is not None: wait_go("L_goR", sleep=4)
    poll("L_pollRa", [f"buffer_load_dword {vr(12+r)}, {vr(vRA)}, {sr(RWS,4)}, 0 offen offset:{(r&1)*1024 + (r>>1)*128} sc1" for r in range(4)],
         range(12, 16), 16, sleep=sleepR)
    for k in range(4): a(f"v_lshlrev_b32 {vr(12+k)}, {sr(sC1)}, {vr(12+k)}")
    for k in range(4): a(f"v_and_b32 {vr(12+k)}, 0xffff0000, {vr(12+k)}")
    a("s_nop 1")
    red8(12)
    a(f"v_add_f32 v136, {vr(vRX)}, v12")
    rnd(136, 136)
    a(f"v_add_f32 v136, v136, {vr(vRB)}")
    poll("L_pollRy", [f"buffer_load_dwordx4 {vr(32+4*u,4)}, {vr(vRY+u)}, {sr(R3,4)}, 0 offen sc1" for u in range(3)], range(32, 44), 16,
         post=["v_pk_add_f32 v[12:13], v[32:33], v[36:37]", "v_pk_add_f32 v[14:15], v[34:35], v[38:39]",
               "v_pk_add_f32 v[12:13], v[12:13], v[40:41]", "v_pk_add_f32 v[14:15], v[14:15], v[42:43]"])
    stamp(8)
    red8(12)
    a("v_add_f32 v12, v12, v136")
    a("v_cvt_pk_bf16_f32 v12, v12, v12")
    a(f"buffer_store_short v12, {vr(vRO)}, {sr(R1,4)}, 0 offen")
    stamp(9)
    a("s_branch L_fin" if prof else "s_endpgm")

    g.lab("L_roleF")
    vW1 = 64
    vW2 = 128
    vA1 = 192
    vA2 = 224
    vAC = 240
    sF = sU0
    a(f"s_sub_u32 {sr(sF)}, {sr(sY)}, 8")
    a(f"s_lshl_b32 {sr(sU1)}, {sr(sF)}, 7")
    a(f"s_cmp_eq_u32 {sr(sW4)}, 1")
    a("s_cbranch_scc0 L_Fset")
    srd(R2, sW1, sU1, 0)
    a(f"s_sub_u32 {sr(R2+2)}, {512*2752}, {sr(sU1)}")
    a(f"v_lshrrev_b32 v12, 3, {vr(vLANE)}")
    a(f"v_and_b32 v13, 7, {vr(vLANE)}")
    a("v_mul_u32_u24 v12, 2752, v12")
    a("v_lshl_add_u32 v12, v13, 4, v12")
    a(f"s_mov_b32 {sr(sT3)}, {L_W}")
    g.lab("L_ldF")
    a(f"s_mov_b32 m0, {sr(sT3)}")
    a(f"s_waitcnt vmcnt({WF-1})")
    if 'noF' not in dbg: a(f"buffer_load_dwordx4 v12, {sr(R2,4)}, 0 offen lds")
    a(f"v_add_u32 v12, {8*2752}, v12")
    a(f"s_add_u32 {sr(sT3)}, {sr(sT3)}, 1024")
    a(f"s_cmp_lt_u32 {sr(sT3)}, {L_W + 65536}")
    a("s_cbranch_scc1 L_ldF")
    staged()
    g.lab("L_Fset")
    if 'ldonly' in dbg: a("s_branch L_fin")
    a(f"v_lshrrev_b32 v12, 1, {vr(vG)}")
    a("v_lshlrev_b32 v12, 7, v12")
    a(f"v_lshl_add_u32 v12, {vr(vI)}, 3, v12")
    a(f"v_and_b32 v15, 1, {vr(vG)}")
    a("v_lshl_add_u32 v12, v15, 2, v12")
    a("v_and_b32 v13, 0xc0, v12")
    a("v_and_b32 v14, 63, v12")
    a("v_lshl_add_u32 v13, v13, 1, v14")
    a(f"s_lshl_b32 {sr(sU2)}, {sr(sW4)}, 9")
    a(f"buffer_load_dword v40, v13, {sr(R0,4)}, {sr(sU2)} offen")
    a(f"buffer_load_dword v41, v13, {sr(R0,4)}, {sr(sU2)} offen offset:64")
    a(f"v_lshl_add_u32 v46, v12, 1, {sr(sU2)}")
    srd(R1, sB1, None, 2752)
    a(f"s_lshl_b32 {sr(sT0)}, {sr(sW4)}, 5")
    a(f"v_lshl_add_u32 v13, {vr(vI)}, 1, {sr(sT0)}")
    a(f"v_add_u32 v14, {sr(sU1)}, v13")
    a(f"buffer_load_ushort v44, v14, {sr(R1,4)}, 0 offen")
    a("v_lshl_add_u32 v47, v15, 7, v13")
    a(f"v_lshl_add_u32 v52, {vr(vG)}, 3, {sr(sT0)}")
    a("v_lshlrev_b32 v53, 6, v15")
    a(f"v_and_b32 v14, 1, {vr(vI)}")
    a(f"v_bfe_u32 v15, {vr(vI)}, 1, 1")
    a("v_lshlrev_b32 v13, 7, v14")
    a("v_lshl_add_u32 v13, v15, 6, v13")
    a(f"v_lshl_add_u32 v48, {vr(vG)}, 4, v13")
    a("v_mul_u32_u24 v51, 0xaaaa, v15")
    a("v_add_u32 v51, 0x4444, v51")
    a("v_mul_u32_u24 v50, 0xaaaa, v14")
    a("v_add_u32 v50, 0x4444, v50")
    a(f"v_bfe_u32 v13, {vr(vI)}, 2, 1")
    a("v_lshlrev_b32 v13, 10, v13")
    a("v_lshl_add_u32 v13, v14, 6, v13")
    a(f"v_lshl_add_u32 v49, {vr(vG)}, 4, v13")
    a("v_mov_b32 v38, 0x3f803f80")
    a(f"v_lshlrev_b32 v54, 11, {vr(vG)}")
    a(f"v_lshl_add_u32 v54, {vr(vI)}, 4, v54")
    a("v_add_u32 v55, 0x2000, v54")
    a(f"s_add_u32 {sr(sU2)}, {sr(sU2)}, {WS_A}")
    a(f"v_cmp_gt_u32 vcc, 8, {vr(vI)}")
    for k in range(4): a(f"v_and_b32 {vr(60+k)}, v38, {vr(vMASK+k)}")
    for k in range(4):
        a(f"v_cndmask_b32 {vr(56+k)}, 0, {vr(60+k)}, vcc")
        a(f"v_cndmask_b32 {vr(60+k)}, {vr(60+k)}, 0, vcc")
    for k in range(16): a(f"v_mov_b32 {vr(vA2+k)}, 0")
    a(f"s_lshl2_add_u32 {sr(sT0)}, {sr(sF)}, {sr(sW4)}")
    a(f"s_lshl_b32 {sr(sT0)}, {sr(sT0)}, 10")
    a(f"s_add_u32 {sr(sC0)}, {sr(sT0)}, {WS_Y}")
    a(f"s_mov_b32 {sr(sM0)}, 0x000f000f"); a(f"s_mov_b32 {sr(sM0+1)}, 0x000f000f")
    a(f"v_and_b32 v11, 3, {vr(vLANE)}")
    a("v_lshlrev_b32 v11, 3, v11")
    a(f"v_bfe_u32 v14, {vr(vLANE)}, 3, 1")
    a(f"v_bfe_u32 v13, {vr(vLANE)}, 2, 1")
    a(f"v_lshl_add_u32 v39, v14, 3, {vr(vG)}")
    a(f"v_mul_u32_u24 v39, {W2P}, v39")
    a("v_lshl_add_u32 v39, v13, 8, v39")
    a(f"s_mul_i32 {sr(sC1)}, {sr(sW4)}, {16*W2P}")
    a(f"s_add_u32 {sr(sC1)}, {sr(sC1)}, {L_W2}")
    a(f"v_add3_u32 v39, v39, v11, {sr(sC1)}")
    a("v_lshlrev_b32 v10, 5, v13")
    a("v_lshl_add_u32 v10, v14, 4, v10")
    a(f"v_lshl_add_u32 v10, {vr(vG)}, 1, v10")
    a("v_lshl_add_u32 v10, v10, 7, v11")
    a(f"s_lshl_b32 {sr(sT0)}, {sr(sW4)}, 5")
    a(f"s_add_u32 {sr(sT0)}, {sr(sT0)}, {L_W}")
    a(f"v_add_u32 v10, {sr(sT0)}, v10")
    lds_spin("L_stgF", C_STG, 12, 1, sleep=4)
    for s in range(8):
        for p in range(4):
            a(f"ds_read_b64_tr_b16 {vr(vW1+8*s+2*p,2)}, v10 offset:{(64*s + 8*(p>>1) + (p&1))*128}")
        if s & 1: a("s_waitcnt lgkmcnt(0)")
    get_loc("L_locF")
    for k in range(4): a(f"v_mov_b32 {vr(vAC+k)}, 0"); a(f"v_mov_b32 {vr(16+k)}, v38")
    a("v_and_b32 v42, 0xffff0000, v40")
    a("v_and_b32 v43, 0xffff0000, v41")
    for s_ in range(8): a(f"v_smfmac_f32_16x16x64_bf16 {vr(vAC,4)}, v[16:19], {vr(vW1+8*s_,8)}, v50")
    a("v_lshlrev_b32 v40, 16, v40")
    a("v_lshlrev_b32 v41, 16, v41")
    a("v_lshlrev_b32 v44, 16, v44")
    a(f"s_lshl_b32 {sr(sT0)}, {sr(sF)}, 16")
    srd(R1, sW2, sT0, 0)
    a(f"s_sub_u32 {sr(R1+2)}, {1376*1024}, {sr(sT0)}")
    a(f"v_add_f32 v45, {vr(vAC)}, {vr(vAC+1)}")
    for k in range(12): a(f"v_mov_b32 {vr(vAC+k)}, 0")
    a(f"s_lshl_b32 {sr(sT0)}, {sr(sW4)}, 8")
    a(f"v_lshl_add_u32 v15, {vr(vI)}, 4, {sr(sT0)}")
    a(f"v_lshl_add_u32 v15, {vr(vG)}, 10, v15")
    stamp(4)
    g.c("the own 128 columns of the w2 tile are fetched behind the last reads of the stream")
    lds_spin("L_tr2", C_TRIG2, 12, 4, sleep=1)
    for k in range(16):
        a(f"s_add_u32 m0, {sr(sC1)}, {k*W2P}")
        a(f"s_waitcnt vmcnt({W2W-1})")
        a(f"buffer_load_dwordx4 v15, {sr(R1,4)}, 0 offen nt lds")
        a("v_add_u32 v15, 0x1000, v15")
    w2r = [f"ds_read_b64_tr_b16 {vr(vW2+8*nu+2*p,2)}, v39 offset:{4*(p>>1)*W2P + 512*(p&1) + nu*32}" for nu in range(8) for p in range(4)]
    if w2mode == 0:
        a("s_waitcnt vmcnt(0)")
        stamp(5)
        wait_go("L_goF", first=w2r)
    else:
        wait_go("L_goF")
    stamp(9)
    poll("L_pollF", [f"buffer_load_dwordx4 {vr(vA1+8*ch+4*u,4)}, {vr(54+u)}, {sr(RWS,4)}, {sr(sU2)} offen offset:{ch*256} sc1" for ch in range(2) for u in range(2)],
         range(vA1, vA1+16), 32,
         spec=[f"v_mfma_f32_16x16x32_bf16 v[28:31], v[56:59], {vr(vA1,4)}, v[40:43]",
               f"v_mfma_f32_16x16x32_bf16 v[28:31], v[56:59], {vr(vA1+4,4)}, v[28:31]",
               f"v_mfma_f32_16x16x32_bf16 v[28:31], v[60:63], {vr(vA1+8,4)}, v[28:31]",
               f"v_mfma_f32_16x16x32_bf16 v[28:31], v[60:63], {vr(vA1+12,4)}, v[28:31]"], per=2,
         post=["s_nop 3"], first=w2r if w2mode else ())
    stamp(6)
    a("v_cvt_pk_bf16_f32 v28, v28, v29")
    a("v_cvt_pk_bf16_f32 v29, v30, v31")
    a(f"ds_write_b64 v46, v[28:29] offset:{L_HN}")
    a("v_dot2_f32_bf16 v32, v28, v38, 0")
    a("v_dot2_f32_bf16 v33, v28, v28, 0")
    a("v_dot2_f32_bf16 v32, v29, v38, v32")
    a("v_dot2_f32_bf16 v33, v29, v29, v33")
    a("s_nop 0")
    for st in ("quad_perm:[1,0,3,2]", "quad_perm:[2,3,0,1]", "row_ror:4", "row_ror:8"):
        a("s_nop 0")
        for r in (32, 33): a(f"v_add_f32_dpp {vr(r)}, {vr(r)}, {vr(r)} {st} {DPPF}")
    a(f"ds_write_b64 v52, v[32:33] offset:{L_FS}")
    a("s_waitcnt lgkmcnt(0)")
    a("s_barrier")
    order = [('a', 0), ('s', 0), ('s', 1), ('a', 1), ('s', 2), ('s', 3)] + [('a', k) for k in range(2, 8)]
    for kind, k in order:
        if kind == 'a': a(f"ds_read_b128 {vr(vA1+4*k,4)}, v49 offset:{L_HN + k*128}")
        else: a(f"ds_read_b128 {vr(12+4*k if k < 3 else 28,4)}, v53 offset:{L_FS + k*16}")
    keep = g.L; g.L = []
    a("v_pk_add_f32 v[12:13], v[12:13], v[14:15]"); a("v_pk_add_f32 v[16:17], v[16:17], v[18:19]")
    a("v_pk_add_f32 v[12:13], v[12:13], v[16:17]")
    a("v_pk_add_f32 v[20:21], v[20:21], v[22:23]"); a("v_pk_add_f32 v[28:29], v[28:29], v[30:31]")
    a("v_pk_add_f32 v[12:13], v[12:13], v[20:21]"); a("v_pk_add_f32 v[12:13], v[12:13], v[28:29]")
    a("v_mul_f32 v32, 0x3b000000, v12"); a("v_mul_f32 v33, 0x3b000000, v13")
    a("v_fma_f32 v33, -v32, v32, v33"); a("v_max_f32 v36, 0, v33")
    if lnmimic: ln_scale(32, 36)
    else:
        a(f"v_add_f32 v36, {EPS:#x}, v36"); a("v_rsq_f32 v36, v36")
    work = [l.strip() for l in g.L]; g.L = keep
    plan = {1: 3, 2: 3, 3: 3, 4: 2, 5: 2, 6: 2} if lnmimic else {1: 1, 2: 1, 3: 1, 4: 1, 5: 1, 6: 1}
    for k in range(8):
        a(f"s_waitcnt lgkmcnt({len(order) - 1 - order.index(('a', k))})")
        a(f"v_smfmac_f32_16x16x64_bf16 {vr(vAC,4)}, {vr(vA1+4*k,4)}, {vr(vW1+8*k,8)}, v50")
        for _ in range(plan.get(k, 0)): a(work.pop(0))
    stamp(7)
    nrest = len(work)
    for l in work: a(l)
    if nrest < 8: a(f"s_nop {7 - nrest}")
    a(f"v_add_f32 v28, {vr(vAC)}, {vr(vAC+1)}")
    a("v_fma_f32 v28, -v32, v45, v28")
    a("v_fma_f32 v28, v28, v36, v44")
    a("v_max_f32 v28, 0, v28")
    a("v_mul_f32 v28, v28, v28")
    a("v_cvt_pk_bf16_f32 v28, v28, v28")
    a(f"ds_write_b16 v47, v28 offset:{L_RR}")
    a(f"s_mov_b64 exec, {sr(sM0,2)}")
    a("s_waitcnt lgkmcnt(0)")
    a("s_barrier")
    for q in range(4):
        a(f"ds_read_b128 {vr(vA2+4*q,4)}, v48 offset:{L_RR}")
        if q < 3: a(f"s_lshl_b64 exec, {sr(sM0,2)}, {4*(q+1)}")
    a("s_mov_b64 exec, -1")
    a(f"s_cmp_eq_u32 {sr(sLOC)}, {LOCV}")
    for q in range(4):
        a(f"s_waitcnt lgkmcnt({3-q})")
        for aa in range(2):
            a(f"v_smfmac_f32_16x16x64_bf16 {vr(vAC+4+4*aa,4)}, {vr(vA2+4*q,4)}, {vr(vW2+8*(4*aa+q),8)}, v51")
    a("s_nop 5")
    a("s_cbranch_scc0 L_F2far")
    for pol in ("", "sc1"):
        if pol: g.lab("L_F2far")
        a(f"v_pk_add_f32 v[28:29], {vr(vAC+4,2)}, {vr(vAC+6,2)}")
        a(f"v_pk_add_f32 v[30:31], {vr(vAC+8,2)}, {vr(vAC+10,2)}")
        a(f"buffer_store_dwordx4 v[28:31], v8, {sr(RWS,4)}, {sr(sC0)} offen {pol}")
        stamp(8)
        if not pol: a("s_branch L_fin")

    g.lab("L_fin")
    if diag or agg or store_prof:
        import diagcode
        diagcode.emit(locals())
    g.lab("L_end")
    a("s_endpgm")

    nv = 252
    out = [HEADER.rstrip("\n"),
           f"; @launch grid=(256,1,1) block=(512,1,1) lds={L_END}",
           '.amdgcn_target "amdgcn-amd-amdhsa--gfx950"', ".text", f".globl {NAME}_kernel", ".p2align 8",
           f".type {NAME}_kernel,@function", f"{NAME}_kernel:"]
    out += g.L
    out += ['.section .rodata,"a"', ".p2align 6", f".amdhsa_kernel {NAME}_kernel",
            f"  .amdhsa_next_free_vgpr {nv}", "  .amdhsa_next_free_sgpr 100", f"  .amdhsa_accum_offset {nv}",
            "  .amdhsa_group_segment_fixed_size 0", "  .amdhsa_kernarg_size 104",
            "  .amdhsa_user_sgpr_count 2", "  .amdhsa_user_sgpr_kernarg_segment_ptr 1",
            "  .amdhsa_system_sgpr_workgroup_id_x 1", "  .amdhsa_float_denorm_mode_32 3",
            ".end_amdhsa_kernel"]
    return "\n".join(out) + "\n"

if __name__ == "__main__":
    kw = eval("dict(" + (sys.argv[2] if len(sys.argv) > 2 else "") + ")")
    open(sys.argv[1], "w").write(gen(**kw))
```
